```python
import torch

def _softmax(x, axis=-1):
    return torch.softmax(x, dim=axis)
def _gelu(x):
    return torch.nn.functional.gelu(x, approximate="tanh")
def _silu(x):
    return torch.nn.functional.silu(x)
def _sigmoid(x):
    return torch.sigmoid(x)
def _layernorm(x, axis=-1, eps=1e-5):
    m = x.mean(dim=axis, keepdim=True)
    v = x.var(dim=axis, keepdim=True, unbiased=False)
    return (x - m) / torch.sqrt(v + eps)
def _scatter_add(tgt, idx, src, axis=0):
    return tgt.clone().index_add_(axis, idx, src)
def _segment_sum(src, seg, n):
    out = torch.zeros((n,) + src.shape[1:], dtype=src.dtype)
    return out.index_add_(0, seg, src)
def _pad(x, pw):
    flat = tuple(v for pair in reversed(pw) for v in pair)
    return torch.nn.functional.pad(x, flat)

kernel_name = 'parallel_sum__mha_block__mixer_s_mlp__prompt'

def setup_inputs():

    _w = (lambda a: (lambda t: t.to(torch.bfloat16) if t.is_floating_point() else t)(torch.as_tensor(a)))
    def _A_setup():
        B, S, D, H = 1, 2048, 512, 32
        return {
            "x": _w((lambda *s: torch.randn(*s, dtype=torch.bfloat16) * 0.05)(B, S, D)),
            "wqkv": _w((lambda *s: torch.randn(*s, dtype=torch.bfloat16) * 0.1)(D, 3 * D)),
            "wo": _w((lambda *s: torch.randn(*s, dtype=torch.bfloat16) * 0.05)(D, D)),
        }
    _A_in = _A_setup()

    def _B_setup():
        B, S, D, F = 1, 2048, 512, 1376
        return {
            "x":  _w((lambda *s: torch.randn(*s, dtype=torch.bfloat16) * 0.05)(B, S, D)),
            "w1": _w((lambda *s: torch.randn(*s, dtype=torch.bfloat16) * 3.2)(D, D) * (D ** -0.5)),
            "w2": _w((lambda *s: torch.randn(*s, dtype=torch.bfloat16) * 3.2)(D, D) * (D ** -0.5)),
            "w3": _w((lambda *s: torch.randn(*s, dtype=torch.bfloat16) * 3.2)(D, F) * (D ** -0.5)),
            "w4": _w((lambda *s: torch.randn(*s, dtype=torch.bfloat16) * 3.2)(F, D) * (F ** -0.5)),
        }
    _B_in = _B_setup()

    return {
        "A_x": _A_in["x"],
        "A_wqkv": _A_in["wqkv"],
        "A_wo": _A_in["wo"],
        "B_x": _B_in["x"],
        "B_w1": _B_in["w1"],
        "B_w2": _B_in["w2"],
        "B_w3": _B_in["w3"],
        "B_w4": _B_in["w4"],
    }

def reference(A_x, A_wqkv, A_wo, B_x, B_w1, B_w2, B_w3, B_w4):
    def _A_ref(x, wqkv, wo):
        B, S, D = x.shape
        H = 32
        Dh = D // H
        qkv = (lambda x, *d: x.permute(*d))((x @ wqkv).reshape(B, S, 3, H, Dh), 2, 0, 3, 1, 4)
        q, k, v = qkv[0], qkv[1], qkv[2]
        scores = torch.einsum("bhqd,bhkd->bhqk", q, k) * (Dh ** -0.5)
        p = _softmax(scores, axis=-1)
        o = torch.einsum("bhqk,bhkd->bhqd", p, v)
        return (lambda x, *d: x.permute(*d))(o, 0, 2, 1, 3).reshape(B, S, D) @ wo

    def _B_ref(x, w1, w2, w3, w4):
        B, S, D = x.shape
        h = _gelu(_layernorm(x, axis=-1) @ w1)
        c = D // 4
        g0 = _pad(h[:, :, 0*c:1*c], ((0, 0), (1, 0), (0, 0)))[:, :S, :]
        g1 = _pad(h[:, :, 1*c:2*c], ((0, 0), (0, 1), (0, 0)))[:, 1:, :]
        g2 = _pad(h[:, :, 2*c:3*c], ((0, 0), (2, 0), (0, 0)))[:, :S, :]
        g3 = _pad(h[:, :, 3*c:   ], ((0, 0), (0, 2), (0, 0)))[:, 2:, :]
        hs = torch.concatenate([g0, g1, g2, g3], axis=-1) @ w2
        x1 = x + hs
        h2 = _gelu(_layernorm(x1, axis=-1) @ w3) @ w4
        return x1 + h2

    x = A_x
    xn = _layernorm(x, axis=-1)
    return x + _A_ref(xn, A_wqkv, A_wo) + _B_ref(xn, B_w1, B_w2, B_w3, B_w4)
```

```python
import re

def v(b, n=1): return f"v{b}" if n == 1 else f"v[{b}:{b+n-1}]"
def s(b, n=1): return f"s{b}" if n == 1 else f"s[{b}:{b+n-1}]"

_REG = re.compile(r"^-?(?:abs\()?([vsa])(?:(\d+)|\[(\d+):(\d+)\])\)?$")
def regs(op):
    op = op.strip()
    if op == "vcc": return {("s", "vcc")}
    if op == "exec": return {("s", "exec")}
    if op == "m0": return {("s", "m0")}
    m = _REG.match(op)
    if not m: return set()
    k = m.group(1)
    if m.group(2) is not None: return {(k, int(m.group(2)))}
    return {(k, i) for i in range(int(m.group(3)), int(m.group(4)) + 1)}

TRANS = ("v_exp_", "v_log_", "v_rcp_", "v_rsq_", "v_sqrt_", "v_sin_", "v_cos_")

class Ins:
    def __init__(self, text):
        self.text = text
        t = text.split(";")[0].strip()
        self.label = t.endswith(":")
        self.directive = t.startswith(".")
        self.empty = (t == "")
        self.op = "" if (self.label or self.directive or self.empty) else t.split()[0]
        rest = t[len(self.op):].strip() if self.op else ""
        ops = [o.strip() for o in rest.split(",")] if rest else []
        if ops:
            last = ops[-1].split()
            self.mods = last[1:]
            ops[-1] = last[0] if last else ""
        else:
            self.mods = []
        self.ops = ops
        op = self.op
        self.mfma = op.startswith("v_mfma") or op.startswith("v_smfmac")
        self.valu = op.startswith("v_") and not self.mfma
        self.trans = op.startswith(TRANS)
        self.dot = op.startswith("v_dot")
        self.vmem = op.startswith(("buffer_", "global_"))
        self.ds = op.startswith("ds_")
        self.salu = op.startswith("s_")
        self.w = set(); self.r = set(); self.srcc = set(); self.srcab = set(); self.stdata = set()
        R = [regs(o) for o in ops]
        if self.mfma:
            self.w = R[0]; self.srcab = R[1] | R[2]
            if op.startswith("v_smfmac"):
                self.srcc = R[0]; self.srcab |= R[3]
            else:
                self.srcc = R[3]
            self.r = self.srcab | self.srcc
            self.passes = 8 if "32x32" in op else 4
        elif self.valu:
            if op.startswith("v_cmp"):
                self.w = R[0]; self.r = set().union(*R[1:])
                if op.startswith("v_cmpx"): self.w |= {("s", "exec")}
            elif op.startswith("v_permlane") and "swap" in op:
                self.w = R[0] | R[1]; self.r = R[0] | R[1]
            elif op.startswith(("v_add_co", "v_sub_co", "v_addc_co", "v_subb_co")):
                self.w = R[0] | R[1]; self.r = set().union(*R[2:])
            else:
                self.w = R[0]; self.r = set().union(*R[1:]) if len(R) > 1 else set()
                if op.startswith(("v_fmac", "v_dot2c", "v_pk_fmac")): self.r |= R[0]
        elif self.vmem:
            lds = "lds" in self.mods
            if op.startswith("buffer_"):
                if "load" in op and not lds:
                    self.w = R[0]; self.r = set().union(*R[1:])
                elif lds:
                    self.r = set().union(*R) | {("s", "m0")}
                else:
                    self.r = set().union(*R); self.stdata = R[0]
                    if "atomic" in op and "sc0" in self.mods: self.w = R[0]
            else:
                if "load" in op:
                    self.w = R[0]; self.r = set().union(*R[1:])
                else:
                    self.r = set().union(*R); self.stdata = R[1]
        elif self.ds:
            if op.startswith(("ds_read", "ds_bpermute", "ds_swizzle")) or "_rtn" in op:
                self.w = R[0]; self.r = set().union(*R[1:])
            else:
                self.r = set().union(*R)
        elif self.salu:
            if op.startswith(("s_cmp", "s_cbranch", "s_branch", "s_waitcnt", "s_nop", "s_barrier", "s_setprio", "s_sleep", "s_endpgm")):
                self.r = set().union(*R) if R else set()
            elif R:
                self.w = R[0]; self.r = set().union(*R[1:]) if len(R) > 1 else set()
    def states(self):
        if self.label or self.directive or self.empty: return 0
        if self.op == "s_nop": return int(self.ops[0]) + 1
        return 1

def need(p, c):
    n = 0
    vw = {x for x in p.w if x[0] in "va"}; sw = {x for x in p.w if x[0] == "s"}
    if p.valu:
        if c.mfma and vw & c.r: n = max(n, 3 if p.dot else 2)
        if p.dot and (c.valu or c.vmem or c.ds) and vw & (c.r | c.w):
            same_c = c.op == p.op and not (vw & (regs(c.ops[1]) | regs(c.ops[2])))
            if not same_c: n = max(n, 3)
        if p.trans and c.valu and not c.trans and vw & c.r: n = max(n, 1)
        if c.op.startswith(("v_readfirstlane", "v_readlane")) and vw & c.r: n = max(n, 1)
        if c.op.startswith("v_permlane") and vw & c.r: n = max(n, 2)
        if c.valu and any(m.startswith(("row_", "quad_perm", "wave_")) for m in c.mods) and vw & c.r: n = max(n, 2)
        if "sdwa" in p.op and c.valu and vw & (c.r | c.w): n = max(n, 1)
        if sw:
            if c.vmem and sw & c.r: n = max(n, 5)
            if c.valu and sw & c.r: n = max(n, 4 if c.op.startswith(("v_readlane", "v_writelane")) else 2)
            if c.op.startswith("v_cndmask") and ("s", "vcc") in sw and len(c.ops) == 3: n = max(n, 2)
            if ("s", "exec") in sw and (c.mfma or c.op.startswith(("v_permlane", "v_readfirstlane", "v_readlane"))): n = max(n, 4)
            if c.salu and sw & c.r: n = max(n, 1)
    if p.mfma:
        big = p.passes == 8
        if c.mfma:
            if vw & c.srcab: n = max(n, 12 if big else 8)
            if vw & c.srcc and not (vw == c.srcc and p.passes == c.passes): n = max(n, 10 if big else 6)
            if vw & c.w and not (vw & c.srcc) : n = max(n, 0)
        elif (c.valu and vw & (c.r | c.w)) or ((c.vmem or c.ds) and vw & (c.r | c.w)):
            n = max(n, 12 if big else 8)
        if c.valu and p.srcc & c.w: n = max(n, 7 if big else 3)
    if p.vmem and p.stdata and ("x4" in p.op or "x3" in p.op):
        if c.valu and p.stdata & c.w: n = max(n, 2)
        elif p.stdata & c.w: n = max(n, 1)
    if p.salu and ("s", "m0") in p.w and (c.vmem and "lds" in c.mods): n = max(n, 1)
    return n

def fix(lines, insert=True, name=""):
    out = []; hist = []; added = 0
    for t in lines:
        c = Ins(t)
        if c.op:
            short = 0; dist = 0
            for p in reversed(hist):
                if dist >= 20: break
                short = max(short, need(p, c) - dist)
                dist += p.states()
            if short > 0:
                if not insert: raise RuntimeError(f"{name}: hazard before '{t}' short by {short}")
                nop = f"    s_nop {short-1}"
                out.append(nop); hist.append(Ins(nop)); added += 1
            hist.append(c)
            hist = hist[-24:]
        out.append(t)
    return out, added

class Asm:
    def __init__(self):
        self.lines = []
        self.loops = []
    def __call__(self, text):
        for t in text.split("\n"):
            t = t.strip()
            if not t: continue
            self.lines.append(t if t.endswith(":") or t.startswith(".") else "    " + t)
    def label(self, name): self.lines.append(name + ":")
    def done(self):
        out, added = fix(self.lines)
        idx = {l[:-1]: i for i, l in enumerate(out) if l.endswith(":")}
        for i, l in enumerate(out):
            c = Ins(l)
            if c.op.startswith(("s_cbranch", "s_branch")) and c.ops[0] in idx:
                j = idx[c.ops[0]]
                fix(out[max(0, i-24):i+1] + out[j:j+24], insert=False, name=f"edge {l.strip()}")
        return out, added
```

```python
import struct
from asmlib import *

QF, KVF, HF, X1F, OF, GF = 0x000000, 0x200000, 0x600000, 0x800000, 0xA00000, 0xC00000
GF_SIZE = 86*65536
YB, ST1, ST2, FLG = 0x1200000, 0x1600000, 0x1610000, 0x1660000
CS3P = 0x1668000
WS_USED = 0x1680000
A_X, A_WQKV, A_WO, B_W1, B_W2, B_W3, B_W4, P_OUT, P_DBG, P_WS = 0, 8, 16, 32, 40, 48, 56, 64, 72, 80

def f2u(x): return struct.unpack("<I", struct.pack("<f", x))[0]
def fl(x): return f"0x{f2u(x):08x}"
LOG2E = 1.4426950408889634
GC1 = 2*0.7978845608028654*LOG2E
GC2 = GC1*0.044715
EPS = 1e-5
ONES = 0x3f803f80

def srd(a, d, base, off, size):
    if off:
        a(f"s_add_u32 {s(d)}, {s(base)}, 0x{off:x}")
        a(f"s_addc_u32 {s(d+1)}, {s(base+1)}, 0")
    else:
        a(f"s_mov_b32 {s(d)}, {s(base)}")
        a(f"s_mov_b32 {s(d+1)}, {s(base+1)}")
    a(f"s_mov_b32 {s(d+2)}, 0x{size:x}")
    a(f"s_mov_b32 {s(d+3)}, 0x20000")

def gelu(a, xs, tmp, vnc1):
    for x, t in zip(xs, tmp): a(f"v_mul_f32 {v(t)}, {v(x)}, {v(x)}")
    for x, t in zip(xs, tmp): a(f"v_fmamk_f32 {v(t)}, {v(t)}, {fl(-GC2)}, {v(vnc1)}")
    for x, t in zip(xs, tmp): a(f"v_mul_f32 {v(t)}, {v(t)}, {v(x)}")
    for x, t in zip(xs, tmp): a(f"v_exp_f32 {v(t)}, {v(t)}")
    for x, t in zip(xs, tmp): a(f"v_add_f32 {v(t)}, 1.0, {v(t)}")
    for x, t in zip(xs, tmp): a(f"v_rcp_f32 {v(t)}, {v(t)}")
    for x, t in zip(xs, tmp): a(f"v_mul_f32 {v(x)}, {v(x)}, {v(t)}")

def halves_sum(a, x, t):
    a(f"v_mov_b32 {v(t)}, {v(x)}")
    a(f"v_permlane32_swap_b32 {v(x)}, {v(t)}")
    a(f"v_add_f32 {v(x)}, {v(x)}, {v(t)}")

def kernel_text(name, lines, vgpr, sgpr=96):
    head = [f".globl {name}", ".p2align 8", f".type {name},@function", f"{name}:"]
    desc = [".p2align 6", f".amdhsa_kernel {name}", f"  .amdhsa_next_free_vgpr {vgpr}", f"  .amdhsa_next_free_sgpr {sgpr}",
            f"  .amdhsa_accum_offset {(vgpr+3)//4*4}", "  .amdhsa_group_segment_fixed_size 0", "  .amdhsa_kernarg_size 88",
            "  .amdhsa_user_sgpr_count 2", "  .amdhsa_user_sgpr_kernarg_segment_ptr 1", "  .amdhsa_system_sgpr_workgroup_id_x 1",
            "  .amdhsa_float_denorm_mode_32 3", ".end_amdhsa_kernel"]
    return head + lines, desc


class VM:
    def __init__(self, a): self.a = a; self.q = []
    def op(self, text, tag=None):
        self.a(text); self.q.append(tag)
    def wait(self, *tags):
        last = max((i for i, t in enumerate(self.q) if t in tags), default=-1)
        if last < 0: return
        n = len(self.q) - 1 - last
        assert n <= 63
        self.a(f"s_waitcnt vmcnt({n})")
        self.q = self.q[last+1:]
```

```python
from common import *

def gen_k1():
    a = Asm()
    sX, sW, sWS = 8, 12, 16
    pX, pQKV, pW1, pWS = 20, 22, 24, 26
    sW_, sTQ, sFH, sRB, sCB, sHB, sTY, sSTR, sCOL = 28, 29, 30, 31, 32, 33, 34, 35, 36
    sXO, sWO, sM0, sT, sT2, sONE, sSC, sBS, sBO, s8S, s64S = 37, 38, 39, 40, 41, 42, 43, 44, 45, 46, 47
    sW3, pW3, sKP, sC3 = 48, 52, 54, 55
    W3V = 184
    vL, vT0, vT1, vT2, vT3 = 1, 2, 3, 4, 5
    vX0, vX1, vWD = 6, 7, 8
    vI, vHI = 9, 10
    vSUM, vSQ, vCS = 12, 13, 14
    XA = lambda st, k: 16 + st*4 + k
    WA = lambda st, k, ft: 28 + st*8 + k*2 + ft
    XF = lambda p: 52 + 4*p
    WF = lambda p, ft: 60 + 8*p + 4*ft
    ACC = lambda ft: 80 + 16*ft
    CSV = 112
    PK = 144
    TMP = 160
    vMEAN, vR, vR1, vNC1, vOFF, vTA, vTB = 176, 177, 178, 179, 180, 181, 182
    a(f"""
    s_cmp_ge_u32 s2, 256
    s_cbranch_scc1 K1_END
    s_load_dwordx4 {s(pX,4)}, s[0:1], {A_X}
    s_load_dwordx2 {s(pW1,2)}, s[0:1], {B_W1}
    s_load_dwordx2 {s(pWS,2)}, s[0:1], {P_WS}
    s_load_dwordx2 {s(pW3,2)}, s[0:1], {B_W3}
    v_lshrrev_b32 {v(vT0)}, 6, v0
    v_and_b32 {v(vL)}, 63, v0
    v_readfirstlane_b32 {s(sW_)}, {v(vT0)}
    s_and_b32 {s(sT)}, s2, 3
    s_lshl_b32 {s(sRB)}, {s(sT)}, 2
    s_bfe_u32 {s(sT)}, s2, 0x20003
    s_add_u32 {s(sRB)}, {s(sRB)}, {s(sT)}
    s_bfe_u32 {s(sT)}, s2, 0x10002
    s_lshl_b32 {s(sCB)}, {s(sT)}, 3
    s_lshr_b32 {s(sT2)}, s2, 5
    s_add_u32 {s(sCB)}, {s(sCB)}, {s(sT2)}
    s_and_b32 {s(sTQ)}, {s(sW_)}, 3
    s_lshr_b32 {s(sFH)}, {s(sW_)}, 2
    s_mul_i32 {s(sT)}, {s(sFH)}, 24
    s_add_u32 {s(sHB)}, {s(sT)}, {s(sCB)}
    s_lshl_b32 {s(sT)}, {s(sCB)}, 1
    s_add_u32 {s(sT)}, {s(sT)}, {s(sFH)}
    s_sub_u32 {s(sT)}, {s(sT)}, 8
    s_cmp_lt_u32 {s(sCB)}, 8
    s_cselect_b32 {s(sHB)}, {s(sHB)}, {s(sT)}
    s_lshr_b32 {s(sTY)}, {s(sHB)}, 3
    s_lshl_b32 {s(sCOL)}, {s(sHB)}, 7
    s_sub_u32 {s(sT)}, {s(sCOL)}, 3072
    s_cmp_eq_u32 {s(sTY)}, 3
    s_cselect_b32 {s(sCOL)}, {s(sT)}, {s(sCOL)}
    s_mov_b32 {s(sSTR)}, 3072
    s_cmov_b32 {s(sSTR)}, 1024
    s_lshl_b32 {s(s8S)}, {s(sSTR)}, 3
    s_lshl_b32 {s(s64S)}, {s(sSTR)}, 6
    v_lshrrev_b32 {v(vT0)}, 3, {v(vL)}
    v_lshrrev_b32 {v(vT1)}, 4, {v(vL)}
    v_and_b32 {v(vT2)}, 7, {v(vL)}
    v_xor_b32 {v(vT3)}, {v(vT2)}, {v(vT1)}
    v_lshlrev_b32 {v(vT3)}, 4, {v(vT3)}
    s_lshl_b32 {s(sT)}, {s(sW_)}, 4
    v_add_u32 {v(vX0)}, {s(sT)}, {v(vT0)}
    v_lshl_add_u32 {v(vX0)}, {v(vX0)}, 10, {v(vT3)}
    v_xor_b32 {v(vX1)}, 64, {v(vX0)}
    v_add_u32 {v(vX1)}, 0x2000, {v(vX1)}
    v_and_b32 {v(vT1)}, 1, {v(vT1)}
    v_lshlrev_b32 {v(vT1)}, 2, {v(vT1)}
    v_xor_b32 {v(vT1)}, {v(vT1)}, {v(vT2)}
    v_lshlrev_b32 {v(vT1)}, 4, {v(vT1)}
    s_lshl_b32 {s(sT)}, {s(sTQ)}, 4
    v_add_u32 {v(vT0)}, {s(sT)}, {v(vT0)}
    v_mul_lo_u32 {v(vWD)}, {v(vT0)}, {s(sSTR)}
    v_add3_u32 {v(vWD)}, {v(vWD)}, {v(vT1)}, {s(sCOL)}
    s_lshl_b32 {s(sXO)}, {s(sRB)}, 17
    s_mov_b32 {s(sWO)}, 0
    s_lshl_b32 {s(sM0)}, {s(sW_)}, 11
    s_waitcnt lgkmcnt(0)
    """)
    srd(a, sX, pX, 0, 0x200000)
    srd(a, sW3, pW3, 0, 512*2752)
    a(f"""
    s_mul_i32 {s(sKP)}, s2, 2979
    s_lshr_b32 {s(sKP)}, {s(sKP)}, 16
    s_mul_i32 {s(sT)}, {s(sKP)}, 22
    s_sub_u32 {s(sC3)}, s2, {s(sT)}
    s_lshl_b32 {s(sT)}, {s(sKP)}, 3
    s_add_u32 {s(sT)}, {s(sT)}, {s(sW_)}
    s_mul_i32 {s(sT)}, {s(sT)}, {8*2752}
    s_lshl_b32 {s(sT2)}, {s(sC3)}, 7
    s_add_u32 {s(sT)}, {s(sT)}, {s(sT2)}
    v_lshrrev_b32 {v(vT0)}, 3, {v(vL)}
    v_mul_u32_u24 {v(vT0)}, 2752, {v(vT0)}
    v_lshl_add_u32 {v(vT0)}, {v(vT2)}, 4, {v(vT0)}
    buffer_load_dwordx4 {v(W3V,4)}, {v(vT0)}, {s(sW3,4)}, {s(sT)} offen
    """)
    a(f"""
    s_cmp_eq_u32 {s(sTY)}, 3
    s_cselect_b32 {s(sW)}, {s(pW1)}, {s(pQKV)}
    s_cselect_b32 {s(sW+1)}, {s(pW1+1)}, {s(pQKV+1)}
    s_lshl_b32 {s(sW+2)}, {s(sSTR)}, 9
    s_mov_b32 {s(sW+3)}, 0x20000
    """)
    def dma(c):
        sl = (c % 5)*32768
        a(f"""
        s_add_u32 m0, {s(sM0)}, {sl}
        s_add_u32 {s(sT)}, {s(sWO)}, {s(s8S)}
        buffer_load_dwordx4 {v(vX0)}, {s(sX,4)}, {s(sXO)} offen lds
        s_add_u32 m0, {s(sM0)}, {sl+16384}
        s_nop 0
        buffer_load_dwordx4 {v(vWD)}, {s(sW,4)}, {s(sWO)} offen lds
        s_add_u32 m0, {s(sM0)}, {sl+1024}
        s_add_u32 {s(sWO)}, {s(sWO)}, {s(s64S)}
        buffer_load_dwordx4 {v(vX1)}, {s(sX,4)}, {s(sXO)} offen lds
        s_add_u32 m0, {s(sM0)}, {sl+17408}
        s_add_u32 {s(sXO)}, {s(sXO)}, 128
        buffer_load_dwordx4 {v(vWD)}, {s(sW,4)}, {s(sT)} offen lds
        """)
    for c in range(5): dma(c)
    srd(a, sWS, pWS, 0, WS_USED)
    a(f"""
    v_and_b32 {v(vI)}, 31, {v(vL)}
    v_lshrrev_b32 {v(vHI)}, 5, {v(vL)}
    s_lshl_b32 {s(sT)}, {s(sTQ)}, 5
    v_add_u32 {v(vT0)}, {s(sT)}, {v(vI)}
    v_lshlrev_b32 {v(vT0)}, 7, {v(vT0)}
    v_bfe_u32 {v(vT1)}, {v(vI)}, 1, 3
    v_xor_b32 {v(vT1)}, {v(vT1)}, {v(vHI)}
    v_bfe_u32 {v(vT2)}, {v(vL)}, 2, 2
    v_lshl_add_u32 {v(vT3)}, {v(vHI)}, 3, {v(vT2)}
    v_lshlrev_b32 {v(vT3)}, 7, {v(vT3)}
    v_lshrrev_b32 {v(vT2)}, 1, {v(vT2)}
    v_lshl_add_u32 {v(vT3)}, {v(vT2)}, 6, {v(vT3)}
    v_bfe_u32 {v(vT2)}, {v(vL)}, 4, 1
    v_lshl_add_u32 {v(vT3)}, {v(vT2)}, 5, {v(vT3)}
    v_and_b32 {v(vT2)}, 3, {v(vL)}
    v_lshl_add_u32 {v(vT3)}, {v(vT2)}, 3, {v(vT3)}
    s_lshl_b32 {s(sT)}, {s(sFH)}, 13
    s_add_u32 {s(sT)}, {s(sT)}, 16384
    v_add_u32 {v(vT3)}, {s(sT)}, {v(vT3)}
    """)
    for k in range(4):
        a(f"""
        s_add_u32 {s(sT)}, {s(sTQ)}, {k}
        s_and_b32 {s(sT)}, {s(sT)}, 3
        s_lshl_b32 {s(sT2)}, {s(sT)}, 1
        v_xor_b32 {v(vT2)}, {s(sT2)}, {v(vT1)}
        v_lshl_add_u32 {v(XA(0,k))}, {v(vT2)}, 4, {v(vT0)}
        s_lshl_b32 {s(sT2)}, {s(sT)}, 11
        v_add_u32 {v(WA(0,k,0))}, {s(sT2)}, {v(vT3)}
        v_xor_b32 {v(WA(0,k,1))}, 64, {v(WA(0,k,0))}
        """)
        for st in (1, 2):
            a(f"v_add_u32 {v(XA(st,k))}, {65536*st}, {v(XA(0,k))}")
            for ft in (0, 1): a(f"v_add_u32 {v(WA(st,k,ft))}, {65536*st}, {v(WA(0,k,ft))}")
    a(f"""
    s_mov_b32 {s(sONE)}, 0x{ONES:x}
    v_mov_b32 {v(vSUM)}, 0
    v_mov_b32 {v(vSQ)}, 0
    v_mov_b32 {v(vCS)}, 0
    v_mov_b32 {v(vCS+1)}, 0
    """)
    def reads(n):
        c, k = divmod(n, 4); sl = c % 5; st = sl >> 1; o = (sl & 1)*32768; p = n & 1
        a(f"ds_read_b128 {v(XF(p),4)}, {v(XA(st,k))} offset:{o}")
        for ft in (0, 1):
            a(f"ds_read_b64_tr_b16 {v(WF(p,ft),2)}, {v(WA(st,k,ft))} offset:{o}")
            a(f"ds_read_b64_tr_b16 {v(WF(p,ft)+2,2)}, {v(WA(st,k,ft))} offset:{o+512}")
    def compute(n):
        p = n & 1
        dots = []
        for j in range(4):
            dots.append(f"v_dot2_f32_bf16 {v(vSUM)}, {v(XF(p)+j)}, {s(sONE)}, {v(vSUM)}")
            dots.append(f"v_dot2_f32_bf16 {v(vSQ)}, {v(XF(p)+j)}, {v(XF(p)+j)}, {v(vSQ)}")
        if n % 4 == 0:
            for j in range(4):
                for ft in (0, 1): dots.append(f"v_dot2_f32_bf16 {v(vCS+ft)}, {v(WF(p,ft)+j)}, {s(sONE)}, {v(vCS+ft)}")
        h = len(dots)//2
        for ft in (0, 1):
            a(f"v_mfma_f32_32x32x16_bf16 {v(ACC(ft),16)}, {v(WF(p,ft),4)}, {v(XF(p),4)}, {'0' if n == 0 else v(ACC(ft),16)}")
            for d in dots[ft*h:(ft+1)*h]: a(d)
    vm = [16, 12, 12, 12, 12, 8, 4, 0]
    a(f"s_waitcnt vmcnt({vm[0]})")
    a("s_barrier")
    reads(0)
    for n in range(32):
        c, k = divmod(n, 4)
        if k < 3:
            reads(n+1)
            a("s_waitcnt lgkmcnt(5)")
        else:
            a("s_waitcnt lgkmcnt(0)")
            if c < 7:
                a(f"s_waitcnt vmcnt({vm[c+1]})")
                a("s_barrier")
                reads(n+1)
                if c+1 <= 3: dma(c+5)
                if c+1 == 5:
                    a(f"""
                    v_lshlrev_b32 {v(vT0)}, 4, {v(vL)}
                    v_add_u32 {v(vT0)}, 0x20000, {v(vT0)}
                    v_mov_b32 {v(PK)}, 0
                    v_mov_b32 {v(PK+1)}, 0
                    v_mov_b32 {v(PK+2)}, 0
                    v_mov_b32 {v(PK+3)}, 0
                    ds_write_b128 {v(vT0)}, {v(PK,4)}
                    """)
        compute(n)
        if k == 3 and c+1 == 5: a("s_waitcnt lgkmcnt(0)")
    a(f"""
    s_lshl_b32 {s(sT)}, {s(sFH)}, 8
    s_add_u32 {s(sT)}, {s(sT)}, 0x20000
    v_lshl_add_u32 {v(vT0)}, {v(vI)}, 2, {s(sT)}
    ds_add_f32 {v(vT0)}, {v(vCS)}
    ds_add_f32 {v(vT0)}, {v(vCS+1)} offset:128
    v_lshl_add_u32 {v(vT0)}, {v(vHI)}, 4, {s(sT)}
    """)
    a(f"""
    v_and_b32 {v(vT1)}, 7, {v(vL)}
    v_lshlrev_b32 {v(vT1)}, 5, {v(vT1)}
    v_add_u32 {v(vT1)}, 0x20200, {v(vT1)}
    """)
    for j in range(4):
        a(f"v_lshlrev_b32 {v(TMP+2*j)}, 16, {v(W3V+j)}")
        a(f"v_and_b32 {v(TMP+2*j+1)}, 0xffff0000, {v(W3V+j)}")
    for j in range(8): a(f"ds_add_f32 {v(vT1)}, {v(TMP+j)} offset:{4*j}")
    halves_sum(a, vSUM, vTA)
    halves_sum(a, vSQ, vTB)
    a(f"""
    s_waitcnt lgkmcnt(0)
    s_barrier
    """)
    for ft in (0, 1):
        for q in range(4): a(f"ds_read_b128 {v(CSV+16*ft+4*q,4)}, {v(vT0)} offset:{128*ft+32*q}")
    a(f"""
    v_mul_f32 {v(vMEAN)}, {fl(1/512)}, {v(vSUM)}
    v_mul_f32 {v(vTA)}, {v(vMEAN)}, {v(vMEAN)}
    v_mov_b32 {v(vTB)}, {fl(1/512)}
    v_fma_f32 {v(vTA)}, {v(vSQ)}, {v(vTB)}, -{v(vTA)}
    v_max_f32 {v(vTA)}, 0, {v(vTA)}
    v_add_f32 {v(vTB)}, {fl(EPS)}, {v(vTA)}
    v_rsq_f32 {v(vR1)}, {v(vTB)}
    s_cmp_eq_u32 {s(sTY)}, 0
    s_cselect_b32 {s(sSC)}, {fl(0.25*LOG2E)}, 1.0
    v_mul_f32 {v(vR)}, {s(sSC)}, {v(vR1)}
    s_cmp_lg_u32 {s(sTY)}, 3
    s_cbranch_scc1 K1_NOR2
    v_mul_f32 {v(vTB)}, {v(vR1)}, {v(vR1)}
    v_fmaak_f32 {v(vTB)}, {v(vTB)}, {v(vTA)}, {fl(EPS)}
    v_rsq_f32 {v(vTB)}, {v(vTB)}
    v_mov_b32 {v(vNC1)}, {fl(-GC1)}
    v_mul_f32 {v(vR)}, {v(vR1)}, {v(vTB)}
    """)
    a.label("K1_NOR2")
    a(f"""
    s_lshl_b32 {s(sT2)}, {s(sRB)}, 2
    s_add_u32 {s(sT2)}, {s(sT2)}, {s(sTQ)}
    s_cmp_lg_u32 {s(sHB)}, 0
    s_cbranch_scc1 K1_NOST
    s_lshl_b32 {s(sT)}, {s(sT2)}, 8
    s_add_u32 {s(sT)}, {s(sT)}, 0x{ST1:x}
    v_lshlrev_b32 {v(vTA)}, 3, {v(vI)}
    v_mov_b32 {v(PK)}, {v(vMEAN)}
    v_mov_b32 {v(PK+1)}, {v(vR1)}
    buffer_store_dwordx2 {v(PK,2)}, {v(vTA)}, {s(sWS,4)}, {s(sT)} offen
    """)
    a.label("K1_NOST")
    a(f"v_sub_f32 {v(vMEAN)}, 0, {v(vMEAN)}")
    a("s_waitcnt lgkmcnt(0)")
    for j in range(32): a(f"v_fmac_f32 {v(ACC(0)+j)}, {v(CSV+j)}, {v(vMEAN)}")
    for j in range(32): a(f"v_mul_f32 {v(ACC(0)+j)}, {v(ACC(0)+j)}, {v(vR)}")
    a(f"""
    s_cmp_lg_u32 {s(sTY)}, 3
    s_cbranch_scc1 K1_NOGELU
    """)
    for g in range(4): gelu(a, [ACC(0)+8*g+j for j in range(8)], [TMP+j for j in range(8)], vNC1)
    a.label("K1_NOGELU")
    for j in range(16): a(f"v_cvt_pk_bf16_f32 {v(PK+j)}, {v(ACC(0)+2*j)}, {v(ACC(0)+2*j+1)}")
    a(f"""
    s_and_b32 {s(sT)}, {s(sHB)}, 7
    s_cmp_eq_u32 {s(sTY)}, 0
    s_cbranch_scc1 K1_Q
    s_cmp_eq_u32 {s(sTY)}, 3
    s_cbranch_scc1 K1_H
    s_mov_b32 {s(sBS)}, 0x20000
    s_lshl_b32 {s(sBO)}, {s(sT)}, 19
    s_lshl_b32 {s(sT)}, {s(sT2)}, 11
    s_add_u32 {s(sBO)}, {s(sBO)}, {s(sT)}
    s_add_u32 {s(sBO)}, {s(sBO)}, 0x{KVF:x}
    s_cmp_eq_u32 {s(sTY)}, 2
    s_cbranch_scc1 K1_V
    v_and_b32 {v(vOFF)}, 0x33, {v(vL)}
    v_bfe_u32 {v(vTA)}, {v(vL)}, 2, 1
    v_lshl_add_u32 {v(vOFF)}, {v(vTA)}, 3, {v(vOFF)}
    v_bfe_u32 {v(vTA)}, {v(vL)}, 3, 1
    v_lshl_add_u32 {v(vOFF)}, {v(vTA)}, 2, {v(vOFF)}
    v_lshlrev_b32 {v(vOFF)}, 4, {v(vOFF)}
    s_branch K1_STORE
    """)
    a.label("K1_V")
    a(f"""
    s_add_u32 {s(sBO)}, {s(sBO)}, 1024
    s_lshl_b32 {s(sT)}, {s(sW_)}, 12
    s_add_u32 {s(sT)}, {s(sT)}, 0x18000
    v_lshlrev_b32 {v(vTA)}, 5, {v(vI)}
    v_lshl_add_u32 {v(vTA)}, {v(vHI)}, 4, {v(vTA)}
    v_add_u32 {v(vTA)}, {s(sT)}, {v(vTA)}
    """)
    for b in range(4): a(f"ds_write_b128 {v(vTA)}, {v(PK+4*b,4)} offset:{1024*b}")
    a(f"""
    v_bfe_u32 {v(vTB)}, {v(vL)}, 4, 1
    v_lshlrev_b32 {v(vOFF)}, 9, {v(vTB)}
    v_lshl_add_u32 {v(vTA)}, {v(vHI)}, 7, {v(vOFF)}
    v_and_b32 {v(vTB)}, 15, {v(vL)}
    v_lshl_add_u32 {v(vTA)}, {v(vTB)}, 3, {v(vTA)}
    v_add_u32 {v(vTA)}, {s(sT)}, {v(vTA)}
    v_lshl_add_u32 {v(vOFF)}, {v(vHI)}, 8, {v(vOFF)}
    v_lshl_add_u32 {v(vOFF)}, {v(vTB)}, 4, {v(vOFF)}
    s_waitcnt lgkmcnt(0)
    """)
    for b in range(4):
        a(f"ds_read_b64_tr_b16 {v(PK+4*b,2)}, {v(vTA)} offset:{1024*b}")
        a(f"ds_read_b64_tr_b16 {v(PK+4*b+2,2)}, {v(vTA)} offset:{1024*b+256}")
    a("s_waitcnt lgkmcnt(0)")
    a("s_branch K1_STORE")
    a.label("K1_Q")
    a(f"""
    s_mov_b32 {s(sBS)}, 0x10000
    s_lshl_b32 {s(sBO)}, {s(sT)}, 18
    s_lshl_b32 {s(sT)}, {s(sT2)}, 10
    s_add_u32 {s(sBO)}, {s(sBO)}, {s(sT)}
    v_lshlrev_b32 {v(vOFF)}, 4, {v(vL)}
    s_branch K1_STORE
    """)
    a.label("K1_H")
    a(f"""
    s_mov_b32 {s(sBS)}, 0x10000
    s_lshl_b32 {s(sBO)}, {s(sT)}, 18
    s_lshl_b32 {s(sT)}, {s(sT2)}, 9
    s_add_u32 {s(sBO)}, {s(sBO)}, {s(sT)}
    s_add_u32 {s(sBO)}, {s(sBO)}, 0x{HF:x}
    v_lshlrev_b32 {v(vOFF)}, 4, {v(vI)}
    v_lshl_add_u32 {v(vOFF)}, {v(vHI)}, 15, {v(vOFF)}
    """)
    a.label("K1_STORE")
    for b in range(4):
        a(f"buffer_store_dwordx4 {v(PK+4*b,4)}, {v(vOFF)}, {s(sWS,4)}, {s(sBO)} offen")
        if b < 3: a(f"s_add_u32 {s(sBO)}, {s(sBO)}, {s(sBS)}")
    a(f"""
    s_cmp_lg_u32 {s(sW_)}, 1
    s_cbranch_scc1 K1_NOCS3
    s_cmp_ge_u32 s2, 176
    s_cbranch_scc1 K1_END
    v_lshlrev_b32 {v(vT0)}, 2, {v(vL)}
    v_add_u32 {v(vT1)}, 0x20200, {v(vT0)}
    ds_read_b32 {v(TMP)}, {v(vT1)}
    s_mul_i32 {s(sT)}, {s(sKP)}, 6144
    s_lshl_b32 {s(sT2)}, {s(sC3)}, 8
    s_add_u32 {s(sT)}, {s(sT)}, {s(sT2)}
    s_add_u32 {s(sT)}, {s(sT)}, 0x{CS3P:x}
    s_waitcnt lgkmcnt(0)
    buffer_store_dword {v(TMP)}, {v(vT0)}, {s(sWS,4)}, {s(sT)} offen
    """)
    a.label("K1_NOCS3")
    a(f"""
    s_or_b32 {s(sT)}, s2, {s(sW_)}
    s_cmp_lg_u32 {s(sT)}, 0
    s_cbranch_scc1 K1_END
    v_mov_b32 {v(TMP)}, 0
    v_mov_b32 {v(TMP+1)}, 0
    v_mov_b32 {v(TMP+2)}, 0
    v_mov_b32 {v(TMP+3)}, 0
    v_lshlrev_b32 {v(vT0)}, 4, {v(vL)}
    s_mov_b32 {s(sT)}, 0x{FLG:x}
    """)
    for j in range(4): a(f"buffer_store_dwordx4 {v(TMP,4)}, {v(vT0)}, {s(sWS,4)}, {s(sT)} offen offset:{j*1024}")
    a.label("K1_END")
    a("s_endpgm")
    lines, added = a.done()
    return kernel_text("k1_proj_kernel", lines, 188)
```

```python
from common import *

TB = 2064
PROG_A = 16*TB
PROG_B = PROG_A + 1024
CNT_B = PROG_B + 1024
CS3L = CNT_B + 64
BR = 36*1024
K2_LDS = BR + 96*1024
SPIN = 400000

def attention(a):
    sKV, sQO = 8, 12
    sW, sHD, sQB, sT, sT2, sKO, sM, sNEED, sIT, sEX = 28, 29, 30, 31, 32, 33, 34, 35, 36, 38
    vL, vIDX, vKA, vV0, vV1, vPW, vPR, vPROG, vC, vT0, vT1, vOO = 1, 2, 3, 4, 5, 6, 7, 8, 9, 10, 11, 12
    Sa, Sb, Oa, Ob, Ma, Mb, Qa, Qb = 16, 32, 48, 64, 80, 96, 112, 116
    K = [120, 124]; V = [128, 136]
    pWS = 26
    a(f"""
    s_and_b32 {s(sT)}, s2, 7
    s_lshl_b32 {s(sHD)}, {s(sT)}, 2
    s_bfe_u32 {s(sT)}, s2, 0x20003
    s_add_u32 {s(sHD)}, {s(sHD)}, {s(sT)}
    s_lshr_b32 {s(sQB)}, s2, 5
    v_lshlrev_b32 {v(vKA)}, 4, {v(vL)}
    s_lshl_b32 {s(sT)}, {s(sHD)}, 17
    s_add_u32 {s(sT)}, {s(sT)}, 0x{KVF:x}
    s_lshl_b32 {s(sKO)}, {s(sW)}, 11
    s_mul_i32 {s(sM)}, {s(sW)}, {TB}
    s_waitcnt lgkmcnt(0)
    s_add_u32 {s(sKV)}, {s(pWS)}, {s(sT)}
    s_addc_u32 {s(sKV+1)}, {s(pWS+1)}, 0
    s_mov_b32 {s(sKV+2)}, 0x20000
    s_mov_b32 {s(sKV+3)}, 0x20000
    """)
    def dma(slot):
        return [f"s_add_u32 m0, {s(sM)}, {slot*4*TB}",
                f"s_nop 0",
                f"buffer_load_dwordx4 {v(vKA)}, {s(sKV,4)}, {s(sKO)} offen lds",
                f"buffer_load_dwordx4 {v(vKA)}, {s(sKV,4)}, {s(sKO)} offen offset:1024 lds",
                f"s_add_u32 {s(sKO)}, {s(sKO)}, 8192"]
    for l in dma(0): a(l)
    srd(a, sQO, pWS, 0, WS_USED)
    a(f"""
    s_lshl_b32 {s(sT)}, {s(sHD)}, 16
    s_lshl_b32 {s(sT2)}, {s(sQB)}, 13
    s_add_u32 {s(sT)}, {s(sT)}, {s(sT2)}
    s_lshl_b32 {s(sT2)}, {s(sW)}, 11
    s_add_u32 {s(sT)}, {s(sT)}, {s(sT2)}
    buffer_load_dwordx4 {v(Qa,4)}, {v(vKA)}, {s(sQO,4)}, {s(sT)} offen
    buffer_load_dwordx4 {v(Qb,4)}, {v(vKA)}, {s(sQO,4)}, {s(sT)} offen offset:1024
    """)
    for l in dma(1) + dma(2): a(l)
    a(f"""
    v_mov_b32 {v(vIDX)}, 0xdddddddd
    v_and_b32 {v(vT0)}, 15, {v(vL)}
    v_lshrrev_b32 {v(vT1)}, 5, {v(vL)}
    v_lshlrev_b32 {v(vV0)}, 4, {v(vT0)}
    v_lshl_add_u32 {v(vV0)}, {v(vT1)}, 8, {v(vV0)}
    v_add_u32 {v(vV0)}, 1024, {v(vV0)}
    v_add_u32 {v(vV1)}, 512, {v(vV0)}
    v_mov_b32 {v(vC)}, 2048
    v_and_b32 {v(vPR)}, 16, {v(vL)}
    v_cmp_ne_u32 vcc, 0, {v(vPR)}
    v_and_b32 {v(vOO)}, 31, {v(vL)}
    v_lshlrev_b32 {v(vOO)}, 4, {v(vOO)}
    v_cndmask_b32 {v(vV0)}, {v(vV0)}, {v(vC)}, vcc
    v_cndmask_b32 {v(vV1)}, {v(vV1)}, {v(vC)}, vcc
    v_lshl_add_u32 {v(vOO)}, {v(vT1)}, 15, {v(vOO)}
    v_mul_u32_u24 {v(vT0)}, {TB}, {v(vT0)}
    v_mov_b32 {v(V[0])}, 0x{ONES:x}
    v_mov_b32 {v(V[0]+1)}, 0x{ONES:x}
    v_mov_b32 {v(V[0]+2)}, 0x{ONES:x}
    v_mov_b32 {v(V[0]+3)}, 0x{ONES:x}
    ds_write_b128 {v(vT0)}, {v(V[0],4)} offset:2048
    s_lshl_b32 {s(sT)}, {s(sW)}, 8
    v_lshl_add_u32 {v(vPW)}, {v(vL)}, 2, {s(sT)}
    v_and_b32 {v(vPR)}, 3, {v(vL)}
    v_lshlrev_b32 {v(vPR)}, 8, {v(vPR)}
    v_lshl_add_u32 {v(vPR)}, {v(vL)}, 2, {v(vPR)}
    v_mov_b32 {v(vPROG)}, 1
    ds_write_b32 {v(vPW)}, {v(vPROG)} offset:{PROG_A}
    """)
    for j in range(9):
        a(f"v_mov_b32 {v(Oa+j)}, 0"); a(f"v_mov_b32 {v(Ob+j)}, 0")
    for j in range(4): a(f"v_mov_b32 {v(V[1]+4+j)}, 0")
    a(f"""
    s_mov_b32 {s(sNEED)}, 2
    s_mov_b32 {s(sIT)}, 4
    s_waitcnt vmcnt(4) lgkmcnt(0)
    s_barrier
    ds_read_b128 {v(K[0],4)}, {v(vKA)}
    ds_read_b128 {v(V[0],4)}, {v(vV0)}
    ds_read_b128 {v(V[0]+4,4)}, {v(vV1)}
    s_waitcnt lgkmcnt(2)
    v_mfma_f32_32x32x16_bf16 {v(Sa,16)}, {v(K[0],4)}, {v(Qa,4)}, 0
    v_mfma_f32_32x32x16_bf16 {v(Sb,16)}, {v(K[0],4)}, {v(Qb,4)}, 0
    """)
    def rowmax(S, dst, first=True):
        if first: a(f"v_max3_f32 {v(dst)}, {v(S)}, {v(S+1)}, {v(S+2)}")
        else: a(f"v_max3_f32 {v(dst)}, {v(dst)}, {v(S)}, {v(S+1)}"); a(f"v_max_f32 {v(dst)}, {v(dst)}, {v(S+2)}")
        for j in range(3, 15, 2): a(f"v_max3_f32 {v(dst)}, {v(dst)}, {v(S+j)}, {v(S+j+1)}")
        a(f"v_max_f32 {v(dst)}, {v(dst)}, {v(S+15)}")
    def spread(M, t):
        a(f"v_mov_b32 {v(t)}, {v(M)}")
        a(f"v_permlane32_swap_b32 {v(M)}, {v(t)}")
        a(f"v_max_f32 {v(t)}, {v(M)}, {v(t)}")
        for j in range(16): a(f"v_sub_f32 {v(M+j)}, 0, {v(t)}")
    rowmax(Sa, Ma); spread(Ma, vT0)
    a(f"v_mfma_f32_32x32x16_bf16 {v(Sa,16)}, {v(K[0],4)}, {v(Qa,4)}, {v(Ma,16)}")
    rowmax(Sb, Mb); spread(Mb, vT1)
    for j in range(8): a(f"v_mov_b32 {v(Sb+8+j)}, 0")
    pv = lambda O, Vr, S: f"v_smfmac_f32_32x32x32_bf16 {v(O,16)}, {v(Vr,4)}, {v(S,8)}, {v(vIDX)}"
    qk = lambda S, Kr, Q, M: f"v_mfma_f32_32x32x16_bf16 {v(S,16)}, {v(Kr,4)}, {v(Q,4)}, {v(M,16)}"
    a(".p2align 6")
    a.label("AT_LOOP")
    for t in range(16):
        p = t & 1; q = p ^ 1; j = t & 3; nx = ((t+1) % 16)*TB
        A = {2: [pv(Ob, V[q]+4, Sb+8), "s_waitcnt lgkmcnt(0)"], 6: [qk(Sb, K[p], Qb, Mb), f"ds_read_b128 {v(V[q],4)}, {v(vV0)} offset:{nx}"],
             11: [pv(Oa, V[p], Sa), f"ds_read_b128 {v(V[q]+4,4)}, {v(vV1)} offset:{nx}"]}
        B = {2: [pv(Oa, V[p]+4, Sa+8), "s_waitcnt lgkmcnt(2)"], 6: [qk(Sa, K[q], Qa, Ma)], 11: [pv(Ob, V[p], Sb)]}
        if j == 3:
            A[2] += [f"v_cmp_gt_u32 vcc, {s(sNEED)}, {v(vC)}", f"s_cbranch_vccnz AT_SPIN{t}", f"AT_BACK{t}:"]
            d = dma(((t >> 2) + 3) & 3)
            B[6] += [d[0], f"s_add_u32 {s(sNEED)}, {s(sNEED)}, 1", d[2]]
            B[11] += [d[3], d[4]]
        A[2] += [f"ds_read_b128 {v(K[q],4)}, {v(vKA)} offset:{nx}"]
        if j == 0:
            B[6] += [f"v_add_u32 {v(vPROG)}, 1, {v(vPROG)}"]
            B[11] += ["s_waitcnt vmcnt(2)", f"ds_write_b32 {v(vPW)}, {v(vPROG)} offset:{PROG_A}"]
        if j == 2:
            B[11] += [f"ds_read_b32 {v(vC)}, {v(vPR)} offset:{PROG_A}"]
        if t == 15:
            B[14] = [f"s_sub_u32 {s(sIT)}, {s(sIT)}, 1", f"s_cmp_lg_u32 {s(sIT)}, 0"]
        for S, ins in ((Sa, A), (Sb, B)):
            for i in range(16):
                for l in ins.get(i, []): a(l)
                a(f"v_exp_f32 {v(S+i)}, {v(S+i)}")
    a("s_cbranch_scc1 AT_LOOP")
    a("s_nop 0")
    a(pv(Ob, V[1]+4, Sb+8))
    a.label("AT_FIN")
    a("s_nop 7")
    for O, t in ((Oa, vT0), (Ob, vT1)):
        a(f"v_max3_f32 {v(t)}, abs({v(O)}), abs({v(O+1)}), {v(O+8)}")
        for j in range(2, 8, 2): a(f"v_max3_f32 {v(t)}, abs({v(O+j)}), abs({v(O+j+1)}), {v(t)}")
    a(f"""
    v_max_f32 {v(vT0)}, {v(vT0)}, {v(vT1)}
    v_cmp_nlt_f32 vcc, {v(vT0)}, {v(vBIG)}
    s_cmp_eq_u32 {s(sIT)}, 0
    s_cselect_b64 vcc, vcc, 0
    s_cbranch_vccnz AT_SLOW
    v_rcp_f32 {v(vT0)}, {v(Oa+8)}
    v_rcp_f32 {v(vT1)}, {v(Ob+8)}
    s_lshl_b32 {s(sT)}, {s(sHD)}, 16
    s_lshl_b32 {s(sT2)}, {s(sQB)}, 12
    s_add_u32 {s(sT)}, {s(sT)}, {s(sT2)}
    s_lshl_b32 {s(sT2)}, {s(sW)}, 10
    s_add_u32 {s(sT)}, {s(sT)}, {s(sT2)}
    s_add_u32 {s(sT)}, {s(sT)}, 0x{OF:x}
    """)
    for O, t, o in ((Oa, vT0, 0), (Ob, vT1, 512)):
        for j in range(8): a(f"v_mul_f32 {v(O+j)}, {v(O+j)}, {v(t)}")
        for j in range(4): a(f"v_cvt_pk_bf16_f32 {v(O+j)}, {v(O+2*j)}, {v(O+2*j+1)}")
        a(f"buffer_store_dwordx4 {v(O,4)}, {v(vOO)}, {s(sQO,4)}, {s(sT)} offen offset:{o}")
    a("s_endpgm")
    for t in (3, 7, 11, 15):
        a.label(f"AT_SPIN{t}")
        a(f"s_mov_b32 {s(sT)}, {SPIN}")
        a.label(f"AT_SPINL{t}")
        a(f"""
        ds_read_b32 {v(vC)}, {v(vPR)} offset:{PROG_A}
        s_sub_u32 {s(sT)}, {s(sT)}, 1
        s_cmp_eq_u32 {s(sT)}, 0
        s_cbranch_scc1 AT_BACK{t}
        s_waitcnt lgkmcnt(0)
        v_cmp_gt_u32 vcc, {s(sNEED)}, {v(vC)}
        s_cbranch_vccnz AT_SPINL{t}
        s_branch AT_BACK{t}
        """)
    a.label("AT_SLOW")
    a(f"""
    s_mov_b32 {s(sIT)}, 1
    s_mov_b32 {s(sKO)}, 0
    v_mov_b32 {v(Ma)}, 0xff800000
    v_mov_b32 {v(Mb)}, 0xff800000
    s_waitcnt vmcnt(0) lgkmcnt(0)
    """)
    a.label("AT_SLOW1")
    a(f"""
    buffer_load_dwordx4 {v(K[0],4)}, {v(vKA)}, {s(sKV,4)}, {s(sKO)} offen
    s_add_u32 {s(sKO)}, {s(sKO)}, 2048
    s_waitcnt vmcnt(0)
    v_mfma_f32_32x32x16_bf16 {v(Sa,16)}, {v(K[0],4)}, {v(Qa,4)}, 0
    v_mfma_f32_32x32x16_bf16 {v(Sb,16)}, {v(K[0],4)}, {v(Qb,4)}, 0
    """)
    rowmax(Sa, Ma, False); rowmax(Sb, Mb, False)
    a(f"""
    s_cmp_lt_u32 {s(sKO)}, 0x20000
    s_cbranch_scc1 AT_SLOW1
    """)
    spread(Ma, vT0); spread(Mb, vT1)
    for j in range(9):
        a(f"v_mov_b32 {v(Oa+j)}, 0"); a(f"v_mov_b32 {v(Ob+j)}, 0")
    for j in range(8): a(f"v_mov_b32 {v(V[0]+j)}, 0x{ONES:x}")
    a(f"""
    s_mov_b32 {s(sKO)}, 0
    s_mov_b32 {s(sEX)}, 0xffff
    s_mov_b32 {s(sEX+1)}, 0xffff
    """)
    a.label("AT_SLOW2")
    a(f"""
    buffer_load_dwordx4 {v(K[0],4)}, {v(vKA)}, {s(sKV,4)}, {s(sKO)} offen
    s_mov_b64 exec, {s(sEX,2)}
    buffer_load_dwordx4 {v(V[0],4)}, {v(vV0)}, {s(sKV,4)}, {s(sKO)} offen
    buffer_load_dwordx4 {v(V[0]+4,4)}, {v(vV1)}, {s(sKV,4)}, {s(sKO)} offen
    s_mov_b64 exec, -1
    s_add_u32 {s(sKO)}, {s(sKO)}, 2048
    s_waitcnt vmcnt(0)
    """)
    a(qk(Sa, K[0], Qa, Ma)); a(qk(Sb, K[0], Qb, Mb))
    for S in (Sa, Sb):
        for i in range(16): a(f"v_exp_f32 {v(S+i)}, {v(S+i)}")
    a(pv(Oa, V[0], Sa)); a(pv(Oa, V[0]+4, Sa+8)); a(pv(Ob, V[0], Sb)); a(pv(Ob, V[0]+4, Sb+8))
    a(f"""
    s_cmp_lt_u32 {s(sKO)}, 0x20000
    s_cbranch_scc1 AT_SLOW2
    s_nop 3
    s_branch AT_FIN
    """)
vBIG = 13

def chain(a, pfx="CH"):
    vm = VM(a)
    sH, sX, sW2, sW3, sW4, sWS, sG = 8, 12, 40, 44, 48, 52, 56
    pX, pW2, pW3, pW4, pWS = 16, 18, 20, 22, 26
    sW, sC, sTG, sM16, sT64, sJ, sT, sT2, sT3, sRG, sSO, sFL, sNB, sFT, sTH = 28, 29, 30, 31, 32, 33, 34, 35, 36, 37, 38, 39, 60, 61, 62
    vL, vI, vHI, vT0, vT1, vT2, vT3 = 1, 2, 3, 4, 5, 6, 7
    vWD, vPW, vPR, vPROG, vC, vDUMP, vTOK = 8, 9, 10, 11, 12, 14, 15
    vWA = [16, 17]; vRA = [18, 19, 20]; vH = [21, 22]; vXO, vSTO, vZ = 23, 24, 25
    v3D = [26, 27, 28]; v3A = [29, 30]; vNC1 = 31
    Y0 = 32; ACC = 32
    WF = lambda p, f: 96 + 12*p + 4*f
    BIG = 120
    XR, STv, C3 = 248, 252, 100
    a(f"""
    s_setprio 2
    s_sub_u32 {s(sC)}, {s(sW)}, 4
    s_and_b32 {s(sT)}, s2, 7
    s_lshl_b32 {s(sTG)}, {s(sT)}, 1
    s_bfe_u32 {s(sT)}, s2, 0x10003
    s_add_u32 {s(sTG)}, {s(sTG)}, {s(sT)}
    s_lshr_b32 {s(sM16)}, s2, 4
    s_and_b32 {s(sT)}, {s(sM16)}, 1
    s_lshl_b32 {s(sT64)}, {s(sTG)}, 1
    s_add_u32 {s(sT64)}, {s(sT64)}, {s(sT)}
    s_lshr_b32 {s(sJ)}, {s(sM16)}, 1
    s_and_b32 {s(sFT)}, {s(sC)}, 1
    s_lshr_b32 {s(sTH)}, {s(sC)}, 1
    s_mul_i32 {s(sRG)}, {s(sC)}, 24576
    s_add_u32 {s(sRG)}, {s(sRG)}, {BR}
    v_and_b32 {v(vI)}, 31, {v(vL)}
    v_lshrrev_b32 {v(vHI)}, 5, {v(vL)}
    v_lshrrev_b32 {v(vT0)}, 3, {v(vL)}
    v_bfe_u32 {v(vT1)}, {v(vL)}, 4, 1
    v_lshlrev_b32 {v(vT1)}, 2, {v(vT1)}
    v_and_b32 {v(vT2)}, 7, {v(vL)}
    v_xor_b32 {v(vT1)}, {v(vT1)}, {v(vT2)}
    v_lshlrev_b32 {v(vT1)}, 4, {v(vT1)}
    v_lshl_add_u32 {v(vWD)}, {v(vT0)}, 10, {v(vT1)}
    s_lshl_b32 {s(sT)}, {s(sJ)}, 7
    v_add_u32 {v(vWD)}, {s(sT)}, {v(vWD)}
    s_lshl_b32 {s(sSO)}, {s(sC)}, 17
    s_mov_b32 m0, {s(sRG)}
    s_waitcnt lgkmcnt(0)
    """)
    srd(a, sW2, pW2, 0, 0x80000)
    srd(a, sH, pWS, HF, 0x200000)
    a(f"""
    s_add_u32 {s(sT)}, {s(sTH)}, 1
    s_sub_u32 {s(sT2)}, 0, {s(sT)}
    s_cmp_eq_u32 {s(sFT)}, 0
    s_cselect_b32 {s(sT)}, {s(sT2)}, {s(sT)}
    s_lshl_b32 {s(sT2)}, {s(sT64)}, 6
    s_lshl_b32 {s(sT3)}, {s(sTH)}, 5
    s_add_u32 {s(sT3)}, {s(sT3)}, {s(sT2)}
    v_add_u32 {v(vTOK)}, {s(sT3)}, {v(vI)}
    v_mov_b32 {v(vT3)}, 0x40000000
    """)
    for b in (0, 1):
        a(f"""
        v_xor_b32 {v(vT0)}, {32*b}, {v(vTOK)}
        v_add_u32 {v(vT0)}, {s(sT)}, {v(vT0)}
        v_cmp_gt_u32 vcc, 0x800, {v(vT0)}
        v_lshlrev_b32 {v(vT0)}, 4, {v(vT0)}
        v_lshl_add_u32 {v(vT0)}, {v(vHI)}, 15, {v(vT0)}
        v_cndmask_b32 {v(vH[b])}, {v(vT3)}, {v(vT0)}, vcc
        """)
    a(f"s_lshl_b32 {s(sT2)}, {s(sC)}, 19")
    for st in range(8):
        for i in (0, 1):
            vm.op(f"buffer_load_dwordx4 {v(vWD)}, {s(sW2,4)}, {s(sSO)} offen lds", f"w{st}")
            a(f"s_add_u32 {s(sSO)}, {s(sSO)}, 8192")
            a(f"s_add_u32 m0, m0, 1024")
        for b in (0, 1):
            vm.op(f"buffer_load_dwordx4 {v(BIG+8*st+4*b,4)}, {v(vH[b])}, {s(sH,4)}, {s(sT2)} offen", f"h{st}")
        a(f"s_add_u32 {s(sT2)}, {s(sT2)}, 0x10000")
    srd(a, sX, pX, 0, 0x200000)
    srd(a, sWS, pWS, 0, WS_USED)
    a(f"""
    s_lshl_b32 {s(sT)}, {s(sJ)}, 7
    s_lshl_b32 {s(sT2)}, {s(sFT)}, 6
    s_add_u32 {s(sT)}, {s(sT)}, {s(sT2)}
    v_lshlrev_b32 {v(vXO)}, 10, {v(vTOK)}
    v_lshl_add_u32 {v(vXO)}, {v(vHI)}, 4, {v(vXO)}
    v_lshlrev_b32 {v(vSTO)}, 3, {v(vTOK)}
    s_mov_b32 {s(sT2)}, 0x{ST1:x}
    """)
    XA, XB = BIG+64, BIG+68
    vm.op(f"buffer_load_dwordx4 {v(XA,4)}, {v(vXO)}, {s(sX,4)}, {s(sT)} offen", "x")
    vm.op(f"buffer_load_dwordx4 {v(XB,4)}, {v(vXO)}, {s(sX,4)}, {s(sT)} offen offset:32", "x")
    vm.op(f"buffer_load_dwordx2 {v(STv,2)}, {v(vSTO)}, {s(sWS,4)}, {s(sT2)} offen", "x")
    a(f"""
    s_mul_i32 {s(sT)}, {s(sM16)}, 384
    s_mul_i32 {s(sT2)}, {s(sC)}, 12288
    s_add_u32 {s(sT)}, {s(sT)}, {s(sT2)}
    s_add_u32 {s(sT)}, {s(sT)}, 0x{CS3P:x}
    s_add_u32 {s(sT2)}, {s(sT)}, 6144
    v_lshlrev_b32 {v(vT0)}, 3, {v(vL)}
    """)
    vm.op(f"buffer_load_dwordx2 {v(XR,2)}, {v(vT0)}, {s(sWS,4)}, {s(sT)} offen", "c3")
    vm.op(f"buffer_load_dwordx2 {v(XR+2,2)}, {v(vT0)}, {s(sWS,4)}, {s(sT2)} offen", "c3")
    srd(a, sW3, pW3, 0, 512*2752)
    srd(a, sW4, pW4, 0, 1376*1024)
    srd(a, sG, pWS, GF, GF_SIZE)
    a(f"""
    v_bfe_u32 {v(vT0)}, {v(vL)}, 2, 2
    v_lshl_add_u32 {v(vT1)}, {v(vHI)}, 2, {v(vT0)}
    v_bfe_u32 {v(vT2)}, {v(vL)}, 4, 1
    v_lshlrev_b32 {v(vT2)}, 5, {v(vT2)}
    v_and_b32 {v(vT3)}, 3, {v(vL)}
    v_lshl_add_u32 {v(vT2)}, {v(vT3)}, 3, {v(vT2)}
    v_mul_u32_u24 {v(v3A[0])}, 192, {v(vT1)}
    v_add_u32 {v(v3A[0])}, {v(v3A[0])}, {v(vT2)}
    v_add_u32 {v(v3A[0])}, {BR}, {v(v3A[0])}
    v_add_u32 {v(v3A[1])}, 49152, {v(v3A[0])}
    v_lshrrev_b32 {v(vT0)}, 1, {v(vT0)}
    v_xor_b32 {v(vT0)}, {s(sFT)}, {v(vT0)}
    v_lshl_add_u32 {v(vT2)}, {v(vT0)}, 6, {v(vT2)}
    v_lshl_add_u32 {v(vT2)}, {v(vT1)}, 7, {v(vT2)}
    v_add_u32 {v(vWA[0])}, {s(sRG)}, {v(vT2)}
    v_xor_b32 {v(vWA[1])}, 64, {v(vWA[0])}
    v_lshlrev_b32 {v(vT0)}, 4, {v(vL)}
    v_add_u32 {v(vDUMP)}, {s(sRG)}, {v(vT0)}
    """)
    for u in (1, 2, 3):
        a(f"""
        s_xor_b32 {s(sT)}, {s(sC)}, {u}
        s_mul_i32 {s(sT)}, {s(sT)}, 24576
        s_add_u32 {s(sT)}, {s(sT)}, {BR + u*4096}
        v_add_u32 {v(vRA[u-1])}, {s(sT)}, {v(vT0)}
        """)
    for p in range(3):
        a(f"""
        v_add_u32 {v(vT0)}, {64*p}, {v(vL)}
        v_mul_u32_u24 {v(vT1)}, 0xaaab, {v(vT0)}
        v_lshrrev_b32 {v(vT1)}, 19, {v(vT1)}
        v_mul_u32_u24 {v(vT2)}, {2752-192}, {v(vT1)}
        v_lshl_add_u32 {v(v3D[p])}, {v(vT0)}, 4, {v(vT2)}
        """)
    a(f"""
    s_lshl_b32 {s(sT)}, {s(sC)}, 8
    v_lshl_add_u32 {v(vPW)}, {v(vL)}, 2, {s(sT)}
    v_and_b32 {v(vPR)}, 3, {v(vL)}
    v_lshlrev_b32 {v(vPR)}, 8, {v(vPR)}
    v_lshl_add_u32 {v(vPR)}, {v(vL)}, 2, {v(vPR)}
    v_mov_b32 {v(vPROG)}, 0
    v_mov_b32 {v(vZ)}, 0
    v_mov_b32 {v(vNC1)}, {fl(-GC1)}
    ds_write_b32 {v(vPW)}, {v(vPROG)} offset:{PROG_B}
    v_lshlrev_b32 {v(vT0)}, 2, {v(vL)}
    ds_write_b32 {v(vT0)}, {v(vZ)} offset:{CNT_B}
    ds_write_b32 {v(vT0)}, {v(vZ)} offset:{CNT_B+256}
    s_lshl_b32 {s(sFL)}, {s(sTG)}, 7
    s_add_u32 {s(sFL)}, {s(sFL)}, 0x{FLG:x}
    s_mov_b32 {s(sNB)}, 0
    s_waitcnt lgkmcnt(0)
    s_barrier
    """)
    nlab = [0]
    def arrive():
        a(f"""
        v_add_u32 {v(vPROG)}, 1, {v(vPROG)}
        s_add_u32 {s(sNB)}, {s(sNB)}, 1
        s_waitcnt lgkmcnt(0)
        ds_write_b32 {v(vPW)}, {v(vPROG)} offset:{PROG_B}
        """)
    def await_():
        n = nlab[0]; nlab[0] += 1
        a(f"s_mov_b32 {s(sT)}, {SPIN}")
        a.label(f"{pfx}_W{n}")
        a(f"""
        ds_read_b32 {v(vC)}, {v(vPR)} offset:{PROG_B}
        s_sub_u32 {s(sT)}, {s(sT)}, 1
        s_cmp_eq_u32 {s(sT)}, 0
        s_cbranch_scc1 {pfx}_X{n}
        s_waitcnt lgkmcnt(0)
        v_cmp_gt_u32 vcc, {s(sNB)}, {v(vC)}
        s_cbranch_vccnz {pfx}_W{n}
        """)
        a.label(f"{pfx}_X{n}")
        a("s_waitcnt lgkmcnt(0)")
    def signal(k):
        n = nlab[0]; nlab[0] += 1
        a(f"""
        s_mov_b64 exec, 1
        v_mov_b32 {v(vT0)}, 1
        ds_add_rtn_u32 {v(vT1)}, {v(vZ)}, {v(vT0)} offset:{CNT_B+4*k}
        s_add_u32 {s(sT2)}, {s(sFL)}, {2048*k}
        s_waitcnt lgkmcnt(0)
        v_cmp_ne_u32 vcc, 3, {v(vT1)}
        s_cbranch_vccnz {pfx}_S{n}
        buffer_atomic_add {v(vT0)}, {v(vZ)}, {s(sWS,4)}, {s(sT2)} offen sc1
        """)
        a.label(f"{pfx}_S{n}")
        a("s_mov_b64 exec, -1")
    def poll(k):
        n = nlab[0]; nlab[0] += 1
        a(f"s_mov_b32 {s(sT)}, {SPIN}")
        a(f"s_add_u32 {s(sT2)}, {s(sFL)}, {2048*k}")
        a.label(f"{pfx}_P{n}")
        a(f"""
        buffer_load_dword {v(vC)}, {v(vZ)}, {s(sWS,4)}, {s(sT2)} offen sc1
        s_sub_u32 {s(sT)}, {s(sT)}, 1
        s_cmp_eq_u32 {s(sT)}, 0
        s_cbranch_scc1 {pfx}_Q{n}
        s_waitcnt vmcnt(0)
        v_cmp_gt_u32 vcc, 16, {v(vC)}
        s_cbranch_vccz {pfx}_Q{n}
        s_sleep 1
        s_branch {pfx}_P{n}
        """)
        a.label(f"{pfx}_Q{n}")
        a("s_waitcnt vmcnt(0)")
        vm.q = []
    def treads(p, off):
        for f in (0, 1):
            a(f"ds_read_b64_tr_b16 {v(WF(p,f),2)}, {v(vWA[f])} offset:{off}")
            a(f"ds_read_b64_tr_b16 {v(WF(p,f)+2,2)}, {v(vWA[f])} offset:{off+1024}")
    def mm4(p, breg, first, keep0):
        for u in range(4):
            c = "0" if (first and not (keep0 and u == 0)) else v(ACC+16*u, 16)
            a(f"v_mfma_f32_32x32x16_bf16 {v(ACC+16*u,16)}, {v(WF(p,u&1),4)}, {v(breg+4*(u>>1),4)}, {c}")
    def reduce4():
        for u in (1, 2, 3):
            for q in range(4): a(f"ds_write_b128 {v(vDUMP)}, {v(ACC+16*u+4*q,4)} offset:{u*4096+q*1024}")
        arrive(); await_()
        for u in (1, 2, 3):
            for q in range(4): a(f"ds_read_b128 {v(ACC+16*u+4*q,4)}, {v(vRA[u-1])} offset:{q*1024}")
        for u in (1, 2, 3):
            a(f"s_waitcnt lgkmcnt({4*(3-u)})")
            for j in range(16): a(f"v_add_f32 {v(ACC+j)}, {v(ACC+j)}, {v(ACC+16*u+j)}")
    vm.wait("w0"); treads(0, 0)
    for st in range(8):
        if st < 7:
            vm.wait(f"w{st+1}", f"h{st}"); treads((st+1) & 1, (st+1)*2048); a("s_waitcnt lgkmcnt(4)")
        else:
            vm.wait("h7"); a("s_waitcnt lgkmcnt(0)")
        mm4(st & 1, BIG+8*st, st == 0, False)
    vm.wait("c3")
    a(f"""
    v_add_f32 {v(XR)}, {v(XR)}, {v(XR+2)}
    v_add_f32 {v(XR+1)}, {v(XR+1)}, {v(XR+3)}
    v_lshlrev_b32 {v(vT0)}, 3, {v(vL)}
    s_mov_b32 exec_hi, 0xffff
    ds_add_f32 {v(vT0)}, {v(XR)} offset:{CS3L}
    ds_add_f32 {v(vT0)}, {v(XR+1)} offset:{CS3L+4}
    s_mov_b32 exec_hi, -1
    v_permlane32_swap_b32 {v(XA)}, {v(XA+2)}
    v_permlane32_swap_b32 {v(XA+1)}, {v(XA+3)}
    v_permlane32_swap_b32 {v(XB)}, {v(XB+2)}
    v_permlane32_swap_b32 {v(XB+1)}, {v(XB+3)}
    v_mul_f32 {v(STv)}, {v(STv)}, {v(STv+1)}
    """)
    XF = BIG
    for j in range(8):
        a(f"v_lshlrev_b32 {v(XF+2*j)}, 16, {v(XA+j)}")
        a(f"v_and_b32 {v(XF+2*j+1)}, 0xffff0000, {v(XA+j)}")
    reduce4()
    arrive()
    for j in range(16): a(f"v_fma_f32 {v(XF+16+j)}, {v(XF+j)}, {v(STv+1)}, -{v(STv)}")
    for j in range(16): a(f"v_add_f32 {v(ACC+j)}, {v(ACC+j)}, {v(XF+16+j)}")
    for j in range(8): a(f"v_cvt_pk_bf16_f32 {v(XF+16+j)}, {v(ACC+2*j)}, {v(ACC+2*j+1)}")
    a(f"""
    v_lshlrev_b32 {v(vT3)}, 4, {v(vTOK)}
    v_lshl_add_u32 {v(vH[0])}, {v(vHI)}, 15, {v(vT3)}
    v_xor_b32 {v(vH[1])}, 512, {v(vH[0])}
    s_lshl_b32 {s(sT3)}, {s(sJ)}, 1
    s_add_u32 {s(sT3)}, {s(sT3)}, {s(sFT)}
    s_lshl_b32 {s(sT)}, {s(sT3)}, 17
    s_add_u32 {s(sT)}, {s(sT)}, 0x{X1F:x}
    s_add_u32 {s(sT2)}, {s(sT)}, 0x10000
    """)
    vm.op(f"buffer_store_dwordx4 {v(XF+16,4)}, {v(vH[0])}, {s(sWS,4)}, {s(sT)} offen sc1", "st")
    vm.op(f"buffer_store_dwordx4 {v(XF+20,4)}, {v(vH[0])}, {s(sWS,4)}, {s(sT2)} offen sc1", "st")
    a(f"v_add_f32 {v(XR)}, {v(ACC)}, {v(ACC+1)}")
    a(f"v_mul_f32 {v(XR+1)}, {v(ACC)}, {v(ACC)}")
    a(f"v_fmac_f32 {v(XR+1)}, {v(ACC+1)}, {v(ACC+1)}")
    for j in range(2, 16):
        a(f"v_add_f32 {v(XR)}, {v(XR)}, {v(ACC+j)}")
        a(f"v_fmac_f32 {v(XR+1)}, {v(ACC+j)}, {v(ACC+j)}")
    halves_sum(a, XR, vT0); halves_sum(a, XR+1, vT1)
    a(f"""
    s_lshl_b32 {s(sT)}, {s(sT3)}, 14
    s_add_u32 {s(sT)}, {s(sT)}, 0x{ST2:x}
    """)
    vm.op(f"buffer_store_dwordx2 {v(XR,2)}, {v(vSTO)}, {s(sWS,4)}, {s(sT)} offen sc1", "st")
    for j in range(16): a(f"v_add_f32 {v(Y0+j)}, {v(Y0+j)}, {v(XF+j)}")
    await_()
    a(f"""
    s_mul_i32 {s(sSO)}, {s(sC)}, {128*2752}
    s_mul_i32 {s(sT)}, {s(sM16)}, 192
    s_add_u32 {s(sSO)}, {s(sSO)}, {s(sT)}
    s_mov_b32 m0, {s(sRG)}
    """)
    for q in range(8):
        for p in range(3):
            vm.op(f"buffer_load_dwordx4 {v(v3D[p])}, {s(sW3,4)}, {s(sSO)} offen lds", "w3")
            a("s_add_u32 m0, m0, 1024")
            if p < 2: a("s_nop 0")
        a(f"s_add_u32 {s(sSO)}, {s(sSO)}, {16*2752}")
    vm.wait("st")
    signal(0)
    a("s_waitcnt vmcnt(0)")
    arrive()
    poll(0)
    a(f"""
    s_lshl_b32 {s(sT)}, {s(sTG)}, 7
    s_lshl_b32 {s(sT2)}, {s(sC)}, 5
    s_add_u32 {s(sT)}, {s(sT)}, {s(sT2)}
    v_add_u32 {v(vT0)}, {s(sT)}, {v(vI)}
    v_lshlrev_b32 {v(vXO)}, 4, {v(vT0)}
    v_lshl_add_u32 {v(vXO)}, {v(vHI)}, 15, {v(vXO)}
    v_lshlrev_b32 {v(vT0)}, 3, {v(vT0)}
    v_lshl_add_u32 {v(vT0)}, {v(vHI)}, 17, {v(vT0)}
    s_mov_b32 {s(sT)}, 0x{X1F:x}
    s_mov_b32 {s(sT2)}, 0x{ST2:x}
    """)
    A3 = 48; S2 = 96
    for kb in range(32):
        vm.op(f"buffer_load_dwordx4 {v(BIG+4*kb,4)}, {v(vXO)}, {s(sWS,4)}, {s(sT)} offen sc1", f"x{kb}")
        a(f"s_add_u32 {s(sT)}, {s(sT)}, 0x10000")
        if kb == 3:
            for t in range(8):
                vm.op(f"buffer_load_dwordx2 {v(S2+2*t,2)}, {v(vT0)}, {s(sWS,4)}, {s(sT2)} offen sc1", "s2")
                a(f"s_add_u32 {s(sT2)}, {s(sT2)}, 0x4000")
    await_()
    vm.wait("s2")
    for t in range(1, 8):
        a(f"v_add_f32 {v(S2)}, {v(S2)}, {v(S2+2*t)}")
        a(f"v_add_f32 {v(S2+1)}, {v(S2+1)}, {v(S2+2*t+1)}")
    a(f"v_mov_b32 {v(XR)}, {v(S2)}")
    a(f"v_mov_b32 {v(XR+1)}, {v(S2+1)}")
    def t3(kb):
        p = kb & 1; o = (kb & 15)*3072
        for f in range(3):
            a(f"ds_read_b64_tr_b16 {v(WF(p,f),2)}, {v(v3A[kb>>4])} offset:{o+64*f}")
            a(f"ds_read_b64_tr_b16 {v(WF(p,f)+2,2)}, {v(v3A[kb>>4])} offset:{o+64*f+1536}")
    t3(0)
    halves_sum(a, XR, vT0); halves_sum(a, XR+1, vT1)
    a(f"""
    v_mul_f32 {v(XR)}, {fl(-1/512)}, {v(XR)}
    v_mul_f32 {v(vT0)}, {v(XR)}, {v(XR)}
    v_mov_b32 {v(vT1)}, {fl(1/512)}
    v_fma_f32 {v(vT0)}, {v(XR+1)}, {v(vT1)}, -{v(vT0)}
    v_max_f32 {v(vT0)}, 0, {v(vT0)}
    v_add_f32 {v(vT0)}, {fl(EPS)}, {v(vT0)}
    v_rsq_f32 {v(XR+1)}, {v(vT0)}
    """)
    for kb in range(32):
        if kb < 31: t3(kb+1)
        vm.wait(f"x{kb}")
        a(f"s_waitcnt lgkmcnt({6 if kb < 31 else 0})")
        for f in range(3):
            a(f"v_mfma_f32_32x32x16_bf16 {v(A3+16*f,16)}, {v(WF(kb&1,f),4)}, {v(BIG+4*kb,4)}, {'0' if kb == 0 else v(A3+16*f,16)}")
    arrive()
    CSV = BIG; PK = BIG+48; TMP = BIG+72
    a(f"v_lshlrev_b32 {v(vT0)}, 4, {v(vHI)}")
    for f in range(3):
        for q in range(4): a(f"ds_read_b128 {v(CSV+16*f+4*q,4)}, {v(vT0)} offset:{CS3L+128*f+32*q}")
    a(f"""
    s_mul_i32 {s(sT3)}, {s(sM16)}, 0x60000
    s_waitcnt lgkmcnt(0)
    """)
    for g in range(6):
        xs = [A3+8*g+j for j in range(8)]
        for j, x in enumerate(xs): a(f"v_fmac_f32 {v(x)}, {v(CSV+8*g+j)}, {v(XR)}")
        for x in xs: a(f"v_mul_f32 {v(x)}, {v(x)}, {v(XR+1)}")
        gelu(a, xs, [TMP+j for j in range(8)], vNC1)
        for j in range(4): a(f"v_cvt_pk_bf16_f32 {v(PK+4*g+j)}, {v(xs[2*j])}, {v(xs[2*j+1])}")
        vm.op(f"buffer_store_dwordx4 {v(PK+4*g,4)}, {v(vXO)}, {s(sG,4)}, {s(sT3)} offen sc1", "st")
        a(f"s_add_u32 {s(sT3)}, {s(sT3)}, 0x10000")
    await_()
    a(f"""
    s_mul_i32 {s(sSO)}, {s(sC)}, {22*16384}
    s_mul_i32 {s(sT3)}, {s(sC)}, {22*65536}
    """)
    def w4dma(st):
        a(f"s_add_u32 m0, {s(sRG)}, {(st % 12)*2048}")
        for i in (0, 1):
            if i: a("s_add_u32 m0, m0, 1024")
            a("s_nop 0")
            vm.op(f"buffer_load_dwordx4 {v(vWD)}, {s(sW4,4)}, {s(sSO)} offen lds", f"w{st}")
            a(f"s_add_u32 {s(sSO)}, {s(sSO)}, 8192")
    def gload(st):
        for b in (0, 1):
            vm.op(f"buffer_load_dwordx4 {v(BIG+8*(st%16)+4*b,4)}, {v(vH[b])}, {s(sG,4)}, {s(sT3)} offen sc1", f"g{st}")
        a(f"s_add_u32 {s(sT3)}, {s(sT3)}, 0x10000")
    for st in range(12): w4dma(st)
    vm.wait("st")
    signal(1)
    poll(1)
    for st in range(16): gload(st)
    treads(0, 0)
    for st in range(22):
        if st < 21:
            vm.wait(f"w{st+1}", f"g{st}"); treads((st+1) & 1, ((st+1) % 12)*2048); a("s_waitcnt lgkmcnt(4)")
        else:
            vm.wait("g21"); a("s_waitcnt lgkmcnt(0)")
        mm4(st & 1, BIG+8*(st % 16), st == 0, True)
        if st+12 < 22: w4dma(st+12)
        if st+16 < 22: gload(st+16)
    reduce4()
    a(f"""
    s_lshl_b32 {s(sT)}, s2, 14
    s_lshl_b32 {s(sT2)}, {s(sC)}, 12
    s_add_u32 {s(sT)}, {s(sT)}, {s(sT2)}
    s_add_u32 {s(sT)}, {s(sT)}, 0x{YB:x}
    v_lshlrev_b32 {v(vT0)}, 4, {v(vL)}
    """)
    for q in range(4): a(f"buffer_store_dwordx4 {v(ACC+4*q,4)}, {v(vT0)}, {s(sWS,4)}, {s(sT)} offen offset:{q*1024}")
    a("s_endpgm")

def gen_k2():
    a = Asm()
    a(f"""
    s_cmp_ge_u32 s2, 256
    s_cbranch_scc1 K2_END
    s_load_dwordx2 s[26:27], s[0:1], {P_WS}
    s_load_dwordx2 s[16:17], s[0:1], {A_X}
    s_load_dwordx2 s[18:19], s[0:1], {B_W2}
    s_load_dwordx4 s[20:23], s[0:1], {B_W3}
    v_lshrrev_b32 v2, 6, v0
    v_and_b32 v1, 63, v0
    v_readfirstlane_b32 s28, v2
    v_mov_b32 {v(vBIG)}, {fl(2.0**126)}
    s_cmp_ge_u32 s28, 4
    s_cbranch_scc1 K2_CHAIN
    """)
    attention(a)
    a(".p2align 6")
    a.label("K2_CHAIN")
    chain(a)
    a.label("K2_END")
    a("s_endpgm")
    lines, added = a.done()
    return kernel_text("k2_mix_kernel", lines, 256)
```

```python
from common import *

def gen_k3():
    a = Asm(); vm = VM(a)
    sWO, sWS, sOUT = 8, 12, 16
    pWO, pOUT, pWS = 20, 22, 26
    sC, sTG, sM16, sT64, sJ, sT, sT2, sT3, sRG, sSO, sFT, sTH = 28, 29, 30, 31, 32, 33, 34, 35, 36, 37, 38, 39
    vL, vI, vHI, vT0, vT1, vT2, vT3, vWD, vDUMP, vTOK = 1, 2, 3, 4, 5, 6, 7, 8, 9, 10
    vWA = [11, 12]; vRA = [13, 14, 15]; vH = [16, 17]
    ACC = 32; WF = lambda p, f: 96 + 8*p + 4*f; BIG = 112
    a(f"""
    s_cmp_ge_u32 s2, 256
    s_cbranch_scc1 K3_END
    s_load_dwordx2 {s(pWS,2)}, s[0:1], {P_WS}
    s_load_dwordx2 {s(pWO,2)}, s[0:1], {A_WO}
    s_load_dwordx2 {s(pOUT,2)}, s[0:1], {P_OUT}
    v_lshrrev_b32 {v(vT0)}, 6, v0
    v_and_b32 {v(vL)}, 63, v0
    v_readfirstlane_b32 {s(sC)}, {v(vT0)}
    s_and_b32 {s(sT)}, s2, 7
    s_lshl_b32 {s(sTG)}, {s(sT)}, 1
    s_bfe_u32 {s(sT)}, s2, 0x10003
    s_add_u32 {s(sTG)}, {s(sTG)}, {s(sT)}
    s_lshr_b32 {s(sM16)}, s2, 4
    s_and_b32 {s(sT)}, {s(sM16)}, 1
    s_lshl_b32 {s(sT64)}, {s(sTG)}, 1
    s_add_u32 {s(sT64)}, {s(sT64)}, {s(sT)}
    s_lshr_b32 {s(sJ)}, {s(sM16)}, 1
    s_and_b32 {s(sFT)}, {s(sC)}, 1
    s_lshr_b32 {s(sTH)}, {s(sC)}, 1
    s_lshl_b32 {s(sRG)}, {s(sC)}, 14
    v_and_b32 {v(vI)}, 31, {v(vL)}
    v_lshrrev_b32 {v(vHI)}, 5, {v(vL)}
    v_lshrrev_b32 {v(vT0)}, 3, {v(vL)}
    v_bfe_u32 {v(vT1)}, {v(vL)}, 4, 1
    v_lshlrev_b32 {v(vT1)}, 2, {v(vT1)}
    v_and_b32 {v(vT2)}, 7, {v(vL)}
    v_xor_b32 {v(vT1)}, {v(vT1)}, {v(vT2)}
    v_lshlrev_b32 {v(vT1)}, 4, {v(vT1)}
    v_lshl_add_u32 {v(vWD)}, {v(vT0)}, 10, {v(vT1)}
    s_lshl_b32 {s(sT)}, {s(sJ)}, 7
    v_add_u32 {v(vWD)}, {s(sT)}, {v(vWD)}
    s_lshl_b32 {s(sT2)}, {s(sT64)}, 6
    s_lshl_b32 {s(sT3)}, {s(sTH)}, 5
    s_add_u32 {s(sT3)}, {s(sT3)}, {s(sT2)}
    v_add_u32 {v(vTOK)}, {s(sT3)}, {v(vI)}
    v_lshlrev_b32 {v(vT3)}, 4, {v(vTOK)}
    v_lshl_add_u32 {v(vH[0])}, {v(vHI)}, 15, {v(vT3)}
    v_xor_b32 {v(vH[1])}, 512, {v(vH[0])}
    s_lshl_b32 {s(sSO)}, {s(sC)}, 17
    s_mov_b32 m0, {s(sRG)}
    s_lshl_b32 {s(sT2)}, {s(sC)}, 19
    s_add_u32 {s(sT2)}, {s(sT2)}, 0x{OF:x}
    s_lshl_b32 {s(sT)}, s2, 14
    s_lshl_b32 {s(sT3)}, {s(sC)}, 12
    s_add_u32 {s(sT)}, {s(sT)}, {s(sT3)}
    s_add_u32 {s(sT)}, {s(sT)}, 0x{YB:x}
    v_lshlrev_b32 {v(vT0)}, 4, {v(vL)}
    s_waitcnt lgkmcnt(0)
    """)
    srd(a, sWO, pWO, 0, 0x80000)
    srd(a, sWS, pWS, 0, WS_USED)
    for st in range(8):
        for i in (0, 1):
            vm.op(f"buffer_load_dwordx4 {v(vWD)}, {s(sWO,4)}, {s(sSO)} offen lds", f"w{st}")
            a(f"s_add_u32 {s(sSO)}, {s(sSO)}, 8192")
            a(f"s_add_u32 m0, m0, 1024")
        for b in (0, 1):
            vm.op(f"buffer_load_dwordx4 {v(BIG+8*st+4*b,4)}, {v(vH[b])}, {s(sWS,4)}, {s(sT2)} offen", f"h{st}")
        a(f"s_add_u32 {s(sT2)}, {s(sT2)}, 0x10000")
    Y = BIG+64
    for q in range(4): vm.op(f"buffer_load_dwordx4 {v(Y+4*q,4)}, {v(vT0)}, {s(sWS,4)}, {s(sT)} offen offset:{q*1024}", "y")
    srd(a, sOUT, pOUT, 0, 0x200000)
    a(f"""
    v_add_u32 {v(vDUMP)}, {s(sRG)}, {v(vT0)}
    v_bfe_u32 {v(vT1)}, {v(vL)}, 2, 2
    v_lshl_add_u32 {v(vT2)}, {v(vHI)}, 3, {v(vT1)}
    v_lshlrev_b32 {v(vT2)}, 7, {v(vT2)}
    v_lshrrev_b32 {v(vT1)}, 1, {v(vT1)}
    v_xor_b32 {v(vT1)}, {s(sFT)}, {v(vT1)}
    v_lshl_add_u32 {v(vT2)}, {v(vT1)}, 6, {v(vT2)}
    v_bfe_u32 {v(vT1)}, {v(vL)}, 4, 1
    v_lshl_add_u32 {v(vT2)}, {v(vT1)}, 5, {v(vT2)}
    v_and_b32 {v(vT1)}, 3, {v(vL)}
    v_lshl_add_u32 {v(vT2)}, {v(vT1)}, 3, {v(vT2)}
    v_add_u32 {v(vWA[0])}, {s(sRG)}, {v(vT2)}
    v_xor_b32 {v(vWA[1])}, 64, {v(vWA[0])}
    """)
    for u in (1, 2, 3):
        a(f"""
        s_xor_b32 {s(sT)}, {s(sC)}, {u}
        s_lshl_b32 {s(sT)}, {s(sT)}, 14
        s_add_u32 {s(sT)}, {s(sT)}, {u*4096}
        v_add_u32 {v(vRA[u-1])}, {s(sT)}, {v(vT0)}
        """)
    def treads(p, off):
        for f in (0, 1):
            a(f"ds_read_b64_tr_b16 {v(WF(p,f),2)}, {v(vWA[f])} offset:{off}")
            a(f"ds_read_b64_tr_b16 {v(WF(p,f)+2,2)}, {v(vWA[f])} offset:{off+512}")
    vm.wait("w0"); treads(0, 0)
    for st in range(8):
        if st < 7:
            vm.wait(f"w{st+1}", f"h{st}"); treads((st+1) & 1, (st+1)*2048); a("s_waitcnt lgkmcnt(4)")
        else:
            vm.wait("h7"); a("s_waitcnt lgkmcnt(0)")
        for u in (1, 2, 3, 0):
            a(f"v_mfma_f32_32x32x16_bf16 {v(ACC+16*u,16)}, {v(WF(st&1,u&1),4)}, {v(BIG+8*st+4*(u>>1),4)}, {'0' if st == 0 else v(ACC+16*u,16)}")
    a(f"""
    s_lshl_b32 {s(sT)}, {s(sJ)}, 7
    s_lshl_b32 {s(sT2)}, {s(sFT)}, 6
    s_add_u32 {s(sT)}, {s(sT)}, {s(sT2)}
    v_lshlrev_b32 {v(vT3)}, 10, {v(vTOK)}
    v_lshl_add_u32 {v(vT3)}, {v(vHI)}, 4, {v(vT3)}
    """)
    for u in (1, 2, 3):
        for q in range(4): a(f"ds_write_b128 {v(vDUMP)}, {v(ACC+16*u+4*q,4)} offset:{u*4096+q*1024}")
    vm.wait("y")
    for j in range(16): a(f"v_add_f32 {v(ACC+j)}, {v(ACC+j)}, {v(Y+j)}")
    a("s_waitcnt lgkmcnt(0)")
    a("s_barrier")
    for u in (1, 2, 3):
        for q in range(4): a(f"ds_read_b128 {v(ACC+16*u+4*q,4)}, {v(vRA[u-1])} offset:{q*1024}")
    for u in (1, 2, 3):
        a(f"s_waitcnt lgkmcnt({4*(3-u)})")
        for j in range(16): a(f"v_add_f32 {v(ACC+j)}, {v(ACC+j)}, {v(ACC+16*u+j)}")
    for j in range(8): a(f"v_cvt_pk_bf16_f32 {v(Y+j)}, {v(ACC+2*j)}, {v(ACC+2*j+1)}")
    for b in (0, 1):
        a(f"v_permlane32_swap_b32 {v(Y+4*b)}, {v(Y+4*b+2)}")
        a(f"v_permlane32_swap_b32 {v(Y+4*b+1)}, {v(Y+4*b+3)}")
    for b in (0, 1): a(f"buffer_store_dwordx4 {v(Y+4*b,4)}, {v(vT3)}, {s(sOUT,4)}, {s(sT)} offen offset:{32*b}")
    a.label("K3_END")
    a("s_endpgm")
    lines, added = a.done()
    return kernel_text("k3_out_kernel", lines, 192)
```

```python
import sys
sys.path.insert(0, "gen")
from common import *
import importlib
HEADER = open("parallel_sum__mha_block__mixer_s_mlp__prompt.s.ref").read().split("; Override launch")[0]
def assemble(kernels, path):
    out = [HEADER.rstrip()]
    for name, grid, block, lds, _ in kernels:
        out.append(f"; @launch kernel={name} grid=({grid},1,1) block=({block},1,1) lds={lds}")
    out += ['.amdgcn_target "amdgcn-amd-amdhsa--gfx950"', ".text"]
    seen = []
    for name, *_, (code, desc) in kernels:
        if name in seen: continue
        seen.append(name); out += code
    out.append('.section .rodata,"a"')
    seen = []
    for name, *_, (code, desc) in kernels:
        if name in seen: continue
        seen.append(name); out += desc
    open(path, "w").write("\n".join(out) + "\n")
if __name__ == "__main__":
    import k1, k2, k3
    ks = [("k1_proj_kernel", 256, 512, 163840, k1.gen_k1()),
          ("k2_mix_kernel", 256, 512, k2.K2_LDS, k2.gen_k2())]
    assemble(ks, sys.argv[1] if len(sys.argv) > 1 else "parallel_sum__mha_block__mixer_s_mlp__prompt.s")
```

```python
import struct
from asmlib import *

QF, KVF, HF, X1F, OF, GF = 0x000000, 0x200000, 0x600000, 0x800000, 0xA00000, 0xC00000
GF_SIZE = 64*96*1024
YB, ST1, ST2, FLG = 0x1200000, 0x1600000, 0x1610000, 0x1660000
CS3P = 0x1668000
W2F, WOF, W3F, W4F = 0x1700000, 0x1780000, 0x1800000, 0x1980000
WS_USED = 0x1B00000
A_X, A_WQKV, A_WO, B_W1, B_W2, B_W3, B_W4, P_OUT, P_DBG, P_WS = 0, 8, 16, 32, 40, 48, 56, 64, 72, 80

def f2u(x): return struct.unpack("<I", struct.pack("<f", x))[0]
def fl(x): return f"0x{f2u(x):08x}"
LOG2E = 1.4426950408889634
GC1 = 2*0.7978845608028654*LOG2E
GC2 = GC1*0.044715
EPS = 1e-5
ONES = 0x3f803f80

def srd(a, d, base, off, size):
    if off:
        a(f"s_add_u32 {s(d)}, {s(base)}, 0x{off:x}")
        a(f"s_addc_u32 {s(d+1)}, {s(base+1)}, 0")
    else:
        a(f"s_mov_b32 {s(d)}, {s(base)}")
        a(f"s_mov_b32 {s(d+1)}, {s(base+1)}")
    a(f"s_mov_b32 {s(d+2)}, 0x{size:x}")
    a(f"s_mov_b32 {s(d+3)}, 0x20000")

def gelu(a, xs, tmp, vnc1):
    for x, t in zip(xs, tmp): a(f"v_mul_f32 {v(t)}, {v(x)}, {v(x)}")
    for x, t in zip(xs, tmp): a(f"v_fmamk_f32 {v(t)}, {v(t)}, {fl(-GC2)}, {v(vnc1)}")
    for x, t in zip(xs, tmp): a(f"v_mul_f32 {v(t)}, {v(t)}, {v(x)}")
    for x, t in zip(xs, tmp): a(f"v_exp_f32 {v(t)}, {v(t)}")
    for x, t in zip(xs, tmp): a(f"v_add_f32 {v(t)}, 1.0, {v(t)}")
    for x, t in zip(xs, tmp): a(f"v_rcp_f32 {v(t)}, {v(t)}")
    for x, t in zip(xs, tmp): a(f"v_mul_f32 {v(x)}, {v(x)}, {v(t)}")

def gelu_pk(a, xs, tmp, vC1, vC2, vONE):
    P = range(0, len(xs), 2)
    for j in P: a(f"v_pk_mul_f32 {v(tmp[j],2)}, {v(xs[j],2)}, {v(xs[j],2)}")
    for j in P: a(f"v_pk_fma_f32 {v(tmp[j],2)}, {v(tmp[j],2)}, {v(vC2,2)}, {v(vC1,2)}")
    for j in P: a(f"v_pk_mul_f32 {v(tmp[j],2)}, {v(tmp[j],2)}, {v(xs[j],2)}")
    for t in tmp: a(f"v_exp_f32 {v(t)}, {v(t)}")
    for j in P: a(f"v_pk_add_f32 {v(tmp[j],2)}, {v(tmp[j],2)}, {v(vONE,2)}")
    for t in tmp: a(f"v_rcp_f32 {v(t)}, {v(t)}")
    for j in P: a(f"v_pk_mul_f32 {v(xs[j],2)}, {v(xs[j],2)}, {v(tmp[j],2)}")

def halves_sum(a, x, t):
    a(f"v_mov_b32 {v(t)}, {v(x)}")
    a(f"v_permlane32_swap_b32 {v(x)}, {v(t)}")
    a(f"v_add_f32 {v(x)}, {v(x)}, {v(t)}")

def kernel_text(name, lines, vgpr, sgpr=100):
    head = [f".globl {name}", ".p2align 8", f".type {name},@function", f"{name}:"]
    desc = [".p2align 6", f".amdhsa_kernel {name}", f"  .amdhsa_next_free_vgpr {vgpr}", f"  .amdhsa_next_free_sgpr {sgpr}",
            f"  .amdhsa_accum_offset {(vgpr+3)//4*4}", "  .amdhsa_group_segment_fixed_size 0", "  .amdhsa_kernarg_size 88",
            "  .amdhsa_user_sgpr_count 2", "  .amdhsa_user_sgpr_kernarg_segment_ptr 1", "  .amdhsa_system_sgpr_workgroup_id_x 1",
            "  .amdhsa_float_denorm_mode_32 3", ".end_amdhsa_kernel"]
    return head + lines, desc


class VM:
    def __init__(self, a): self.a = a; self.q = []
    def op(self, text, tag=None):
        self.a(text); self.q.append(tag)
    def wait(self, *tags):
        last = max((i for i, t in enumerate(self.q) if t in tags), default=-1)
        if last < 0: return
        n = len(self.q) - 1 - last
        assert n <= 63
        self.a(f"s_waitcnt vmcnt({n})")
        self.q = self.q[last+1:]


import os
PROF = int(os.environ.get("PROF", "0"))
TSB = 0x2000000
def stamp(a, i):
    if PROF: a(f"{'s_memtime' if PROF == 2 else 's_memrealtime'} {s(64+2*i,2)}")
def stamp_init(a):
    if PROF:
        for i in range(64, 96, 2): a(f"s_mov_b64 {s(i,2)}, 0")
        a("s_getreg_b32 s94, hwreg(HW_REG_HW_ID)")
        a("s_memtime s[96:97]")
def stamp_flush(a, kidx, sWave, pWS, nwaves=8):
    if not PROF: return
    a("s_memtime s[92:93]")
    a("s_waitcnt lgkmcnt(0)")
    a("s_sub_u32 s92, s92, s96")
    a("s_mov_b64 exec, -1")
    a("v_mov_b32 v1, 0")
    for i in range(16): a(f"v_writelane_b32 v1, {s(64+2*i)}, {i}")
    a(f"""
    s_add_u32 s64, {s(pWS)}, 0x{TSB + kidx*0x40000:x}
    s_addc_u32 s65, {s(pWS+1)}, 0
    s_mov_b32 s66, 0x40000
    s_mov_b32 s67, 0x20000
    s_lshl_b32 s68, s2, 3
    s_add_u32 s68, s68, {s(sWave)}
    s_lshl_b32 s68, s68, 6
    v_and_b32 v0, 63, v0
    v_lshlrev_b32 v0, 2, v0
    s_mov_b64 exec, 0xffff
    buffer_store_dword v1, v0, s[64:67], s68 offen
    """)
```

```python
from common import *

SC_3, SC_S, SC_Q, SC_C, SC_3P = 0x20000, 0x24000, 0x24200, 0x24400, 0x24800

def gen_k1():
    a = Asm()
    sX, sW, sWS = 8, 12, 16
    pX, pQKV, pW1, pWS = 20, 22, 24, 26
    sW_, sTQ, sFH, sRB, sCB, sHB, sTY, sSTR, sCOL = 28, 29, 30, 31, 32, 33, 34, 35, 36
    sXO, sWO, sM0, sT, sT2, sCH, sSC, sBS, sBO, s8S, s64S = 37, 38, 39, 40, 41, 42, 43, 44, 45, 46, 47
    sP, pA, sKP, sCI, sXB, sPS, sPD, sPR, sNAT = 48, 52, 60, 61, 62, 63, 3, 4, 5
    pWO = 6
    vL, vT0, vT1, vT2, vT3 = 1, 2, 3, 4, 5
    vX0, vX1, vWD = 6, 7, 8
    vI, vHI, vPA, vPT = 9, 10, 11, 12
    XA = lambda st, k: 16 + st*4 + k
    WA = lambda st, ft: 24 + st*3 + ft
    SEL = 32
    XF = lambda p: 36 + 16*p
    WF = lambda p, ft: 40 + 16*p + 4*ft
    ACC = lambda ft: 84 + 16*ft
    GR = 116
    CSV = 124; PK = 156; TMP = 172
    vMEAN, vR, vR1, vOFF, vTA, vTB, vSUM, vSQ = 180, 182, 184, 185, 186, 187, 188, 189
    vC1, vC2, vONE, W3V = 190, 192, 194, 196
    a(f"""
    s_cmp_ge_u32 s2, 256
    s_cbranch_scc1 K1_END
    """)
    stamp_init(a); stamp(a, 0)
    a(f"""
    s_load_dwordx4 {s(pX,4)}, s[0:1], {A_X}
    s_load_dwordx2 {s(pW1,2)}, s[0:1], {B_W1}
    s_load_dwordx2 {s(pWS,2)}, s[0:1], {P_WS}
    s_load_dwordx2 {s(pWO,2)}, s[0:1], {A_WO}
    s_load_dwordx2 {s(pA,2)}, s[0:1], {B_W2}
    s_load_dwordx4 {s(pA+4,4)}, s[0:1], {B_W3}
    v_lshrrev_b32 {v(vT0)}, 6, v0
    v_and_b32 {v(vL)}, 63, v0
    v_readfirstlane_b32 {s(sW_)}, {v(vT0)}
    s_and_b32 {s(sT)}, s2, 3
    s_lshl_b32 {s(sRB)}, {s(sT)}, 2
    s_bfe_u32 {s(sT)}, s2, 0x20003
    s_add_u32 {s(sRB)}, {s(sRB)}, {s(sT)}
    s_lshl_b32 {s(sCH)}, {s(sT)}, 1
    s_bfe_u32 {s(sT)}, s2, 0x10002
    s_lshl_b32 {s(sCB)}, {s(sT)}, 3
    s_lshr_b32 {s(sT2)}, s2, 5
    s_add_u32 {s(sCB)}, {s(sCB)}, {s(sT2)}
    s_add_u32 {s(sCH)}, {s(sCH)}, {s(sT2)}
    s_and_b32 {s(sCH)}, {s(sCH)}, 7
    s_and_b32 {s(sTQ)}, {s(sW_)}, 3
    s_lshr_b32 {s(sFH)}, {s(sW_)}, 2
    s_mul_i32 {s(sT)}, {s(sFH)}, 24
    s_add_u32 {s(sHB)}, {s(sT)}, {s(sCB)}
    s_lshl_b32 {s(sT)}, {s(sCB)}, 1
    s_add_u32 {s(sT)}, {s(sT)}, {s(sFH)}
    s_sub_u32 {s(sT)}, {s(sT)}, 8
    s_cmp_lt_u32 {s(sCB)}, 8
    s_cselect_b32 {s(sHB)}, {s(sHB)}, {s(sT)}
    s_lshr_b32 {s(sTY)}, {s(sHB)}, 3
    s_lshl_b32 {s(sCOL)}, {s(sHB)}, 7
    s_sub_u32 {s(sT)}, {s(sCOL)}, 3072
    s_cmp_eq_u32 {s(sTY)}, 3
    s_cselect_b32 {s(sCOL)}, {s(sT)}, {s(sCOL)}
    s_mov_b32 {s(sSTR)}, 3072
    s_cmov_b32 {s(sSTR)}, 1024
    s_lshl_b32 {s(s8S)}, {s(sSTR)}, 3
    s_lshl_b32 {s(s64S)}, {s(sSTR)}, 6
    v_lshrrev_b32 {v(vT0)}, 3, {v(vL)}
    v_lshrrev_b32 {v(vT1)}, 4, {v(vL)}
    v_and_b32 {v(vT2)}, 7, {v(vL)}
    v_xor_b32 {v(vT3)}, {v(vT2)}, {v(vT1)}
    v_lshlrev_b32 {v(vT3)}, 4, {v(vT3)}
    s_lshl_b32 {s(sT)}, {s(sW_)}, 4
    v_add_u32 {v(vX0)}, {s(sT)}, {v(vT0)}
    v_lshl_add_u32 {v(vX0)}, {v(vX0)}, 10, {v(vT3)}
    v_xor_b32 {v(vX1)}, 64, {v(vX0)}
    v_add_u32 {v(vX1)}, 0x2000, {v(vX1)}
    v_and_b32 {v(vT1)}, 1, {v(vT1)}
    v_lshlrev_b32 {v(vT1)}, 2, {v(vT1)}
    v_xor_b32 {v(vT1)}, {v(vT1)}, {v(vT2)}
    v_lshlrev_b32 {v(vT1)}, 4, {v(vT1)}
    s_lshl_b32 {s(sT)}, {s(sTQ)}, 4
    v_add_u32 {v(vT3)}, {s(sT)}, {v(vT0)}
    v_mul_lo_u32 {v(vWD)}, {v(vT3)}, {s(sSTR)}
    v_add3_u32 {v(vWD)}, {v(vWD)}, {v(vT1)}, {s(sCOL)}
    s_lshl_b32 {s(sXB)}, {s(sRB)}, 17
    s_lshl_b32 {s(sM0)}, {s(sW_)}, 11
    s_waitcnt lgkmcnt(0)
    """)
    srd(a, sX, pX, 0, 0x200000)
    a(f"""
    s_cmp_eq_u32 {s(sTY)}, 3
    s_cselect_b32 {s(sW)}, {s(pW1)}, {s(pQKV)}
    s_cselect_b32 {s(sW+1)}, {s(pW1+1)}, {s(pQKV+1)}
    s_lshl_b32 {s(sW+2)}, {s(sSTR)}, 9
    s_mov_b32 {s(sW+3)}, 0x20000
    """)
    def dma(vm, c, i):
        sl = (c % 4)*32768
        if i == 0:
            a(f"""
            s_lshl_b32 {s(sXO)}, {s(sCH)}, 7
            s_add_u32 m0, {s(sM0)}, {sl}
            s_add_u32 {s(sXO)}, {s(sXO)}, {s(sXB)}
            """)
            vm.op(f"buffer_load_dwordx4 {v(vX0)}, {s(sX,4)}, {s(sXO)} offen lds", c)
        elif i == 1:
            a(f"s_add_u32 m0, {s(sM0)}, {sl+16384}")
            a(f"s_mul_i32 {s(sWO)}, {s(sCH)}, {s(s64S)}")
            vm.op(f"buffer_load_dwordx4 {v(vWD)}, {s(sW,4)}, {s(sWO)} offen lds", c)
        elif i == 2:
            a(f"s_add_u32 m0, {s(sM0)}, {sl+1024}")
            a(f"s_add_u32 {s(sCH)}, {s(sCH)}, 1")
            vm.op(f"buffer_load_dwordx4 {v(vX1)}, {s(sX,4)}, {s(sXO)} offen lds", c)
        else:
            a(f"s_add_u32 m0, {s(sM0)}, {sl+17408}")
            a(f"s_add_u32 {s(sWO)}, {s(sWO)}, {s(s8S)}")
            vm.op(f"buffer_load_dwordx4 {v(vWD)}, {s(sW,4)}, {s(sWO)} offen lds", c)
            a(f"s_and_b32 {s(sCH)}, {s(sCH)}, 7")
    vm0 = VM(a)
    stamp(a, 1)
    for i in range(4): dma(vm0, 0, i)
    srd(a, sWS, pWS, 0, WS_USED)
    a(f"""
    s_mul_i32 {s(sKP)}, s2, 2979
    s_lshr_b32 {s(sKP)}, {s(sKP)}, 16
    s_mul_i32 {s(sT)}, {s(sKP)}, 22
    s_sub_u32 {s(sCI)}, s2, {s(sT)}
    s_mov_b64 {s(sP,2)}, {s(pA+4,2)}
    s_mov_b32 {s(sP+2)}, {512*2752}
    s_mov_b32 {s(sP+3)}, 0x20000
    s_mov_b32 {s(sPR)}, 2752
    s_mov_b32 {s(sPD)}, 0x{W3F:x}
    s_mov_b32 {s(sT2)}, 44
    s_mov_b32 {s(sNAT)}, 0
    s_cmp_lt_u32 s2, 88
    s_cbranch_scc1 K1_JOB
    s_and_b32 {s(sCI)}, s2, 7
    s_mov_b32 {s(sPR)}, 1024
    s_mov_b32 {s(sT2)}, 16
    s_mov_b32 {s(sP+2)}, 0x80000
    s_sub_u32 {s(sKP)}, s2, 88
    s_mov_b64 {s(sP,2)}, {s(pA,2)}
    s_mov_b32 {s(sPD)}, 0x{W2F:x}
    s_cmp_lt_u32 s2, 120
    s_cbranch_scc1 K1_JOBS
    s_sub_u32 {s(sKP)}, s2, 120
    s_mov_b64 {s(sP,2)}, {s(pWO,2)}
    s_mov_b32 {s(sPD)}, 0x{WOF:x}
    s_mov_b32 {s(sNAT)}, 1
    s_cmp_lt_u32 s2, 152
    s_cbranch_scc1 K1_JOBS
    s_sub_u32 {s(sKP)}, s2, 152
    s_mov_b64 {s(sP,2)}, {s(pA+6,2)}
    s_mov_b32 {s(sP+2)}, {1376*1024}
    s_mov_b32 {s(sPD)}, 0x{W4F:x}
    s_mov_b32 {s(sNAT)}, 0
    s_cmp_lt_u32 s2, 240
    s_cbranch_scc1 K1_JOBS
    s_mov_b32 {s(sPD)}, 0x40000000
    """)
    a.label("K1_JOBS")
    a(f"s_lshr_b32 {s(sKP)}, {s(sKP)}, 3")
    a.label("K1_JOB")
    a(f"""
    s_lshl_b32 {s(sT)}, {s(sKP)}, 3
    s_add_u32 {s(sT)}, {s(sT)}, {s(sW_)}
    s_mul_i32 {s(sT2)}, {s(sT2)}, {s(sT)}
    s_lshl_b32 {s(sPS)}, {s(sCI)}, 1
    s_add_u32 {s(sT2)}, {s(sT2)}, {s(sPS)}
    s_lshl_b32 {s(sT2)}, {s(sT2)}, 10
    s_add_u32 {s(sPD)}, {s(sPD)}, {s(sT2)}
    s_mul_i32 {s(sT)}, {s(sT)}, {s(sPR)}
    s_lshl_b32 {s(sT)}, {s(sT)}, 4
    s_lshl_b32 {s(sPS)}, {s(sCI)}, 7
    s_add_u32 {s(sPS)}, {s(sPS)}, {s(sT)}
    v_mul_lo_u32 {v(vPA)}, {v(vT0)}, {s(sPR)}
    v_add_u32 {v(vPA)}, {v(vPA)}, {v(vT1)}
    s_lshl_b32 {s(sPR)}, {s(sPR)}, 3
    s_add_u32 {s(sPR)}, {s(sPR)}, {s(sPS)}
    """)
    a("s_barrier")
    for i in range(4): dma(vm0, 1, i)
    a(f"""
    v_and_b32 {v(vI)}, 31, {v(vL)}
    v_lshrrev_b32 {v(vHI)}, 5, {v(vL)}
    s_lshl_b32 {s(sT)}, {s(sTQ)}, 5
    v_add_u32 {v(vT0)}, {s(sT)}, {v(vI)}
    v_lshlrev_b32 {v(vT0)}, 7, {v(vT0)}
    v_bfe_u32 {v(vT1)}, {v(vI)}, 1, 3
    v_xor_b32 {v(vT1)}, {v(vT1)}, {v(vHI)}
    v_bfe_u32 {v(vT2)}, {v(vL)}, 2, 2
    v_lshlrev_b32 {v(vT3)}, 7, {v(vT2)}
    v_lshrrev_b32 {v(vT2)}, 1, {v(vT2)}
    v_lshl_add_u32 {v(vT3)}, {v(vT2)}, 6, {v(vT3)}
    v_bfe_u32 {v(vT2)}, {v(vL)}, 4, 1
    v_lshl_add_u32 {v(vT3)}, {v(vT2)}, 5, {v(vT3)}
    v_and_b32 {v(vTB)}, 15, {v(vL)}
    v_cmp_eq_u32 vcc, {v(vTB)}, {v(vT2)}
    v_and_b32 {v(vT2)}, 3, {v(vL)}
    v_lshl_add_u32 {v(vT3)}, {v(vT2)}, 3, {v(vT3)}
    v_lshl_add_u32 {v(vTB)}, {v(vHI)}, 10, {v(vT3)}
    v_mov_b32 {v(vT2)}, 0x{ONES:x}
    v_cndmask_b32 {v(SEL)}, 0, {v(vT2)}, vcc
    s_add_u32 {s(sT)}, {s(sNAT)}, 9
    v_lshlrev_b32 {v(vPT)}, {s(sT)}, {v(vHI)}
    s_lshl_b32 {s(sT)}, {s(sW_)}, 11
    s_add_u32 {s(sT)}, {s(sT)}, 0x{SC_3:x}
    v_add3_u32 {v(vPT)}, {v(vPT)}, {v(vT3)}, {s(sT)}
    s_lshl_b32 {s(sT)}, {s(sFH)}, 13
    s_add_u32 {s(sT)}, {s(sT)}, 16384
    v_add_u32 {v(WA(0,0))}, {s(sT)}, {v(vTB)}
    v_xor_b32 {v(WA(0,1))}, 64, {v(WA(0,0))}
    s_and_b32 {s(sT)}, {s(sTQ)}, 1
    s_lshl_b32 {s(sT)}, {s(sT)}, 13
    s_add_u32 {s(sT)}, {s(sT)}, 16384
    s_lshr_b32 {s(sT2)}, {s(sTQ)}, 1
    s_lshl_b32 {s(sT2)}, {s(sT2)}, 6
    v_xor_b32 {v(WA(0,2))}, {s(sT2)}, {v(vTB)}
    v_add_u32 {v(WA(0,2))}, {s(sT)}, {v(WA(0,2))}
    v_mov_b32 {v(SEL+1)}, {v(SEL)}
    v_mov_b32 {v(SEL+2)}, {v(SEL)}
    v_mov_b32 {v(SEL+3)}, {v(SEL)}
    v_mov_b32 {v(GR)}, 0
    """)
    for k in range(4):
        a(f"v_xor_b32 {v(vT2)}, {2*k}, {v(vT1)}")
        a(f"v_lshl_add_u32 {v(XA(0,k))}, {v(vT2)}, 4, {v(vT0)}")
    for k in range(4): a(f"v_add_u32 {v(XA(1,k))}, 65536, {v(XA(0,k))}")
    for ft in range(3): a(f"v_add_u32 {v(WA(1,ft))}, 65536, {v(WA(0,ft))}")
    stamp(a, 2)
    def body(fh):
        vm = VM(a); vm.q = list(vm0.q)
        nr = 5 + 2*fh
        def reads(n):
            c, k = divmod(n, 4); sl = c % 4; st = sl >> 1; o = (sl & 1)*32768; p = n % 3
            a(f"ds_read_b128 {v(XF(p),4)}, {v(XA(st,k))} offset:{o}")
            for ft in range(2+fh):
                a(f"ds_read_b64_tr_b16 {v(WF(p,ft),2)}, {v(WA(st,ft))} offset:{o+k*2048}")
                a(f"ds_read_b64_tr_b16 {v(WF(p,ft)+2,2)}, {v(WA(st,ft))} offset:{o+k*2048+512}")
        def compute(n):
            p = n % 3
            z = lambda r, w: "0" if n == 0 else v(r, w)
            if fh == 0:
                for j in range(4): a(f"v_dot2_f32_bf16 {v(GR)}, {v(XF(p)+j)}, {v(XF(p)+j)}, {v(GR)}")
            for ft in (0, 1):
                a(f"v_mfma_f32_32x32x16_bf16 {v(ACC(ft),16)}, {v(WF(p,ft),4)}, {v(XF(p),4)}, {z(ACC(ft),16)}")
            if fh == 1:
                a(f"v_mfma_f32_16x16x32_bf16 {v(GR,4)}, {v(SEL,4)}, {v(XF(p),4)}, {z(GR,4)}")
                a(f"v_mfma_f32_16x16x32_bf16 {v(GR+4,4)}, {v(SEL,4)}, {v(WF(p,2),4)}, {z(GR+4,4)}")
        sched = {0: [(2, 0), (2, 1)], 1: [(2, 2), (2, 3)]}
        for c in range(5):
            for i in range(4): sched[4*c+2+i] = [(c+3, i)]
        vm.wait(0)
        a("s_barrier")
        stamp(a, 3)
        reads(0); reads(1)
        extra = 0
        for n in range(32):
            c, k = divmod(n, 4)
            if k == 2 and c < 7:
                vm.wait(c+1)
                a("s_barrier")
                stamp(a, 4+c)
            if n < 30: reads(n+2)
            a(f"s_waitcnt lgkmcnt({min(15, nr*min(2, 31-n))})")
            compute(n)
            for cc, i in sched.get(n, []): dma(vm, cc, i)
            if n == 21:
                vm.op(f"buffer_load_dwordx4 {v(W3V,4)}, {v(vPA)}, {s(sP,4)}, {s(sPS)} offen", "p")
                vm.op(f"buffer_load_dwordx4 {v(W3V+4,4)}, {v(vPA)}, {s(sP,4)}, {s(sPR)} offen", "p")
        stamp(a, 11)
        if fh == 0:
            halves_sum(a, GR, vT1)
            a(f"""
            s_lshl_b32 {s(sT)}, {s(sTQ)}, 7
            s_add_u32 {s(sT)}, {s(sT)}, 0x{SC_Q:x}
            v_lshl_add_u32 {v(vT0)}, {v(vI)}, 2, {s(sT)}
            ds_write_b32 {v(vT0)}, {v(GR)}
            """)
        else:
            a(f"""
            s_lshl_b32 {s(sT)}, {s(sTQ)}, 7
            s_add_u32 {s(sT)}, {s(sT)}, 0x{SC_S:x}
            v_lshl_add_u32 {v(vT0)}, {v(vL)}, 2, {s(sT)}
            s_and_b32 {s(sT)}, {s(sTQ)}, 1
            s_lshl_b32 {s(sT)}, {s(sT)}, 8
            s_lshr_b32 {s(sT2)}, {s(sTQ)}, 1
            s_lshl_b32 {s(sT2)}, {s(sT2)}, 7
            s_add_u32 {s(sT)}, {s(sT)}, {s(sT2)}
            s_add_u32 {s(sT)}, {s(sT)}, 0x{SC_C:x}
            v_lshl_add_u32 {v(vT1)}, {v(vL)}, 2, {s(sT)}
            s_mov_b64 exec, 0xffff
            ds_write_b32 {v(vT0)}, {v(GR)}
            ds_write_b32 {v(vT0)}, {v(GR+1)} offset:64
            ds_write_b32 {v(vT1)}, {v(GR+4)}
            ds_write_b32 {v(vT1)}, {v(GR+5)} offset:64
            s_mov_b64 exec, -1
            """)
    a(f"""
    s_cmp_eq_u32 {s(sFH)}, 1
    s_cbranch_scc1 K1_B1
    """)
    body(0)
    a("s_branch K1_JOIN")
    a.label("K1_B1")
    body(1)
    a.label("K1_JOIN")
    a(f"""
    s_lshl_b32 {s(sT)}, {s(sW_)}, 11
    s_add_u32 {s(sT)}, {s(sT)}, 0x{SC_3:x}
    v_lshl_add_u32 {v(vT0)}, {v(vL)}, 4, {s(sT)}
    s_lshl_b32 {s(sT)}, {s(sTQ)}, 7
    s_add_u32 {s(sT)}, {s(sT)}, 0x{SC_S:x}
    v_lshl_add_u32 {v(vT1)}, {v(vI)}, 2, {s(sT)}
    s_lshl_b32 {s(sT)}, {s(sFH)}, 8
    s_add_u32 {s(sT)}, {s(sT)}, 0x{SC_C:x}
    v_lshl_add_u32 {v(vT2)}, {v(vHI)}, 4, {s(sT)}
    s_waitcnt vmcnt(0) lgkmcnt(0)
    s_barrier
    ds_read_b32 {v(vSUM)}, {v(vT1)}
    ds_read_b32 {v(vSQ)}, {v(vT1)} offset:{SC_Q-SC_S}
    """)
    for ft in (0, 1):
        for q in range(4): a(f"ds_read_b128 {v(CSV+16*ft+4*q,4)}, {v(vT2)} offset:{128*ft+32*q}")
    a(f"""
    ds_write_b128 {v(vT0)}, {v(W3V,4)}
    ds_write_b128 {v(vT0)}, {v(W3V+4,4)} offset:1024
    s_cmp_eq_u32 {s(sTY)}, 0
    s_cselect_b32 {s(sSC)}, {fl(0.25*LOG2E)}, 1.0
    s_lshl_b32 {s(sT2)}, {s(sRB)}, 2
    s_add_u32 {s(sT2)}, {s(sT2)}, {s(sTQ)}
    v_mov_b32 {v(vTB)}, {fl(1/512)}
    s_lshr_b32 {s(sT)}, 1024, {s(sNAT)}
    v_add_u32 {v(vT0)}, {s(sT)}, {v(vPT)}
    v_xor_b32 {v(vT1)}, 64, {v(vPT)}
    v_xor_b32 {v(vT2)}, 64, {v(vT0)}
    s_waitcnt lgkmcnt(10)
    v_mul_f32 {v(vMEAN)}, {v(vTB)}, {v(vSUM)}
    v_mul_f32 {v(vTA)}, {v(vMEAN)}, {v(vMEAN)}
    v_fma_f32 {v(vTA)}, {v(vSQ)}, {v(vTB)}, -{v(vTA)}
    v_max_f32 {v(vTA)}, 0, {v(vTA)}
    v_add_f32 {v(vTB)}, {fl(EPS)}, {v(vTA)}
    v_rsq_f32 {v(vR1)}, {v(vTB)}
    s_cmp_lg_u32 {s(sTY)}, 3
    v_mul_f32 {v(vR)}, {s(sSC)}, {v(vR1)}
    s_cbranch_scc1 K1_NOR2
    v_mul_f32 {v(vTB)}, {v(vR1)}, {v(vR1)}
    v_fmaak_f32 {v(vTB)}, {v(vTB)}, {v(vTA)}, {fl(EPS)}
    v_rsq_f32 {v(vTB)}, {v(vTB)}
    v_mov_b32 {v(vC1)}, {fl(-GC1)}
    v_mov_b32 {v(vC1+1)}, {fl(-GC1)}
    v_mov_b32 {v(vC2)}, {fl(-GC2)}
    v_mov_b32 {v(vC2+1)}, {fl(-GC2)}
    v_mov_b32 {v(vONE)}, 1.0
    v_mov_b32 {v(vONE+1)}, 1.0
    v_mul_f32 {v(vR)}, {v(vR1)}, {v(vTB)}
    """)
    a.label("K1_NOR2")
    a(f"""
    s_cmp_lg_u32 {s(sHB)}, 0
    s_cbranch_scc1 K1_NOST
    s_lshl_b32 {s(sT)}, {s(sT2)}, 8
    s_add_u32 {s(sT)}, {s(sT)}, 0x{ST1:x}
    v_lshlrev_b32 {v(vTA)}, 3, {v(vI)}
    v_mov_b32 {v(PK)}, {v(vMEAN)}
    v_mov_b32 {v(PK+1)}, {v(vR1)}
    buffer_store_dwordx2 {v(PK,2)}, {v(vTA)}, {s(sWS,4)}, {s(sT)} offen
    """)
    a.label("K1_NOST")
    a(f"""
    v_sub_f32 {v(vMEAN)}, 0, {v(vMEAN)}
    v_mov_b32 {v(vR+1)}, {v(vR)}
    v_mov_b32 {v(vMEAN+1)}, {v(vMEAN)}
    s_waitcnt lgkmcnt(0)
    ds_read_b64_tr_b16 {v(W3V,2)}, {v(vPT)}
    ds_read_b64_tr_b16 {v(W3V+2,2)}, {v(vT0)}
    ds_read_b64_tr_b16 {v(W3V+4,2)}, {v(vT1)}
    ds_read_b64_tr_b16 {v(W3V+6,2)}, {v(vT2)}
    """)
    for j in range(0, 32, 2): a(f"v_pk_fma_f32 {v(ACC(0)+j,2)}, {v(CSV+j,2)}, {v(vMEAN,2)}, {v(ACC(0)+j,2)}")
    for j in range(0, 32, 2): a(f"v_pk_mul_f32 {v(ACC(0)+j,2)}, {v(ACC(0)+j,2)}, {v(vR,2)}")
    a(f"""
    v_lshlrev_b32 {v(vT3)}, 4, {v(vL)}
    s_and_b32 {s(sT)}, {s(sHB)}, 7
    s_cmp_eq_u32 {s(sTY)}, 3
    s_cbranch_scc1 K1_H
    """)
    for j in range(16): a(f"v_cvt_pk_bf16_f32 {v(PK+j)}, {v(ACC(0)+2*j)}, {v(ACC(0)+2*j+1)}")
    a(f"""
    s_cmp_eq_u32 {s(sTY)}, 0
    s_cbranch_scc1 K1_Q
    s_mov_b32 {s(sBS)}, 0x20000
    s_lshl_b32 {s(sBO)}, {s(sT)}, 19
    s_lshl_b32 {s(sT)}, {s(sT2)}, 11
    s_add_u32 {s(sBO)}, {s(sBO)}, {s(sT)}
    s_add_u32 {s(sBO)}, {s(sBO)}, 0x{KVF:x}
    s_cmp_eq_u32 {s(sTY)}, 2
    s_cbranch_scc1 K1_V
    v_and_b32 {v(vOFF)}, 0x33, {v(vL)}
    v_bfe_u32 {v(vTA)}, {v(vL)}, 2, 1
    v_lshl_add_u32 {v(vOFF)}, {v(vTA)}, 3, {v(vOFF)}
    v_bfe_u32 {v(vTA)}, {v(vL)}, 3, 1
    v_lshl_add_u32 {v(vOFF)}, {v(vTA)}, 2, {v(vOFF)}
    v_lshlrev_b32 {v(vOFF)}, 4, {v(vOFF)}
    s_branch K1_STORE
    """)
    a.label("K1_V")
    a(f"""
    s_add_u32 {s(sBO)}, {s(sBO)}, 1024
    s_lshl_b32 {s(sT)}, {s(sW_)}, 12
    v_lshlrev_b32 {v(vTA)}, 5, {v(vI)}
    v_lshl_add_u32 {v(vTA)}, {v(vHI)}, 4, {v(vTA)}
    v_add_u32 {v(vTA)}, {s(sT)}, {v(vTA)}
    """)
    for b in range(4): a(f"ds_write_b128 {v(vTA)}, {v(PK+4*b,4)} offset:{1024*b}")
    a(f"""
    v_bfe_u32 {v(vTB)}, {v(vL)}, 4, 1
    v_lshlrev_b32 {v(vOFF)}, 9, {v(vTB)}
    v_lshl_add_u32 {v(vTA)}, {v(vHI)}, 7, {v(vOFF)}
    v_and_b32 {v(vTB)}, 15, {v(vL)}
    v_lshl_add_u32 {v(vTA)}, {v(vTB)}, 3, {v(vTA)}
    v_add_u32 {v(vTA)}, {s(sT)}, {v(vTA)}
    v_lshl_add_u32 {v(vOFF)}, {v(vHI)}, 8, {v(vOFF)}
    v_lshl_add_u32 {v(vOFF)}, {v(vTB)}, 4, {v(vOFF)}
    s_waitcnt lgkmcnt(0)
    """)
    for b in range(4):
        a(f"ds_read_b64_tr_b16 {v(PK+4*b,2)}, {v(vTA)} offset:{1024*b}")
        a(f"ds_read_b64_tr_b16 {v(PK+4*b+2,2)}, {v(vTA)} offset:{1024*b+256}")
    a("s_waitcnt lgkmcnt(0)")
    a("s_branch K1_STORE")
    a.label("K1_Q")
    a(f"""
    s_mov_b32 {s(sBS)}, 0x10000
    s_lshl_b32 {s(sBO)}, {s(sT)}, 18
    s_lshl_b32 {s(sT)}, {s(sT2)}, 10
    s_add_u32 {s(sBO)}, {s(sBO)}, {s(sT)}
    v_mov_b32 {v(vOFF)}, {v(vT3)}
    """)
    a.label("K1_STORE")
    for b in range(4):
        a(f"buffer_store_dwordx4 {v(PK+4*b,4)}, {v(vOFF)}, {s(sWS,4)}, {s(sBO)} offen")
        if b < 3: a(f"s_add_u32 {s(sBO)}, {s(sBO)}, {s(sBS)}")
    a("s_branch K1_PACK")
    a.label("K1_H")
    a(f"""
    s_lshl_b32 {s(sBO)}, {s(sT)}, 12
    s_lshl_b32 {s(sT)}, {s(sT2)}, 15
    s_add_u32 {s(sBO)}, {s(sBO)}, {s(sT)}
    s_add_u32 {s(sBO)}, {s(sBO)}, 0x{HF:x}
    """)
    for g in range(4):
        gelu_pk(a, [ACC(0)+8*g+j for j in range(8)], [TMP+j for j in range(8)], vC1, vC2, vONE)
        for j in range(4): a(f"v_cvt_pk_bf16_f32 {v(PK+4*g+j)}, {v(ACC(0)+8*g+2*j)}, {v(ACC(0)+8*g+2*j+1)}")
        a(f"buffer_store_dwordx4 {v(PK+4*g,4)}, {v(vT3)}, {s(sWS,4)}, {s(sBO)} offen offset:{1024*g}")
    a.label("K1_PACK")
    stamp(a, 12)
    a(f"""
    s_waitcnt lgkmcnt(0)
    buffer_store_dwordx4 {v(W3V,4)}, {v(vT3)}, {s(sWS,4)}, {s(sPD)} offen
    buffer_store_dwordx4 {v(W3V+4,4)}, {v(vT3)}, {s(sWS,4)}, {s(sPD)} offen offset:1024
    s_cmp_ge_u32 s2, 88
    s_cbranch_scc1 K1_FIN
    v_mfma_f32_16x16x32_bf16 {v(TMP,4)}, {v(SEL,4)}, {v(W3V,4)}, 0
    v_mfma_f32_16x16x32_bf16 {v(TMP+4,4)}, {v(SEL,4)}, {v(W3V+4,4)}, 0
    s_lshl_b32 {s(sT)}, {s(sW_)}, 8
    s_add_u32 {s(sT)}, {s(sT)}, 0x{SC_3P:x}
    v_lshl_add_u32 {v(vT0)}, {v(vL)}, 2, {s(sT)}
    s_mov_b64 exec, 0xffff
    ds_write_b32 {v(vT0)}, {v(TMP)}
    ds_write_b32 {v(vT0)}, {v(TMP+1)} offset:64
    ds_write_b32 {v(vT0)}, {v(TMP+4)} offset:128
    ds_write_b32 {v(vT0)}, {v(TMP+5)} offset:192
    s_mov_b64 exec, -1
    s_waitcnt lgkmcnt(0)
    s_barrier
    s_cmp_lg_u32 {s(sW_)}, 1
    s_cbranch_scc1 K1_NOCS3
    v_lshlrev_b32 {v(vT0)}, 2, {v(vL)}
    v_add_u32 {v(vT1)}, 0x{SC_3P:x}, {v(vT0)}
    """)
    for w in range(8): a(f"ds_read_b32 {v(TMP+w)}, {v(vT1)} offset:{256*w}")
    a(f"""
    s_mul_i32 {s(sT)}, {s(sKP)}, 6144
    s_lshl_b32 {s(sT2)}, {s(sCI)}, 8
    s_add_u32 {s(sT)}, {s(sT)}, {s(sT2)}
    s_add_u32 {s(sT)}, {s(sT)}, 0x{CS3P:x}
    s_waitcnt lgkmcnt(0)
    """)
    for w in range(1, 8): a(f"v_add_f32 {v(TMP)}, {v(TMP)}, {v(TMP+w)}")
    a(f"buffer_store_dword {v(TMP)}, {v(vT0)}, {s(sWS,4)}, {s(sT)} offen")
    a.label("K1_NOCS3")
    a(f"""
    s_or_b32 {s(sT)}, s2, {s(sW_)}
    s_cmp_lg_u32 {s(sT)}, 0
    s_cbranch_scc1 K1_FIN
    v_mov_b32 {v(TMP)}, 0
    v_mov_b32 {v(TMP+1)}, 0
    v_mov_b32 {v(TMP+2)}, 0
    v_mov_b32 {v(TMP+3)}, 0
    s_mov_b32 {s(sT)}, 0x{FLG:x}
    s_add_u32 {s(sT2)}, {s(sT)}, 4096
    """)
    for j in range(8): a(f"buffer_store_dwordx4 {v(TMP,4)}, {v(vT3)}, {s(sWS,4)}, {s(sT if j < 4 else sT2)} offen offset:{(j&3)*1024}")
    a.label("K1_FIN")
    if PROF: a("s_waitcnt vmcnt(0)")
    stamp(a, 13)
    stamp_flush(a, 0, sW_, pWS)
    a.label("K1_END")
    a("s_endpgm")
    lines, added = a.done()
    return kernel_text("k1_proj_kernel", lines, 204)
```

```python
from common import *

TB = 2080
PROG_A = 16*TB
PROG_B = PROG_A + 1024
CNT_B = PROG_B + 1024
CS3L = CNT_B + 64
BR = 36*1024
DUMP = BR + 72*1024
K2_LDS = BR + 120*1024
SPIN = 400000

def attention(a):
    sKV, sQO = 8, 12
    sW, sHD, sQB, sT, sT2, sKO, sM, sNEED, sIT, sEX = 28, 29, 30, 31, 32, 33, 34, 35, 36, 38
    vL, vIDX, vKA, vV0, vV1, vPW, vPR, vPROG, vC, vT0, vT1, vOO = 1, 2, 3, 4, 5, 6, 7, 8, 9, 10, 11, 12
    Sa, Sb, Oa, Ob, Ma, Mb, Qa, Qb = 16, 32, 48, 64, 80, 96, 112, 116
    K = [120, 124]; V = [128, 136]
    pWS = 26
    a(f"""
    s_and_b32 {s(sT)}, s2, 7
    s_lshl_b32 {s(sHD)}, {s(sT)}, 2
    s_bfe_u32 {s(sT)}, s2, 0x20003
    s_add_u32 {s(sHD)}, {s(sHD)}, {s(sT)}
    s_lshr_b32 {s(sQB)}, s2, 5
    v_lshlrev_b32 {v(vKA)}, 4, {v(vL)}
    s_lshl_b32 {s(sT)}, {s(sHD)}, 17
    s_add_u32 {s(sT)}, {s(sT)}, 0x{KVF:x}
    s_lshl_b32 {s(sKO)}, {s(sW)}, 11
    s_lshl_b32 {s(sT2)}, {s(sQB)}, 14
    s_add_u32 {s(sKO)}, {s(sKO)}, {s(sT2)}
    s_mul_i32 {s(sM)}, {s(sW)}, {TB}
    s_waitcnt lgkmcnt(0)
    s_add_u32 {s(sKV)}, {s(pWS)}, {s(sT)}
    s_addc_u32 {s(sKV+1)}, {s(pWS+1)}, 0
    s_mov_b32 {s(sKV+2)}, 0x20000
    s_mov_b32 {s(sKV+3)}, 0x20000
    """)
    def dma(slot):
        return [f"s_add_u32 m0, {s(sM)}, {slot*4*TB}",
                f"s_nop 0",
                f"buffer_load_dwordx4 {v(vKA)}, {s(sKV,4)}, {s(sKO)} offen lds",
                f"buffer_load_dwordx4 {v(vKA)}, {s(sKV,4)}, {s(sKO)} offen offset:1024 lds",
                f"s_add_u32 {s(sKO)}, {s(sKO)}, 8192",
                f"s_and_b32 {s(sKO)}, {s(sKO)}, 0x1ffff"]
    for l in dma(0): a(l)
    srd(a, sQO, pWS, 0, WS_USED)
    a(f"""
    s_lshl_b32 {s(sT)}, {s(sHD)}, 16
    s_lshl_b32 {s(sT2)}, {s(sQB)}, 13
    s_add_u32 {s(sT)}, {s(sT)}, {s(sT2)}
    s_lshl_b32 {s(sT2)}, {s(sW)}, 11
    s_add_u32 {s(sT)}, {s(sT)}, {s(sT2)}
    buffer_load_dwordx4 {v(Qa,4)}, {v(vKA)}, {s(sQO,4)}, {s(sT)} offen
    buffer_load_dwordx4 {v(Qb,4)}, {v(vKA)}, {s(sQO,4)}, {s(sT)} offen offset:1024
    """)
    for l in dma(1) + dma(2): a(l)
    a(f"""
    v_mov_b32 {v(vIDX)}, 0xdddddddd
    v_and_b32 {v(vT0)}, 15, {v(vL)}
    v_lshrrev_b32 {v(vT1)}, 5, {v(vL)}
    v_lshlrev_b32 {v(vV0)}, 4, {v(vT0)}
    v_lshl_add_u32 {v(vV0)}, {v(vT1)}, 8, {v(vV0)}
    v_add_u32 {v(vV0)}, 1024, {v(vV0)}
    v_add_u32 {v(vV1)}, 512, {v(vV0)}
    v_and_b32 {v(vPR)}, 11, {v(vL)}
    v_cmp_eq_u32 vcc, 0, {v(vPR)}
    v_mov_b32 {v(vPW)}, 2048
    v_mov_b32 {v(vC)}, 2064
    v_cndmask_b32 {v(vC)}, {v(vC)}, {v(vPW)}, vcc
    v_and_b32 {v(vPR)}, 16, {v(vL)}
    v_cmp_ne_u32 vcc, 0, {v(vPR)}
    v_mov_b32 {v(V[1]+4)}, 0
    v_mov_b32 {v(V[1]+5)}, 0
    v_cndmask_b32 {v(vV0)}, {v(vV0)}, {v(vC)}, vcc
    v_cndmask_b32 {v(vV1)}, {v(vV1)}, {v(vC)}, vcc
    v_mov_b32 {v(V[1]+6)}, 0
    v_mov_b32 {v(V[1]+7)}, 0
    v_mul_u32_u24 {v(vT0)}, {TB}, {v(vT0)}
    v_mov_b32 {v(V[0])}, 0x{ONES:x}
    v_mov_b32 {v(V[0]+1)}, 0x{ONES:x}
    v_mov_b32 {v(V[0]+2)}, 0x{ONES:x}
    v_mov_b32 {v(V[0]+3)}, 0x{ONES:x}
    ds_write_b128 {v(vT0)}, {v(V[0],4)} offset:2048
    ds_write_b128 {v(vT0)}, {v(V[1]+4,4)} offset:2064
    s_lshl_b32 {s(sT)}, {s(sW)}, 8
    v_lshl_add_u32 {v(vPW)}, {v(vL)}, 2, {s(sT)}
    v_and_b32 {v(vPR)}, 3, {v(vL)}
    v_lshlrev_b32 {v(vPR)}, 8, {v(vPR)}
    v_lshl_add_u32 {v(vPR)}, {v(vL)}, 2, {v(vPR)}
    v_mov_b32 {v(vPROG)}, 0
    ds_write_b32 {v(vPW)}, {v(vPROG)} offset:{PROG_A}
    v_mov_b32 {v(vPROG)}, 1
    s_waitcnt lgkmcnt(0)
    s_barrier
    """)
    for j in range(9):
        a(f"v_mov_b32 {v(Oa+j)}, 0"); a(f"v_mov_b32 {v(Ob+j)}, 0")
    a(f"""
    s_mov_b32 {s(sNEED)}, 2
    s_mov_b32 {s(sIT)}, 4
    s_mov_b32 {s(sT)}, {SPIN}
    s_waitcnt vmcnt(4)
    ds_write_b32 {v(vPW)}, {v(vPROG)} offset:{PROG_A}
    """)
    a.label("AT_W0")
    a(f"""
    ds_read_b32 {v(vC)}, {v(vPR)} offset:{PROG_A}
    s_sub_u32 {s(sT)}, {s(sT)}, 1
    s_cmp_eq_u32 {s(sT)}, 0
    s_cbranch_scc1 AT_X0
    s_waitcnt lgkmcnt(0)
    v_cmp_gt_u32 vcc, 1, {v(vC)}
    s_cbranch_vccnz AT_W0
    """)
    a.label("AT_X0")
    stamp(a, 1)
    if os.environ.get("NOATT"): a("s_endpgm")
    a(f"""
    ds_read_b128 {v(K[0],4)}, {v(vKA)}
    ds_read_b128 {v(V[0],4)}, {v(vV0)}
    ds_read_b128 {v(V[0]+4,4)}, {v(vV1)}
    s_waitcnt lgkmcnt(2)
    v_mfma_f32_32x32x16_bf16 {v(Sa,16)}, {v(K[0],4)}, {v(Qa,4)}, 0
    v_mfma_f32_32x32x16_bf16 {v(Sb,16)}, {v(K[0],4)}, {v(Qb,4)}, 0
    """)
    def rowmax(S, dst, first=True):
        if first: a(f"v_max3_f32 {v(dst)}, {v(S)}, {v(S+1)}, {v(S+2)}")
        else: a(f"v_max3_f32 {v(dst)}, {v(dst)}, {v(S)}, {v(S+1)}"); a(f"v_max_f32 {v(dst)}, {v(dst)}, {v(S+2)}")
        for j in range(3, 15, 2): a(f"v_max3_f32 {v(dst)}, {v(dst)}, {v(S+j)}, {v(S+j+1)}")
        a(f"v_max_f32 {v(dst)}, {v(dst)}, {v(S+15)}")
    def spread(M, t):
        a(f"v_mov_b32 {v(t)}, {v(M)}")
        a(f"v_permlane32_swap_b32 {v(M)}, {v(t)}")
        a(f"v_max_f32 {v(t)}, {v(M)}, {v(t)}")
        for j in range(16): a(f"v_sub_f32 {v(M+j)}, 0, {v(t)}")
    rowmax(Sa, Ma); spread(Ma, vT0)
    a(f"v_mfma_f32_32x32x16_bf16 {v(Sa,16)}, {v(K[0],4)}, {v(Qa,4)}, {v(Ma,16)}")
    rowmax(Sb, Mb); spread(Mb, vT1)
    for j in range(8): a(f"v_mov_b32 {v(Sb+8+j)}, 0")
    pv = lambda O, Vr, S: f"v_smfmac_f32_32x32x32_bf16 {v(O,16)}, {v(Vr,4)}, {v(S,8)}, {v(vIDX)}"
    qk = lambda S, Kr, Q, M: f"v_mfma_f32_32x32x16_bf16 {v(S,16)}, {v(Kr,4)}, {v(Q,4)}, {v(M,16)}"
    stamp(a, 2)
    a(".p2align 6")
    a.label("AT_LOOP")
    for t in range(16):
        p = t & 1; q = p ^ 1; j = t & 3; nx = ((t+1) % 16)*TB
        A = {2: [pv(Ob, V[q]+4, Sb+8), "s_waitcnt lgkmcnt(0)"], 6: [qk(Sb, K[p], Qb, Mb), f"ds_read_b128 {v(V[q],4)}, {v(vV0)} offset:{nx}"],
             11: [pv(Oa, V[p], Sa), f"ds_read_b128 {v(V[q]+4,4)}, {v(vV1)} offset:{nx}"]}
        B = {2: [pv(Oa, V[p]+4, Sa+8), "s_waitcnt lgkmcnt(2)"], 6: [qk(Sa, K[q], Qa, Ma)], 11: [pv(Ob, V[p], Sb)]}
        if j == 3:
            A[2] += [f"v_cmp_gt_u32 vcc, {s(sNEED)}, {v(vC)}", f"s_cbranch_vccnz AT_SPIN{t}", f"AT_BACK{t}:"]
            d = dma(((t >> 2) + 3) & 3)
            B[6] += [d[0], f"s_add_u32 {s(sNEED)}, {s(sNEED)}, 1", d[2]]
            B[11] += [d[3], d[4], d[5]]
        A[2] += [f"ds_read_b128 {v(K[q],4)}, {v(vKA)} offset:{nx}"]
        if j == 0:
            B[6] += [f"v_add_u32 {v(vPROG)}, 1, {v(vPROG)}"]
            B[11] += ["s_waitcnt vmcnt(2)", f"ds_write_b32 {v(vPW)}, {v(vPROG)} offset:{PROG_A}"]
        if t == 5:
            B[6] += [f"s_cmp_eq_u32 {s(sIT)}, 1", f"s_cselect_b32 {s(sKV+2)}, 0, {s(sKV+2)}"]
        if j == 2:
            B[11] += [f"ds_read_b32 {v(vC)}, {v(vPR)} offset:{PROG_A}"]
        if t == 15:
            B[14] = [f"s_sub_u32 {s(sIT)}, {s(sIT)}, 1", f"s_cmp_lg_u32 {s(sIT)}, 0"]
        for S, ins in ((Sa, A), (Sb, B)):
            for i in range(16):
                for l in ins.get(i, []): a(l)
                a(f"v_exp_f32 {v(S+i)}, {v(S+i)}")
    a("s_cbranch_scc1 AT_LOOP")
    a("s_nop 0")
    a(pv(Ob, V[1]+4, Sb+8))
    stamp(a, 3)
    a.label("AT_FIN")
    a("s_nop 7")
    for O, t in ((Oa, vT0), (Ob, vT1)):
        a(f"v_max3_f32 {v(t)}, abs({v(O)}), abs({v(O+1)}), {v(O+8)}")
        for j in range(2, 8, 2): a(f"v_max3_f32 {v(t)}, abs({v(O+j)}), abs({v(O+j+1)}), {v(t)}")
    a(f"""
    v_max_f32 {v(vT0)}, {v(vT0)}, {v(vT1)}
    v_cmp_nlt_f32 vcc, {v(vT0)}, {v(vBIG)}
    s_cmp_eq_u32 {s(sIT)}, 0
    s_cselect_b64 vcc, vcc, 0
    s_cbranch_vccnz AT_SLOW
    v_rcp_f32 {v(vT0)}, {v(Oa+8)}
    v_rcp_f32 {v(vT1)}, {v(Ob+8)}
    s_lshl_b32 {s(sT)}, {s(sHD)}, 10
    s_lshl_b32 {s(sT2)}, {s(sQB)}, 18
    s_add_u32 {s(sT)}, {s(sT)}, {s(sT2)}
    s_lshl_b32 {s(sT2)}, {s(sW)}, 16
    s_add_u32 {s(sT)}, {s(sT)}, {s(sT2)}
    s_add_u32 {s(sT)}, {s(sT)}, 0x{OF:x}
    s_add_u32 {s(sT2)}, {s(sT)}, 0x8000
    """)
    for O, t, o in ((Oa, vT0, sT), (Ob, vT1, sT2)):
        for j in range(8): a(f"v_mul_f32 {v(O+j)}, {v(O+j)}, {v(t)}")
        for j in range(4): a(f"v_cvt_pk_bf16_f32 {v(O+j)}, {v(O+2*j)}, {v(O+2*j+1)}")
        a(f"buffer_store_dwordx4 {v(O,4)}, {v(vKA)}, {s(sQO,4)}, {s(o)} offen sc1")
    a(f"""
    s_lshl_b32 {s(sT)}, {s(sQB)}, 2
    s_add_u32 {s(sT)}, {s(sT)}, {s(sW)}
    s_lshl_b32 {s(sT)}, {s(sT)}, 7
    s_add_u32 {s(sT)}, {s(sT)}, 0x{FLG+4096:x}
    v_mov_b32 {v(vT0)}, 1
    v_mov_b32 {v(vT1)}, 0
    s_mov_b64 exec, 1
    s_waitcnt vmcnt(0)
    buffer_atomic_add {v(vT0)}, {v(vT1)}, {s(sQO,4)}, {s(sT)} offen sc1
    """)
    stamp(a, 4)
    stamp_flush(a, 1, sW, pWS)
    a("s_endpgm")
    for t in (3, 7, 11, 15):
        a.label(f"AT_SPIN{t}")
        a(f"s_mov_b32 {s(sT)}, {SPIN}")
        a.label(f"AT_SPINL{t}")
        a(f"""
        ds_read_b32 {v(vC)}, {v(vPR)} offset:{PROG_A}
        s_sub_u32 {s(sT)}, {s(sT)}, 1
        s_cmp_eq_u32 {s(sT)}, 0
        s_cbranch_scc1 AT_BACK{t}
        s_waitcnt lgkmcnt(0)
        v_cmp_gt_u32 vcc, {s(sNEED)}, {v(vC)}
        s_cbranch_vccnz AT_SPINL{t}
        s_branch AT_BACK{t}
        """)
    a.label("AT_SLOW")
    a(f"""
    s_mov_b32 {s(sIT)}, 1
    s_mov_b32 {s(sKV+2)}, 0x20000
    s_mov_b32 {s(sKO)}, 0
    v_mov_b32 {v(Ma)}, 0xff800000
    v_mov_b32 {v(Mb)}, 0xff800000
    s_waitcnt vmcnt(0) lgkmcnt(0)
    """)
    a.label("AT_SLOW1")
    a(f"""
    buffer_load_dwordx4 {v(K[0],4)}, {v(vKA)}, {s(sKV,4)}, {s(sKO)} offen
    s_add_u32 {s(sKO)}, {s(sKO)}, 2048
    s_waitcnt vmcnt(0)
    v_mfma_f32_32x32x16_bf16 {v(Sa,16)}, {v(K[0],4)}, {v(Qa,4)}, 0
    v_mfma_f32_32x32x16_bf16 {v(Sb,16)}, {v(K[0],4)}, {v(Qb,4)}, 0
    """)
    rowmax(Sa, Ma, False); rowmax(Sb, Mb, False)
    a(f"""
    s_cmp_lt_u32 {s(sKO)}, 0x20000
    s_cbranch_scc1 AT_SLOW1
    """)
    spread(Ma, vT0); spread(Mb, vT1)
    for j in range(9):
        a(f"v_mov_b32 {v(Oa+j)}, 0"); a(f"v_mov_b32 {v(Ob+j)}, 0")
    for j in range(8): a(f"v_mov_b32 {v(V[0]+j)}, 0x{ONES:x}")
    a(f"""
    s_mov_b32 {s(sKO)}, 0
    s_mov_b32 {s(sEX)}, 0xffff
    s_mov_b32 {s(sEX+1)}, 0xffff
    """)
    a.label("AT_SLOW2")
    a(f"""
    buffer_load_dwordx4 {v(K[0],4)}, {v(vKA)}, {s(sKV,4)}, {s(sKO)} offen
    s_mov_b64 exec, {s(sEX,2)}
    buffer_load_dwordx4 {v(V[0],4)}, {v(vV0)}, {s(sKV,4)}, {s(sKO)} offen
    buffer_load_dwordx4 {v(V[0]+4,4)}, {v(vV1)}, {s(sKV,4)}, {s(sKO)} offen
    s_mov_b64 exec, -1
    s_add_u32 {s(sKO)}, {s(sKO)}, 2048
    s_waitcnt vmcnt(0)
    """)
    a(qk(Sa, K[0], Qa, Ma)); a(qk(Sb, K[0], Qb, Mb))
    for S in (Sa, Sb):
        for i in range(16): a(f"v_exp_f32 {v(S+i)}, {v(S+i)}")
    a(pv(Oa, V[0], Sa)); a(pv(Oa, V[0]+4, Sa+8)); a(pv(Ob, V[0], Sb)); a(pv(Ob, V[0]+4, Sb+8))
    a(f"""
    s_cmp_lt_u32 {s(sKO)}, 0x20000
    s_cbranch_scc1 AT_SLOW2
    s_nop 3
    s_branch AT_FIN
    """)
vBIG = 13

def chain(a, pfx="CH"):
    vm = VM(a)
    PRIO = os.environ.get("PRIO", 2)
    sH, sX, sWS, sOUT = 8, 12, 40, 44
    pX, pOUT, pWS = 16, 18, 26
    sW, sC, sTG, sM16, sT64, sJ, sT, sT2, sT3, sSO, sFL, sNB, sFT, sTH = 28, 29, 30, 31, 32, 33, 34, 35, 36, 37, 38, 39, 48, 49
    sR1, sR2, sB1, sB2, sTT, sWB, sROT = 50, 51, 52, 53, 54, 55, 56
    vL, vI, vHI, vT0, vT1, vT2, vT3 = 1, 2, 3, 4, 5, 6, 7
    vPW, vPR, vPROG, vC, vDUMP, vTOK = 9, 10, 11, 12, 14, 15
    vWA = [16, 17]; vRA = [18, 19, 20]; vH = [21, 22]; vXO, vSTO, vZ = 23, 24, 25
    v3A = [26, 27]; vL16 = 28
    ACC = 32
    WF = lambda p, f: 96 + 12*p + 4*f
    BIG = 120
    XR, STv = 248, 252
    lo = lambda: a("s_setprio 0")
    hi = lambda: a(f"s_setprio {PRIO}")
    a(f"""
    s_sub_u32 {s(sC)}, {s(sW)}, 4
    s_lshl_b32 {s(sT)}, {s(sC)}, 8
    v_lshl_add_u32 {v(vPW)}, {v(vL)}, 2, {s(sT)}
    v_mov_b32 {v(vPROG)}, 0
    v_mov_b32 {v(vZ)}, 0
    ds_write_b32 {v(vPW)}, {v(vPROG)} offset:{PROG_B}
    ds_write_b32 {v(vZ)}, {v(vZ)} offset:{CNT_B}
    ds_write_b32 {v(vZ)}, {v(vZ)} offset:{CNT_B+4}
    s_and_b32 {s(sT)}, s2, 7
    s_lshl_b32 {s(sTG)}, {s(sT)}, 1
    s_bfe_u32 {s(sT2)}, s2, 0x10003
    s_add_u32 {s(sTG)}, {s(sTG)}, {s(sT2)}
    s_lshr_b32 {s(sM16)}, s2, 4
    s_and_b32 {s(sT)}, {s(sM16)}, 1
    s_lshl_b32 {s(sT64)}, {s(sTG)}, 1
    s_add_u32 {s(sT64)}, {s(sT64)}, {s(sT)}
    s_lshr_b32 {s(sJ)}, {s(sM16)}, 1
    s_and_b32 {s(sFT)}, {s(sC)}, 1
    s_lshr_b32 {s(sTH)}, {s(sC)}, 1
    s_lshl_b32 {s(sTT)}, {s(sT64)}, 1
    s_add_u32 {s(sTT)}, {s(sTT)}, {s(sTH)}
    v_and_b32 {v(vI)}, 31, {v(vL)}
    v_lshrrev_b32 {v(vHI)}, 5, {v(vL)}
    v_lshlrev_b32 {v(vL16)}, 4, {v(vL)}
    s_lshl_b32 {s(sT)}, {s(sJ)}, 1
    s_add_u32 {s(sT)}, {s(sT)}, {s(sFT)}
    s_lshl_b32 {s(sT)}, {s(sT)}, 10
    v_add_u32 {v(vWA[0])}, {s(sT)}, {v(vL16)}
    v_xor_b32 {v(vWA[1])}, 1024, {v(vWA[0])}
    s_add_u32 {s(sT)}, {s(sTH)}, 1
    s_sub_u32 {s(sT2)}, 0, {s(sT)}
    s_cmp_eq_u32 {s(sFT)}, 0
    s_cselect_b32 {s(sT)}, {s(sT2)}, {s(sT)}
    s_lshl_b32 {s(sT3)}, {s(sTT)}, 5
    v_add_u32 {v(vTOK)}, {s(sT3)}, {v(vI)}
    v_mov_b32 {v(vT3)}, 0x40000000
    """)
    for b in (0, 1):
        a(f"""
        v_xor_b32 {v(vT0)}, {32*b}, {v(vTOK)}
        v_add_u32 {v(vT0)}, {s(sT)}, {v(vT0)}
        v_cmp_gt_u32 vcc, 0x800, {v(vT0)}
        v_lshrrev_b32 {v(vT1)}, 5, {v(vT0)}
        v_and_b32 {v(vT0)}, 31, {v(vT0)}
        v_lshlrev_b32 {v(vT0)}, 4, {v(vT0)}
        v_lshl_add_u32 {v(vT0)}, {v(vT1)}, 15, {v(vT0)}
        v_lshl_add_u32 {v(vT0)}, {v(vHI)}, 9, {v(vT0)}
        v_cndmask_b32 {v(vH[b])}, {v(vT3)}, {v(vT0)}, vcc
        """)
    a(f"""
    s_and_b32 {s(sT)}, {s(sT64)}, 3
    s_lshl_b32 {s(sROT)}, {s(sT)}, 1
    s_add_u32 {s(sROT)}, {s(sROT)}, {s(sJ)}
    s_mov_b32 {s(sR1)}, {s(sROT)}
    s_lshl_b32 {s(sB1)}, {s(sC)}, 3
    s_waitcnt lgkmcnt(0)
    """)
    srd(a, sWS, pWS, 0, WS_USED)
    srd(a, sH, pWS, HF, 0x200000)
    a("s_barrier")
    def rot8(r):
        a(f"""
        s_and_b32 {s(r)}, {s(r)}, 7
        s_add_u32 {s(sT)}, {s(r)}, {s(sB1)}
        s_add_u32 {s(r)}, {s(r)}, 1
        """)
    def wload(dst, base, tag):
        a(f"s_lshl_b32 {s(sSO)}, {s(sT)}, 14")
        a(f"s_add_u32 {s(sSO)}, {s(sSO)}, 0x{base:x}")
        for f in (0, 1): vm.op(f"buffer_load_dwordx4 {v(dst+4*f,4)}, {v(vWA[f])}, {s(sWS,4)}, {s(sSO)} offen", tag)
    def load1(st):
        rot8(sR1)
        a(f"s_lshl_b32 {s(sT2)}, {s(sT)}, 10")
        wload(BIG+16*st, W2F, f"a{st}")
        for b in (0, 1): vm.op(f"buffer_load_dwordx4 {v(BIG+16*st+8+4*b,4)}, {v(vH[b])}, {s(sH,4)}, {s(sT2)} offen", f"a{st}")
    load1(0); load1(1)
    srd(a, sX, pX, 0, 0x200000)
    srd(a, sOUT, pOUT, 0, 0x200000)
    a(f"""
    v_lshlrev_b32 {v(vXO)}, 10, {v(vTOK)}
    v_lshl_add_u32 {v(vXO)}, {v(vHI)}, 4, {v(vXO)}
    s_lshl_b32 {s(sT)}, {s(sJ)}, 7
    s_lshl_b32 {s(sT2)}, {s(sFT)}, 6
    s_add_u32 {s(sT)}, {s(sT)}, {s(sT2)}
    v_add_u32 {v(vXO)}, {s(sT)}, {v(vXO)}
    v_lshlrev_b32 {v(vSTO)}, 3, {v(vTOK)}
    v_add_u32 {v(v3A[0])}, {BR}, {v(vL16)}
    v_add_u32 {v(v3A[1])}, {BR+49152}, {v(vL16)}
    s_mul_i32 {s(sT)}, {s(sC)}, 12288
    s_add_u32 {s(sT)}, {s(sT)}, {DUMP}
    v_add_u32 {v(vDUMP)}, {s(sT)}, {v(vL16)}
    """)
    for u in (1, 2, 3):
        a(f"""
        s_xor_b32 {s(sT)}, {s(sC)}, {u}
        s_mul_i32 {s(sT)}, {s(sT)}, 12288
        s_add_u32 {s(sT)}, {s(sT)}, {DUMP + (u-1)*4096}
        v_add_u32 {v(vRA[u-1])}, {s(sT)}, {v(vL16)}
        """)
    a(f"""
    v_and_b32 {v(vPR)}, 3, {v(vL)}
    v_lshlrev_b32 {v(vPR)}, 8, {v(vPR)}
    v_lshl_add_u32 {v(vPR)}, {v(vL)}, 2, {v(vPR)}
    s_lshl_b32 {s(sFL)}, {s(sTG)}, 7
    s_add_u32 {s(sFL)}, {s(sFL)}, 0x{FLG:x}
    s_mov_b32 {s(sNB)}, 0
    s_and_b32 {s(sT)}, {s(sTG)}, 1
    s_lshl_b32 {s(sT)}, {s(sT)}, 2
    s_lshl_b32 {s(sR2)}, {s(sM16)}, 1
    s_add_u32 {s(sR2)}, {s(sR2)}, {s(sT)}
    s_mul_i32 {s(sWB)}, {s(sM16)}, 3072
    s_add_u32 {s(sWB)}, {s(sWB)}, 0x{W3F:x}
    """)
    nlab = [0]
    def arrive():
        a(f"""
        v_add_u32 {v(vPROG)}, 1, {v(vPROG)}
        s_add_u32 {s(sNB)}, {s(sNB)}, 1
        s_waitcnt lgkmcnt(0)
        ds_write_b32 {v(vPW)}, {v(vPROG)} offset:{PROG_B}
        """)
    def await_(prog=PROG_B, need=None, sleep=0):
        n = nlab[0]; nlab[0] += 1
        a(f"s_mov_b32 {s(sT)}, {SPIN}")
        a.label(f"{pfx}_W{n}")
        if sleep: a(f"s_sleep {sleep}")
        a(f"""
        ds_read_b32 {v(vC)}, {v(vPR)} offset:{prog}
        s_sub_u32 {s(sT)}, {s(sT)}, 1
        s_cmp_eq_u32 {s(sT)}, 0
        s_cbranch_scc1 {pfx}_X{n}
        s_waitcnt lgkmcnt(0)
        v_cmp_gt_u32 vcc, {s(sNB) if need is None else need}, {v(vC)}
        s_cbranch_vccnz {pfx}_W{n}
        """)
        a.label(f"{pfx}_X{n}")
        a("s_waitcnt lgkmcnt(0)")
    def signal(k):
        n = nlab[0]; nlab[0] += 1
        a(f"""
        s_mov_b64 exec, 1
        v_mov_b32 {v(vT0)}, 1
        ds_add_rtn_u32 {v(vT1)}, {v(vZ)}, {v(vT0)} offset:{CNT_B+4*k}
        s_add_u32 {s(sT2)}, {s(sFL)}, {2048*k}
        s_waitcnt lgkmcnt(0)
        v_cmp_ne_u32 vcc, 3, {v(vT1)}
        s_cbranch_vccnz {pfx}_S{n}
        buffer_atomic_add {v(vT0)}, {v(vZ)}, {s(sWS,4)}, {s(sT2)} offen sc1
        """)
        a.label(f"{pfx}_S{n}")
        a("s_mov_b64 exec, -1")
    def poll(count):
        n = nlab[0]; nlab[0] += 1
        a(f"s_mov_b32 {s(sT)}, {SPIN}")
        a.label(f"{pfx}_P{n}")
        a(f"""
        buffer_load_dword {v(vC)}, {v(vZ)}, {s(sWS,4)}, {s(sT2)} offen sc1
        s_sub_u32 {s(sT)}, {s(sT)}, 1
        s_cmp_eq_u32 {s(sT)}, 0
        s_cbranch_scc1 {pfx}_Q{n}
        s_waitcnt vmcnt(0)
        v_cmp_gt_u32 vcc, {count}, {v(vC)}
        s_cbranch_vccz {pfx}_Q{n}
        s_sleep 1
        s_branch {pfx}_P{n}
        """)
        a.label(f"{pfx}_Q{n}")
        a("s_waitcnt vmcnt(0)")
        vm.q = []
    def mm4(wreg, breg, first, keep0):
        for u in (1, 2, 3, 0):
            c = "0" if (first and not (keep0 and u == 0)) else v(ACC+16*u, 16)
            a(f"v_mfma_f32_32x32x16_bf16 {v(ACC+16*u,16)}, {v(wreg+4*(u&1),4)}, {v(breg+4*(u>>1),4)}, {c}")
    def reduce4(between=None):
        for u in (1, 2, 3):
            for q in range(4): a(f"ds_write_b128 {v(vDUMP)}, {v(ACC+16*u+4*q,4)} offset:{(u-1)*4096+q*1024}")
        arrive()
        if between: between()
        await_()
        for u in (1, 2, 3):
            for q in range(4): a(f"ds_read_b128 {v(ACC+16*u+4*q,4)}, {v(vRA[u-1])} offset:{q*1024}")
        for u in (1, 2, 3):
            a(f"s_waitcnt lgkmcnt({4*(3-u)})")
            for j in range(0, 16, 2): a(f"v_pk_add_f32 {v(ACC+j,2)}, {v(ACC+j,2)}, {v(ACC+16*u+j,2)}")
    def w3dma(slot0, per, i):
        a(f"""
        s_mul_i32 {s(sT)}, {s(sC)}, {per}
        s_add_u32 {s(sT)}, {s(sT)}, {slot0+i}
        s_add_u32 {s(sT2)}, {s(sT)}, {s(sR2)}
        s_and_b32 {s(sT2)}, {s(sT2)}, 31
        s_mul_i32 {s(sT)}, {s(sT)}, 3072
        s_add_u32 m0, {s(sT)}, {BR}
        s_mul_i32 {s(sT2)}, {s(sT2)}, {44*1024}
        s_add_u32 {s(sT2)}, {s(sT2)}, {s(sWB)}
        """)
        for f in range(3): vm.op(f"buffer_load_dwordx4 {v(vL16)}, {s(sWS,4)}, {s(sT2)} offen offset:{1024*f} lds", "w3")
    if os.environ.get("NOCHAIN"): a("s_endpgm")
    stamp(a, 1)
    XA, XB, C3 = WF(0, 0), WF(0, 1), WF(0, 2)
    for st in range(8):
        if st+2 < 8: load1(st+2)
        if st == 6:
            a(f"""
            s_mov_b32 {s(sT2)}, 0x{ST1:x}
            s_mul_i32 {s(sT)}, {s(sM16)}, 384
            s_add_u32 {s(sT)}, {s(sT)}, 0x{CS3P:x}
            v_lshlrev_b32 {v(vC)}, 3, {v(vL)}
            """)
            vm.op(f"buffer_load_dwordx4 {v(XA,4)}, {v(vXO)}, {s(sX,4)}, 0 offen", "x")
            vm.op(f"buffer_load_dwordx4 {v(XB,4)}, {v(vXO)}, {s(sX,4)}, 0 offen offset:32", "x")
            vm.op(f"buffer_load_dwordx2 {v(STv,2)}, {v(vSTO)}, {s(sWS,4)}, {s(sT2)} offen", "x")
            for kp in range(4):
                vm.op(f"buffer_load_dwordx2 {v(C3+2*kp,2)}, {v(vC)}, {s(sWS,4)}, {s(sT)} offen", "x")
                if kp < 3: a(f"s_add_u32 {s(sT)}, {s(sT)}, 6144")
        if st == 7: w3dma(0, 2, 0); w3dma(0, 2, 1)
        vm.wait(f"a{st}")
        mm4(BIG+16*st, BIG+16*st+8, st == 0, False)
    hi()
    stamp(a, 2)
    XF = BIG
    def resid():
        vm.wait("x")
        a(f"""
        v_pk_add_f32 {v(C3,2)}, {v(C3,2)}, {v(C3+2,2)}
        v_pk_add_f32 {v(C3+4,2)}, {v(C3+4,2)}, {v(C3+6,2)}
        v_lshlrev_b32 {v(vT0)}, 3, {v(vL)}
        v_pk_add_f32 {v(C3,2)}, {v(C3,2)}, {v(C3+4,2)}
        v_permlane32_swap_b32 {v(XA)}, {v(XA+2)}
        v_permlane32_swap_b32 {v(XA+1)}, {v(XA+3)}
        ds_write_b64 {v(vT0)}, {v(C3,2)} offset:{CS3L}
        v_permlane32_swap_b32 {v(XB)}, {v(XB+2)}
        v_permlane32_swap_b32 {v(XB+1)}, {v(XB+3)}
        v_mul_f32 {v(STv)}, {v(STv)}, {v(STv+1)}
        v_sub_f32 {v(STv+2)}, 0, {v(STv)}
        v_sub_f32 {v(STv+3)}, 0, {v(STv)}
        v_mov_b32 {v(STv)}, {v(STv+1)}
        """)
        for j in range(8):
            a(f"v_lshlrev_b32 {v(XF+2*j)}, 16, {v(XA+j)}")
            a(f"v_and_b32 {v(XF+2*j+1)}, 0xffff0000, {v(XA+j)}")
        for j in range(0, 16, 2): a(f"v_pk_fma_f32 {v(XF+16+j,2)}, {v(XF+j,2)}, {v(STv,2)}, {v(STv+2,2)}")
        for j in range(0, 16, 2): a(f"v_pk_add_f32 {v(ACC+j,2)}, {v(ACC+j,2)}, {v(XF+16+j,2)}")
    reduce4(resid)
    stamp(a, 3)
    arrive()
    for j in range(8): a(f"v_cvt_pk_bf16_f32 {v(XF+16+j)}, {v(ACC+2*j)}, {v(ACC+2*j+1)}")
    a(f"""
    s_lshl_b32 {s(sT3)}, {s(sJ)}, 1
    s_add_u32 {s(sT3)}, {s(sT3)}, {s(sFT)}
    s_lshl_b32 {s(sT)}, {s(sT3)}, 11
    s_lshl_b32 {s(sT2)}, {s(sTT)}, 15
    s_add_u32 {s(sT)}, {s(sT)}, {s(sT2)}
    s_add_u32 {s(sT)}, {s(sT)}, 0x{X1F:x}
    """)
    vm.op(f"buffer_store_dwordx4 {v(XF+16,4)}, {v(vL16)}, {s(sWS,4)}, {s(sT)} offen sc1", "st")
    vm.op(f"buffer_store_dwordx4 {v(XF+20,4)}, {v(vL16)}, {s(sWS,4)}, {s(sT)} offen offset:1024 sc1", "st")
    a(f"v_pk_add_f32 {v(XR,2)}, {v(ACC,2)}, {v(ACC+2,2)}")
    a(f"v_pk_mul_f32 {v(XR+2,2)}, {v(ACC,2)}, {v(ACC,2)}")
    a(f"v_pk_fma_f32 {v(XR+2,2)}, {v(ACC+2,2)}, {v(ACC+2,2)}, {v(XR+2,2)}")
    for j in range(4, 16, 2):
        a(f"v_pk_add_f32 {v(XR,2)}, {v(XR,2)}, {v(ACC+j,2)}")
        a(f"v_pk_fma_f32 {v(XR+2,2)}, {v(ACC+j,2)}, {v(ACC+j,2)}, {v(XR+2,2)}")
    a(f"v_add_f32 {v(XR)}, {v(XR)}, {v(XR+1)}")
    a(f"v_add_f32 {v(XR+1)}, {v(XR+2)}, {v(XR+3)}")
    halves_sum(a, XR, vT0); halves_sum(a, XR+1, vT1)
    a(f"""
    s_lshl_b32 {s(sT)}, {s(sT3)}, 14
    s_add_u32 {s(sT)}, {s(sT)}, 0x{ST2:x}
    """)
    vm.op(f"buffer_store_dwordx2 {v(XR,2)}, {v(vSTO)}, {s(sWS,4)}, {s(sT)} offen sc1", "st")
    for j in range(0, 16, 2): a(f"v_pk_add_f32 {v(ACC+j,2)}, {v(ACC+j,2)}, {v(XF+j,2)}")
    await_()
    stamp(a, 4)
    vm.wait("st")
    stamp(a, 5)
    signal(0)
    lo()
    for i in range(6): w3dma(8, 6, i)
    a(f"""
    s_lshl_b32 {s(sT)}, {s(sTG)}, 7
    s_lshl_b32 {s(sT2)}, {s(sC)}, 5
    s_add_u32 {s(sT)}, {s(sT)}, {s(sT2)}
    v_add_u32 {v(vT3)}, {s(sT)}, {v(vI)}
    v_lshlrev_b32 {v(vT3)}, 3, {v(vT3)}
    v_lshl_add_u32 {v(vT3)}, {v(vHI)}, 17, {v(vT3)}
    s_lshl_b32 {s(sB2)}, {s(sT)}, 10
    s_add_u32 {s(sB2)}, {s(sB2)}, 0x{X1F:x}
    s_mov_b32 {s(sT2)}, {s(sFL)}
    """)
    stamp(a, 6)
    poll(16)
    arrive()
    stamp(a, 7)
    A3 = ACC+16; S2 = WF(1, 0) - 4
    def xload(kb):
        a(f"""
        s_and_b32 {s(sR2)}, {s(sR2)}, 31
        s_lshl_b32 {s(sT)}, {s(sR2)}, 10
        s_add_u32 {s(sT)}, {s(sT)}, {s(sB2)}
        s_add_u32 {s(sR2)}, {s(sR2)}, 1
        """)
        vm.op(f"buffer_load_dwordx4 {v(BIG+4*kb,4)}, {v(vL16)}, {s(sWS,4)}, {s(sT)} offen sc1", f"x{kb}")
    LA = 8
    a(f"s_mov_b32 {s(sT2)}, 0x{ST2:x}")
    for t in range(8):
        vm.op(f"buffer_load_dwordx2 {v(S2+2*t,2)}, {v(vT3)}, {s(sWS,4)}, {s(sT2)} offen sc1", "s2")
        a(f"s_add_u32 {s(sT2)}, {s(sT2)}, 0x4000")
    for kb in range(LA): xload(kb)
    hi()
    await_()
    vm.wait("s2")
    for t in range(1, 8): a(f"v_pk_add_f32 {v(S2,2)}, {v(S2,2)}, {v(S2+2*t,2)}")
    a(f"v_mov_b32 {v(XR)}, {v(S2)}")
    a(f"v_mov_b32 {v(XR+2)}, {v(S2+1)}")
    def t3(kb):
        for f in range(3): a(f"ds_read_b128 {v(WF(kb&1,f),4)}, {v(v3A[kb>>4])} offset:{(kb&15)*3072+1024*f}")
    t3(0)
    halves_sum(a, XR, vT0); halves_sum(a, XR+2, vT1)
    a(f"""
    v_mul_f32 {v(XR)}, {fl(-1/512)}, {v(XR)}
    v_mul_f32 {v(vT0)}, {v(XR)}, {v(XR)}
    v_mov_b32 {v(vT1)}, {fl(1/512)}
    v_fma_f32 {v(vT0)}, {v(XR+2)}, {v(vT1)}, -{v(vT0)}
    v_max_f32 {v(vT0)}, 0, {v(vT0)}
    v_add_f32 {v(vT0)}, {fl(EPS)}, {v(vT0)}
    v_rsq_f32 {v(XR+2)}, {v(vT0)}
    v_mov_b32 {v(XR+1)}, {v(XR)}
    v_mov_b32 {v(XR+3)}, {v(XR+2)}
    """)
    lo()
    for kb in range(32):
        if kb < 31: t3(kb+1)
        if kb+LA < 32: xload(kb+LA)
        vm.wait(f"x{kb}")
        a(f"s_waitcnt lgkmcnt({3 if kb < 31 else 0})")
        for f in range(3):
            a(f"v_mfma_f32_32x32x16_bf16 {v(A3+16*f,16)}, {v(WF(kb&1,f),4)}, {v(BIG+4*kb,4)}, {'0' if kb == 0 else v(A3+16*f,16)}")
    hi()
    stamp(a, 8)
    NW, NG = 10, 5
    WR = lambda st: 96 + 8*(st % NW)
    GR = lambda st: 176 + 8*(st % NG)
    CSV = 176; PK = 216; TMP = 240; vC1, vC2, vONE = STv, STv+2, 8
    a(f"""
    s_and_b32 {s(sT)}, {s(sT64)}, 3
    s_mul_i32 {s(sT)}, {s(sT)}, 5
    s_mul_i32 {s(sR1)}, {s(sJ)}, 3
    s_add_u32 {s(sR1)}, {s(sR1)}, {s(sT)}
    s_sub_u32 {s(sT)}, {s(sR1)}, 22
    s_cmp_ge_u32 {s(sR1)}, 22
    s_cselect_b32 {s(sR1)}, {s(sT)}, {s(sR1)}
    s_mov_b32 {s(sR2)}, {s(sR1)}
    s_mul_i32 {s(sB2)}, {s(sC)}, 22
    v_lshlrev_b32 {v(vT0)}, 4, {v(vHI)}
    s_lshl_b32 {s(sT)}, {s(sTG)}, 2
    s_add_u32 {s(sT)}, {s(sT)}, {s(sC)}
    s_mul_i32 {s(sT3)}, {s(sT)}, {96*1024}
    s_mul_i32 {s(sT)}, {s(sM16)}, 6144
    s_add_u32 {s(sT3)}, {s(sT3)}, {s(sT)}
    s_add_u32 {s(sT3)}, {s(sT3)}, 0x{GF:x}
    s_add_u32 {s(sWB)}, {s(sT3)}, 4096
    v_mov_b32 {v(vC1)}, {fl(-GC1)}
    v_mov_b32 {v(vC1+1)}, {fl(-GC1)}
    v_mov_b32 {v(vC2)}, {fl(-GC2)}
    v_mov_b32 {v(vC2+1)}, {fl(-GC2)}
    v_mov_b32 v30, 1.0
    v_mov_b32 v31, 1.0
    """)
    vONE = 30
    def rot22(r):
        a(f"""
        s_add_u32 {s(sT)}, {s(r)}, {s(sB2)}
        s_add_u32 {s(r)}, {s(r)}, 1
        s_cmp_eq_u32 {s(r)}, 22
        s_cselect_b32 {s(r)}, 0, {s(r)}
        """)
    def w4load(st): rot22(sR1); wload(WR(st), W4F, f"w{st}")
    def gload(st):
        rot22(sR2)
        a(f"s_lshl_b32 {s(sT2)}, {s(sT)}, 10")
        for b in (0, 1): vm.op(f"buffer_load_dwordx4 {v(GR(st)+4*b,4)}, {v(vH[b])}, {s(sWS,4)}, {s(sT2)} offen sc1", f"g{st}")
    def csread(g):
        for q in (0, 1): a(f"ds_read_b128 {v(CSV+8*(g&1)+4*q,4)}, {v(vT0)} offset:{CS3L+64*g+32*q}")
    csread(0)
    for g in range(6):
        xs = [A3+8*g+j for j in range(8)]
        if g < 5: csread(g+1)
        a(f"s_waitcnt lgkmcnt({2 if g < 5 else 0})")
        for j in range(0, 8, 2): a(f"v_pk_fma_f32 {v(xs[j],2)}, {v(CSV+8*(g&1)+j,2)}, {v(XR,2)}, {v(xs[j],2)}")
        for j in range(0, 8, 2): a(f"v_pk_mul_f32 {v(xs[j],2)}, {v(xs[j],2)}, {v(XR+2,2)}")
        gelu_pk(a, xs, [TMP+j for j in range(8)], vC1, vC2, vONE)
        for j in range(4): a(f"v_cvt_pk_bf16_f32 {v(PK+4*g+j)}, {v(xs[2*j])}, {v(xs[2*j+1])}")
        vm.op(f"buffer_store_dwordx4 {v(PK+4*g,4)}, {v(vL16)}, {s(sWS,4)}, {s(sT3 if g < 4 else sWB)} offen offset:{1024*(g&3)} sc1", "st")
        if g < 4: w4load(g)
    stamp(a, 9)
    a(f"""
    s_mul_i32 {s(sT)}, {s(sTT)}, {96*1024}
    s_add_u32 {s(sT)}, {s(sT)}, 0x{GF:x}
    s_xor_b32 {s(sT2)}, {s(sTT)}, 1
    s_mul_i32 {s(sT2)}, {s(sT2)}, {96*1024}
    s_add_u32 {s(sT2)}, {s(sT2)}, 0x{GF:x}
    v_add_u32 {v(vH[0])}, {s(sT)}, {v(vL16)}
    v_add_u32 {v(vH[1])}, {s(sT2)}, {v(vL16)}
    """)
    vm.wait("st")
    stamp(a, 10)
    signal(1)
    lo()
    for st in range(4, NW): w4load(st)
    a(f"s_add_u32 {s(sT2)}, {s(sFL)}, 2048")
    poll(16)
    stamp(a, 11)
    for st in range(NG-1): gload(st)
    for st in range(22):
        if st+NG-1 < 22: gload(st+NG-1)
        vm.wait(f"w{st}", f"g{st}")
        mm4(WR(st), GR(st), st == 0, True)
        if st+NW < 22: w4load(st+NW)
    stamp(a, 12)
    a(f"s_mov_b32 {s(sR1)}, {s(sROT)}")
    WO = lambda st: 96 + 8*st
    OO = lambda st: 176 + 8*st
    for st in range(8): rot8(sR1); wload(WO(st), WOF, "wo")
    a(f"""
    s_lshl_b32 {s(sT)}, {s(sTT)}, 15
    s_add_u32 {s(sT)}, {s(sT)}, 0x{OF:x}
    v_add_u32 {v(vH[0])}, {s(sT)}, {v(vL16)}
    v_xor_b32 {v(vH[1])}, 0x8000, {v(vH[0])}
    s_mov_b32 {s(sR1)}, {s(sROT)}
    """)
    if not os.environ.get("NOATT"):
        await_(PROG_A, 17, 8)
        a(f"s_lshl_b32 {s(sT2)}, {s(sT64)}, 7")
        a(f"s_add_u32 {s(sT2)}, {s(sT2)}, 0x{FLG+4096:x}")
        poll(32)
    stamp(a, 13)
    hi()
    for st in range(8):
        rot8(sR1)
        a(f"s_lshl_b32 {s(sT2)}, {s(sT)}, 10")
        for b in (0, 1): vm.op(f"buffer_load_dwordx4 {v(OO(st)+4*b,4)}, {v(vH[b])}, {s(sWS,4)}, {s(sT2)} offen sc1", f"o{st}")
    for st in range(8):
        vm.wait(f"o{st}", "wo")
        mm4(WO(st), OO(st), False, True)
    reduce4()
    Y = BIG
    for j in range(8): a(f"v_cvt_pk_bf16_f32 {v(Y+j)}, {v(ACC+2*j)}, {v(ACC+2*j+1)}")
    for b in (0, 1):
        a(f"v_permlane32_swap_b32 {v(Y+4*b)}, {v(Y+4*b+2)}")
        a(f"v_permlane32_swap_b32 {v(Y+4*b+1)}, {v(Y+4*b+3)}")
    for b in (0, 1): a(f"buffer_store_dwordx4 {v(Y+4*b,4)}, {v(vXO)}, {s(sOUT,4)}, 0 offen offset:{32*b}")
    if PROF:
        a("s_waitcnt vmcnt(0)")
        stamp(a, 1)
    stamp_flush(a, 1, sW, pWS)
    a("s_endpgm")

def gen_k2():
    a = Asm()
    a(f"""
    s_cmp_ge_u32 s2, 256
    s_cbranch_scc1 K2_END
    """)
    stamp_init(a); stamp(a, 0)
    a(f"""
    s_load_dwordx2 s[26:27], s[0:1], {P_WS}
    s_load_dwordx2 s[16:17], s[0:1], {A_X}
    s_load_dwordx2 s[18:19], s[0:1], {P_OUT}
    v_lshrrev_b32 v2, 6, v0
    v_and_b32 v1, 63, v0
    v_readfirstlane_b32 s28, v2
    v_mov_b32 {v(vBIG)}, {fl(2.0**126)}
    s_cmp_ge_u32 s28, 4
    s_cbranch_scc1 K2_CHAIN
    """)
    attention(a)
    a(".p2align 6")
    a.label("K2_CHAIN")
    chain(a)
    a.label("K2_END")
    a("s_endpgm")
    lines, added = a.done()
    return kernel_text("k2_mix_kernel", lines, 256)
```

```python
from common import *

def gen_k3():
    a = Asm(); vm = VM(a)
    sWO, sWS, sOUT = 8, 12, 16
    pWO, pOUT, pWS = 20, 22, 26
    sC, sTG, sM16, sT64, sJ, sT, sT2, sT3, sRG, sSO, sFT, sTH = 28, 29, 30, 31, 32, 33, 34, 35, 36, 37, 38, 39
    sR1, sB1 = 40, 41
    vL, vI, vHI, vT0, vT1, vT2, vT3, vWD, vDUMP, vTOK = 1, 2, 3, 4, 5, 6, 7, 8, 9, 10
    vWA = [11, 12]; vRA = [13, 14, 15]; vH = [16, 17]
    ACC = 32; WF = lambda p, f: 96 + 8*p + 4*f; BIG = 112
    a(f"""
    s_cmp_ge_u32 s2, 256
    s_cbranch_scc1 K3_END
    """)
    stamp_init(a); stamp(a, 0)
    a(f"""
    s_load_dwordx2 {s(pWS,2)}, s[0:1], {P_WS}
    s_load_dwordx2 {s(pWO,2)}, s[0:1], {A_WO}
    s_load_dwordx2 {s(pOUT,2)}, s[0:1], {P_OUT}
    v_lshrrev_b32 {v(vT0)}, 6, v0
    v_and_b32 {v(vL)}, 63, v0
    v_readfirstlane_b32 {s(sC)}, {v(vT0)}
    s_and_b32 {s(sT)}, s2, 7
    s_lshl_b32 {s(sTG)}, {s(sT)}, 1
    s_bfe_u32 {s(sT)}, s2, 0x10003
    s_add_u32 {s(sTG)}, {s(sTG)}, {s(sT)}
    s_lshr_b32 {s(sM16)}, s2, 4
    s_and_b32 {s(sT)}, {s(sM16)}, 1
    s_lshl_b32 {s(sT64)}, {s(sTG)}, 1
    s_add_u32 {s(sT64)}, {s(sT64)}, {s(sT)}
    s_lshr_b32 {s(sJ)}, {s(sM16)}, 1
    s_and_b32 {s(sFT)}, {s(sC)}, 1
    s_lshr_b32 {s(sTH)}, {s(sC)}, 1
    s_lshl_b32 {s(sRG)}, {s(sC)}, 14
    v_and_b32 {v(vI)}, 31, {v(vL)}
    v_lshrrev_b32 {v(vHI)}, 5, {v(vL)}
    v_lshrrev_b32 {v(vT0)}, 3, {v(vL)}
    v_bfe_u32 {v(vT1)}, {v(vL)}, 4, 1
    v_lshlrev_b32 {v(vT1)}, 2, {v(vT1)}
    v_and_b32 {v(vT2)}, 7, {v(vL)}
    v_xor_b32 {v(vT1)}, {v(vT1)}, {v(vT2)}
    v_lshlrev_b32 {v(vT1)}, 4, {v(vT1)}
    v_lshl_add_u32 {v(vWD)}, {v(vT0)}, 10, {v(vT1)}
    s_lshl_b32 {s(sT)}, {s(sJ)}, 7
    v_add_u32 {v(vWD)}, {s(sT)}, {v(vWD)}
    s_lshl_b32 {s(sT2)}, {s(sT64)}, 6
    s_lshl_b32 {s(sT3)}, {s(sTH)}, 5
    s_add_u32 {s(sT3)}, {s(sT3)}, {s(sT2)}
    v_add_u32 {v(vTOK)}, {s(sT3)}, {v(vI)}
    s_lshl_b32 {s(sT3)}, {s(sT3)}, 10
    s_add_u32 {s(sT3)}, {s(sT3)}, 0x{OF:x}
    v_lshl_add_u32 {v(vH[0])}, {v(vL)}, 4, {s(sT3)}
    v_xor_b32 {v(vH[1])}, 0x8000, {v(vH[0])}
    s_mov_b32 m0, {s(sRG)}
    s_and_b32 {s(sT)}, {s(sT64)}, 3
    s_lshl_b32 {s(sR1)}, {s(sT)}, 1
    s_add_u32 {s(sR1)}, {s(sR1)}, {s(sJ)}
    s_lshl_b32 {s(sB1)}, {s(sC)}, 3
    s_lshl_b32 {s(sT)}, s2, 14
    s_lshl_b32 {s(sT3)}, {s(sC)}, 12
    s_add_u32 {s(sT)}, {s(sT)}, {s(sT3)}
    s_add_u32 {s(sT)}, {s(sT)}, 0x{YB:x}
    v_lshlrev_b32 {v(vT0)}, 4, {v(vL)}
    s_waitcnt lgkmcnt(0)
    """)
    srd(a, sWO, pWO, 0, 0x80000)
    srd(a, sWS, pWS, 0, WS_USED)
    for st in range(8):
        a(f"""
        s_and_b32 {s(sR1)}, {s(sR1)}, 7
        s_add_u32 {s(sT3)}, {s(sR1)}, {s(sB1)}
        s_lshl_b32 {s(sT2)}, {s(sT3)}, 10
        s_lshl_b32 {s(sSO)}, {s(sT3)}, 14
        """)
        vm.op(f"buffer_load_dwordx4 {v(vWD)}, {s(sWO,4)}, {s(sSO)} offen lds", f"w{st}")
        a(f"s_add_u32 m0, m0, 1024")
        a(f"s_add_u32 {s(sSO)}, {s(sSO)}, 8192")
        vm.op(f"buffer_load_dwordx4 {v(vWD)}, {s(sWO,4)}, {s(sSO)} offen lds", f"w{st}")
        a(f"s_add_u32 m0, m0, 1024")
        a(f"s_add_u32 {s(sR1)}, {s(sR1)}, 1")
        for b in (0, 1):
            vm.op(f"buffer_load_dwordx4 {v(BIG+8*st+4*b,4)}, {v(vH[b])}, {s(sWS,4)}, {s(sT2)} offen", f"h{st}")
    Y = BIG+64
    for q in range(4): vm.op(f"buffer_load_dwordx4 {v(Y+4*q,4)}, {v(vT0)}, {s(sWS,4)}, {s(sT)} offen offset:{q*1024}", "y")
    srd(a, sOUT, pOUT, 0, 0x200000)
    a(f"""
    v_add_u32 {v(vDUMP)}, {s(sRG)}, {v(vT0)}
    v_bfe_u32 {v(vT1)}, {v(vL)}, 2, 2
    v_lshl_add_u32 {v(vT2)}, {v(vHI)}, 3, {v(vT1)}
    v_lshlrev_b32 {v(vT2)}, 7, {v(vT2)}
    v_lshrrev_b32 {v(vT1)}, 1, {v(vT1)}
    v_xor_b32 {v(vT1)}, {s(sFT)}, {v(vT1)}
    v_lshl_add_u32 {v(vT2)}, {v(vT1)}, 6, {v(vT2)}
    v_bfe_u32 {v(vT1)}, {v(vL)}, 4, 1
    v_lshl_add_u32 {v(vT2)}, {v(vT1)}, 5, {v(vT2)}
    v_and_b32 {v(vT1)}, 3, {v(vL)}
    v_lshl_add_u32 {v(vT2)}, {v(vT1)}, 3, {v(vT2)}
    v_add_u32 {v(vWA[0])}, {s(sRG)}, {v(vT2)}
    v_xor_b32 {v(vWA[1])}, 64, {v(vWA[0])}
    """)
    for u in (1, 2, 3):
        a(f"""
        s_xor_b32 {s(sT)}, {s(sC)}, {u}
        s_lshl_b32 {s(sT)}, {s(sT)}, 14
        s_add_u32 {s(sT)}, {s(sT)}, {u*4096}
        v_add_u32 {v(vRA[u-1])}, {s(sT)}, {v(vT0)}
        """)
    def treads(p, off):
        for f in (0, 1):
            a(f"ds_read_b64_tr_b16 {v(WF(p,f),2)}, {v(vWA[f])} offset:{off}")
            a(f"ds_read_b64_tr_b16 {v(WF(p,f)+2,2)}, {v(vWA[f])} offset:{off+512}")
    stamp(a, 1)
    vm.wait("w0"); treads(0, 0)
    stamp(a, 2)
    for st in range(8):
        if st < 7:
            vm.wait(f"w{st+1}", f"h{st}"); treads((st+1) & 1, (st+1)*2048); a("s_waitcnt lgkmcnt(4)")
        else:
            vm.wait("h7"); a("s_waitcnt lgkmcnt(0)")
        for u in (1, 2, 3, 0):
            a(f"v_mfma_f32_32x32x16_bf16 {v(ACC+16*u,16)}, {v(WF(st&1,u&1),4)}, {v(BIG+8*st+4*(u>>1),4)}, {'0' if st == 0 else v(ACC+16*u,16)}")
    a(f"""
    s_lshl_b32 {s(sT)}, {s(sJ)}, 7
    s_lshl_b32 {s(sT2)}, {s(sFT)}, 6
    s_add_u32 {s(sT)}, {s(sT)}, {s(sT2)}
    v_lshlrev_b32 {v(vT3)}, 10, {v(vTOK)}
    v_lshl_add_u32 {v(vT3)}, {v(vHI)}, 4, {v(vT3)}
    """)
    for u in (1, 2, 3):
        for q in range(4): a(f"ds_write_b128 {v(vDUMP)}, {v(ACC+16*u+4*q,4)} offset:{u*4096+q*1024}")
    stamp(a, 3)
    vm.wait("y")
    for j in range(16): a(f"v_add_f32 {v(ACC+j)}, {v(ACC+j)}, {v(Y+j)}")
    a("s_waitcnt lgkmcnt(0)")
    a("s_barrier")
    for u in (1, 2, 3):
        for q in range(4): a(f"ds_read_b128 {v(ACC+16*u+4*q,4)}, {v(vRA[u-1])} offset:{q*1024}")
    for u in (1, 2, 3):
        a(f"s_waitcnt lgkmcnt({4*(3-u)})")
        for j in range(16): a(f"v_add_f32 {v(ACC+j)}, {v(ACC+j)}, {v(ACC+16*u+j)}")
    for j in range(8): a(f"v_cvt_pk_bf16_f32 {v(Y+j)}, {v(ACC+2*j)}, {v(ACC+2*j+1)}")
    for b in (0, 1):
        a(f"v_permlane32_swap_b32 {v(Y+4*b)}, {v(Y+4*b+2)}")
        a(f"v_permlane32_swap_b32 {v(Y+4*b+1)}, {v(Y+4*b+3)}")
    for b in (0, 1): a(f"buffer_store_dwordx4 {v(Y+4*b,4)}, {v(vT3)}, {s(sOUT,4)}, {s(sT)} offen offset:{32*b}")
    stamp(a, 4)
    if PROF: a("s_waitcnt vmcnt(0)")
    stamp(a, 5)
    stamp_flush(a, 2, sC, pWS)
    a.label("K3_END")
    a("s_endpgm")
    lines, added = a.done()
    return kernel_text("k3_out_kernel", lines, 192)
```

```python
from common import *

SC_3, SC_S, SC_Q, SC_C, SC_3P = 0x20000, 0x24000, 0x24200, 0x24400, 0x24800

K1F = os.environ.get('K1F', '')

def gen_k1():
    a = Asm()
    sX, sW, sWS = 8, 12, 16
    pX, pQKV, pW1, pWS = 20, 22, 24, 26
    sW_, sTQ, sFH, sRB, sCB, sHB, sTY, sSTR, sCOL = 28, 29, 30, 31, 32, 33, 34, 35, 36
    sXO, sWO, sM0, sT, sT2, sCH, sSC, sBS, sBO, s8S, s64S = 37, 38, 39, 40, 41, 42, 43, 44, 45, 46, 47
    sP, pA, sKP, sCI, sXB, sPS, sPD, sPR, sNAT = 48, 52, 60, 61, 62, 63, 3, 4, 5
    pWO = 6
    vL, vT0, vT1, vT2, vT3 = 1, 2, 3, 4, 5
    vX0, vX1, vWD = 6, 7, 8
    vI, vHI, vPA, vPT = 9, 10, 11, 12
    XA = lambda st, k: 16 + st*4 + k
    WA = lambda st, ft: 24 + st*3 + ft
    SEL = 32
    XF = lambda p: 36 + 16*p
    WF = lambda p, ft: 40 + 16*p + 4*ft
    ACC = lambda ft: 84 + 16*ft
    GR = 116
    CSV = 124; PK = 156; TMP = 172
    vMEAN, vR, vR1, vOFF, vTA, vTB, vSUM, vSQ = 180, 182, 184, 185, 186, 187, 188, 189
    vC1, vC2, vONE, W3V = 190, 192, 194, 196
    a(f"""
    s_cmp_ge_u32 s2, 256
    s_cbranch_scc1 K1_END
    """)
    stamp_init(a); stamp(a, 0)
    a(f"""
    s_load_dwordx4 {s(pX,4)}, s[0:1], {A_X}
    s_load_dwordx2 {s(pW1,2)}, s[0:1], {B_W1}
    s_load_dwordx2 {s(pWS,2)}, s[0:1], {P_WS}
    s_load_dwordx2 {s(pWO,2)}, s[0:1], {A_WO}
    s_load_dwordx2 {s(pA,2)}, s[0:1], {B_W2}
    s_load_dwordx4 {s(pA+4,4)}, s[0:1], {B_W3}
    v_lshrrev_b32 {v(vT0)}, 6, v0
    v_and_b32 {v(vL)}, 63, v0
    v_readfirstlane_b32 {s(sW_)}, {v(vT0)}
    s_and_b32 {s(sT)}, s2, 3
    s_lshl_b32 {s(sRB)}, {s(sT)}, 2
    s_bfe_u32 {s(sT)}, s2, 0x20003
    s_add_u32 {s(sRB)}, {s(sRB)}, {s(sT)}
    s_lshl_b32 {s(sCH)}, {s(sT)}, 1
    s_bfe_u32 {s(sT)}, s2, 0x10002
    s_lshl_b32 {s(sCB)}, {s(sT)}, 3
    s_lshr_b32 {s(sT2)}, s2, 5
    s_add_u32 {s(sCB)}, {s(sCB)}, {s(sT2)}
    s_add_u32 {s(sCH)}, {s(sCH)}, {s(sT2)}
    s_and_b32 {s(sCH)}, {s(sCH)}, 7
    s_and_b32 {s(sTQ)}, {s(sW_)}, 3
    s_lshr_b32 {s(sFH)}, {s(sW_)}, 2
    s_mul_i32 {s(sT)}, {s(sFH)}, 24
    s_add_u32 {s(sHB)}, {s(sT)}, {s(sCB)}
    s_lshl_b32 {s(sT)}, {s(sCB)}, 1
    s_add_u32 {s(sT)}, {s(sT)}, {s(sFH)}
    s_sub_u32 {s(sT)}, {s(sT)}, 8
    s_cmp_lt_u32 {s(sCB)}, 8
    s_cselect_b32 {s(sHB)}, {s(sHB)}, {s(sT)}
    s_lshr_b32 {s(sTY)}, {s(sHB)}, 3
    s_lshl_b32 {s(sCOL)}, {s(sHB)}, 7
    s_sub_u32 {s(sT)}, {s(sCOL)}, 3072
    s_cmp_eq_u32 {s(sTY)}, 3
    s_cselect_b32 {s(sCOL)}, {s(sT)}, {s(sCOL)}
    s_mov_b32 {s(sSTR)}, 3072
    s_cmov_b32 {s(sSTR)}, 1024
    s_lshl_b32 {s(s8S)}, {s(sSTR)}, 3
    s_lshl_b32 {s(s64S)}, {s(sSTR)}, 6
    v_lshrrev_b32 {v(vT0)}, 3, {v(vL)}
    v_lshrrev_b32 {v(vT1)}, 4, {v(vL)}
    v_and_b32 {v(vT2)}, 7, {v(vL)}
    v_xor_b32 {v(vT3)}, {v(vT2)}, {v(vT1)}
    v_lshlrev_b32 {v(vT3)}, 4, {v(vT3)}
    s_lshl_b32 {s(sT)}, {s(sW_)}, 4
    v_add_u32 {v(vX0)}, {s(sT)}, {v(vT0)}
    v_lshl_add_u32 {v(vX0)}, {v(vX0)}, 10, {v(vT3)}
    v_xor_b32 {v(vX1)}, 64, {v(vX0)}
    v_add_u32 {v(vX1)}, 0x2000, {v(vX1)}
    v_and_b32 {v(vT1)}, 1, {v(vT1)}
    v_lshlrev_b32 {v(vT1)}, 2, {v(vT1)}
    v_xor_b32 {v(vT1)}, {v(vT1)}, {v(vT2)}
    v_lshlrev_b32 {v(vT1)}, 4, {v(vT1)}
    s_lshl_b32 {s(sT)}, {s(sTQ)}, 4
    v_add_u32 {v(vT3)}, {s(sT)}, {v(vT0)}
    v_mul_lo_u32 {v(vWD)}, {v(vT3)}, {s(sSTR)}
    v_add3_u32 {v(vWD)}, {v(vWD)}, {v(vT1)}, {s(sCOL)}
    s_lshl_b32 {s(sXB)}, {s(sRB)}, 17
    s_lshl_b32 {s(sM0)}, {s(sW_)}, 11
    s_waitcnt lgkmcnt(0)
    """)
    srd(a, sX, pX, 0, 0x200000)
    a(f"""
    s_cmp_eq_u32 {s(sTY)}, 3
    s_cselect_b32 {s(sW)}, {s(pW1)}, {s(pQKV)}
    s_cselect_b32 {s(sW+1)}, {s(pW1+1)}, {s(pQKV+1)}
    s_lshl_b32 {s(sW+2)}, {s(sSTR)}, 9
    s_mov_b32 {s(sW+3)}, 0x20000
    """)
    def dma(vm, c, i):
        sl = (c % 4)*32768
        if i == 0:
            a(f"""
            s_lshl_b32 {s(sXO)}, {s(sCH)}, 7
            s_add_u32 m0, {s(sM0)}, {sl}
            s_add_u32 {s(sXO)}, {s(sXO)}, {s(sXB)}
            """)
            vm.op(f"buffer_load_dwordx4 {v(vX0)}, {s(sX,4)}, {s(sXO)} offen lds", c)
        elif i == 1:
            a(f"s_add_u32 m0, {s(sM0)}, {sl+16384}")
            a(f"s_mul_i32 {s(sWO)}, {s(sCH)}, {s(s64S)}")
            vm.op(f"buffer_load_dwordx4 {v(vWD)}, {s(sW,4)}, {s(sWO)} offen lds", c)
        elif i == 2:
            a(f"s_add_u32 m0, {s(sM0)}, {sl+1024}")
            a(f"s_add_u32 {s(sCH)}, {s(sCH)}, 1")
            vm.op(f"buffer_load_dwordx4 {v(vX1)}, {s(sX,4)}, {s(sXO)} offen lds", c)
        else:
            a(f"s_add_u32 m0, {s(sM0)}, {sl+17408}")
            a(f"s_add_u32 {s(sWO)}, {s(sWO)}, {s(s8S)}")
            vm.op(f"buffer_load_dwordx4 {v(vWD)}, {s(sW,4)}, {s(sWO)} offen lds", c)
            a(f"s_and_b32 {s(sCH)}, {s(sCH)}, 7")
    vm0 = VM(a)
    stamp(a, 1)
    for i in range(4): dma(vm0, 0, i)
    srd(a, sWS, pWS, 0, WS_USED)
    a(f"""
    s_mul_i32 {s(sKP)}, s2, 2979
    s_lshr_b32 {s(sKP)}, {s(sKP)}, 16
    s_mul_i32 {s(sT)}, {s(sKP)}, 22
    s_sub_u32 {s(sCI)}, s2, {s(sT)}
    s_mov_b64 {s(sP,2)}, {s(pA+4,2)}
    s_mov_b32 {s(sP+2)}, {512*2752}
    s_mov_b32 {s(sP+3)}, 0x20000
    s_mov_b32 {s(sPR)}, 2752
    s_mov_b32 {s(sPD)}, 0x{W3F:x}
    s_mov_b32 {s(sT2)}, 44
    s_mov_b32 {s(sNAT)}, 0
    s_cmp_lt_u32 s2, 88
    s_cbranch_scc1 K1_JOB
    s_and_b32 {s(sCI)}, s2, 7
    s_mov_b32 {s(sPR)}, 1024
    s_mov_b32 {s(sT2)}, 16
    s_mov_b32 {s(sP+2)}, 0x80000
    s_sub_u32 {s(sKP)}, s2, 88
    s_mov_b64 {s(sP,2)}, {s(pA,2)}
    s_mov_b32 {s(sPD)}, 0x{W2F:x}
    s_cmp_lt_u32 s2, 120
    s_cbranch_scc1 K1_JOBS
    s_sub_u32 {s(sKP)}, s2, 120
    s_mov_b64 {s(sP,2)}, {s(pWO,2)}
    s_mov_b32 {s(sPD)}, 0x{WOF:x}
    s_mov_b32 {s(sNAT)}, 1
    s_cmp_lt_u32 s2, 152
    s_cbranch_scc1 K1_JOBS
    s_sub_u32 {s(sKP)}, s2, 152
    s_mov_b64 {s(sP,2)}, {s(pA+6,2)}
    s_mov_b32 {s(sP+2)}, {1376*1024}
    s_mov_b32 {s(sPD)}, 0x{W4F:x}
    s_mov_b32 {s(sNAT)}, 0
    s_cmp_lt_u32 s2, 240
    s_cbranch_scc1 K1_JOBS
    s_mov_b32 {s(sPD)}, 0x40000000
    """)
    a.label("K1_JOBS")
    a(f"s_lshr_b32 {s(sKP)}, {s(sKP)}, 3")
    a.label("K1_JOB")
    a(f"""
    s_lshl_b32 {s(sT)}, {s(sKP)}, 3
    s_add_u32 {s(sT)}, {s(sT)}, {s(sW_)}
    s_mul_i32 {s(sT2)}, {s(sT2)}, {s(sT)}
    s_lshl_b32 {s(sPS)}, {s(sCI)}, 1
    s_add_u32 {s(sT2)}, {s(sT2)}, {s(sPS)}
    s_lshl_b32 {s(sT2)}, {s(sT2)}, 10
    s_add_u32 {s(sPD)}, {s(sPD)}, {s(sT2)}
    s_mul_i32 {s(sT)}, {s(sT)}, {s(sPR)}
    s_lshl_b32 {s(sT)}, {s(sT)}, 4
    s_lshl_b32 {s(sPS)}, {s(sCI)}, 7
    s_add_u32 {s(sPS)}, {s(sPS)}, {s(sT)}
    v_mul_lo_u32 {v(vPA)}, {v(vT0)}, {s(sPR)}
    v_add_u32 {v(vPA)}, {v(vPA)}, {v(vT1)}
    s_lshl_b32 {s(sPR)}, {s(sPR)}, 3
    s_add_u32 {s(sPR)}, {s(sPR)}, {s(sPS)}
    """)
    a("s_barrier")
    for i in range(4): dma(vm0, 1, i)
    a(f"""
    v_and_b32 {v(vI)}, 31, {v(vL)}
    v_lshrrev_b32 {v(vHI)}, 5, {v(vL)}
    s_lshl_b32 {s(sT)}, {s(sTQ)}, 5
    v_add_u32 {v(vT0)}, {s(sT)}, {v(vI)}
    v_lshlrev_b32 {v(vT0)}, 7, {v(vT0)}
    v_bfe_u32 {v(vT1)}, {v(vI)}, 1, 3
    v_xor_b32 {v(vT1)}, {v(vT1)}, {v(vHI)}
    v_bfe_u32 {v(vT2)}, {v(vL)}, 2, 2
    v_lshlrev_b32 {v(vT3)}, 7, {v(vT2)}
    v_lshrrev_b32 {v(vT2)}, 1, {v(vT2)}
    v_lshl_add_u32 {v(vT3)}, {v(vT2)}, 6, {v(vT3)}
    v_bfe_u32 {v(vT2)}, {v(vL)}, 4, 1
    v_lshl_add_u32 {v(vT3)}, {v(vT2)}, 5, {v(vT3)}
    v_and_b32 {v(vTB)}, 15, {v(vL)}
    v_cmp_eq_u32 vcc, {v(vTB)}, {v(vT2)}
    v_and_b32 {v(vT2)}, 3, {v(vL)}
    v_lshl_add_u32 {v(vT3)}, {v(vT2)}, 3, {v(vT3)}
    v_lshl_add_u32 {v(vTB)}, {v(vHI)}, 10, {v(vT3)}
    v_mov_b32 {v(vT2)}, 0x{ONES:x}
    v_cndmask_b32 {v(SEL)}, 0, {v(vT2)}, vcc
    s_add_u32 {s(sT)}, {s(sNAT)}, 9
    v_lshlrev_b32 {v(vPT)}, {s(sT)}, {v(vHI)}
    s_lshl_b32 {s(sT)}, {s(sW_)}, 11
    s_add_u32 {s(sT)}, {s(sT)}, 0x{SC_3:x}
    v_add3_u32 {v(vPT)}, {v(vPT)}, {v(vT3)}, {s(sT)}
    s_lshl_b32 {s(sT)}, {s(sFH)}, 13
    s_add_u32 {s(sT)}, {s(sT)}, 16384
    v_add_u32 {v(WA(0,0))}, {s(sT)}, {v(vTB)}
    v_xor_b32 {v(WA(0,1))}, 64, {v(WA(0,0))}
    s_and_b32 {s(sT)}, {s(sTQ)}, 1
    s_lshl_b32 {s(sT)}, {s(sT)}, 13
    s_add_u32 {s(sT)}, {s(sT)}, 16384
    s_lshr_b32 {s(sT2)}, {s(sTQ)}, 1
    s_lshl_b32 {s(sT2)}, {s(sT2)}, 6
    v_xor_b32 {v(WA(0,2))}, {s(sT2)}, {v(vTB)}
    v_add_u32 {v(WA(0,2))}, {s(sT)}, {v(WA(0,2))}
    v_mov_b32 {v(SEL+1)}, {v(SEL)}
    v_mov_b32 {v(SEL+2)}, {v(SEL)}
    v_mov_b32 {v(SEL+3)}, {v(SEL)}
    v_mov_b32 {v(GR)}, 0
    """)
    for k in range(4):
        a(f"v_xor_b32 {v(vT2)}, {2*k}, {v(vT1)}")
        a(f"v_lshl_add_u32 {v(XA(0,k))}, {v(vT2)}, 4, {v(vT0)}")
    for k in range(4): a(f"v_add_u32 {v(XA(1,k))}, 65536, {v(XA(0,k))}")
    for ft in range(3): a(f"v_add_u32 {v(WA(1,ft))}, 65536, {v(WA(0,ft))}")
    stamp(a, 2)
    def body(fh):
        vm = VM(a); vm.q = list(vm0.q)
        nr = 5 + 2*fh
        def reads(n):
            c, k = divmod(n, 4); sl = c % 4; st = sl >> 1; o = (sl & 1)*32768; p = n % 3
            a(f"ds_read_b128 {v(XF(p),4)}, {v(XA(st,k))} offset:{o}")
            for ft in range(2+fh):
                a(f"ds_read_b64_tr_b16 {v(WF(p,ft),2)}, {v(WA(st,ft))} offset:{o+k*2048}")
                a(f"ds_read_b64_tr_b16 {v(WF(p,ft)+2,2)}, {v(WA(st,ft))} offset:{o+k*2048+512}")
        def compute(n):
            p = n % 3
            z = lambda r, w: "0" if n == 0 else v(r, w)
            if fh == 0:
                for j in range(4): a(f"v_dot2_f32_bf16 {v(GR)}, {v(XF(p)+j)}, {v(XF(p)+j)}, {v(GR)}")
            for ft in (0, 1):
                a(f"v_mfma_f32_32x32x16_bf16 {v(ACC(ft),16)}, {v(WF(p,ft),4)}, {v(XF(p),4)}, {z(ACC(ft),16)}")
            if fh == 1:
                a(f"v_mfma_f32_16x16x32_bf16 {v(GR,4)}, {v(SEL,4)}, {v(XF(p),4)}, {z(GR,4)}")
                a(f"v_mfma_f32_16x16x32_bf16 {v(GR+4,4)}, {v(SEL,4)}, {v(WF(p,2),4)}, {z(GR+4,4)}")
        sched = {0: [(2, 0), (2, 1)], 1: [(2, 2), (2, 3)]}
        for c in range(5):
            for i in range(4): sched[4*c+2+i] = [(c+3, i)]
        vm.wait(0)
        a("s_barrier")
        stamp(a, 3)
        reads(0); reads(1)
        extra = 0
        for n in range(32):
            c, k = divmod(n, 4)
            if k == 2 and c < 7:
                vm.wait(c+1)
                a("s_barrier")
                stamp(a, 4+c)
            if n < 30: reads(n+2)
            a(f"s_waitcnt lgkmcnt({min(15, nr*min(2, 31-n))})")
            compute(n)
            for cc, i in sched.get(n, []): dma(vm, cc, i)
            if n == 21:
                vm.op(f"buffer_load_dwordx4 {v(W3V,4)}, {v(vPA)}, {s(sP,4)}, {s(sPS)} offen", "p")
                vm.op(f"buffer_load_dwordx4 {v(W3V+4,4)}, {v(vPA)}, {s(sP,4)}, {s(sPR)} offen", "p")
        stamp(a, 11)
        if fh == 0:
            halves_sum(a, GR, vT1)
            a(f"""
            s_lshl_b32 {s(sT)}, {s(sTQ)}, 7
            s_add_u32 {s(sT)}, {s(sT)}, 0x{SC_Q:x}
            v_lshl_add_u32 {v(vT0)}, {v(vI)}, 2, {s(sT)}
            ds_write_b32 {v(vT0)}, {v(GR)}
            """)
        else:
            a(f"""
            s_lshl_b32 {s(sT)}, {s(sTQ)}, 7
            s_add_u32 {s(sT)}, {s(sT)}, 0x{SC_S:x}
            v_lshl_add_u32 {v(vT0)}, {v(vL)}, 2, {s(sT)}
            s_and_b32 {s(sT)}, {s(sTQ)}, 1
            s_lshl_b32 {s(sT)}, {s(sT)}, 8
            s_lshr_b32 {s(sT2)}, {s(sTQ)}, 1
            s_lshl_b32 {s(sT2)}, {s(sT2)}, 7
            s_add_u32 {s(sT)}, {s(sT)}, {s(sT2)}
            s_add_u32 {s(sT)}, {s(sT)}, 0x{SC_C:x}
            v_lshl_add_u32 {v(vT1)}, {v(vL)}, 2, {s(sT)}
            s_mov_b64 exec, 0xffff
            ds_write_b32 {v(vT0)}, {v(GR)}
            ds_write_b32 {v(vT0)}, {v(GR+1)} offset:64
            ds_write_b32 {v(vT1)}, {v(GR+4)}
            ds_write_b32 {v(vT1)}, {v(GR+5)} offset:64
            s_mov_b64 exec, -1
            """)
    a(f"""
    s_cmp_eq_u32 {s(sFH)}, 1
    s_cbranch_scc1 K1_B1
    """)
    body(0)
    a("s_branch K1_JOIN")
    a.label("K1_B1")
    body(1)
    a.label("K1_JOIN")
    a(f"""
    s_lshl_b32 {s(sT)}, {s(sW_)}, 11
    s_add_u32 {s(sT)}, {s(sT)}, 0x{SC_3:x}
    v_lshl_add_u32 {v(vT0)}, {v(vL)}, 4, {s(sT)}
    s_lshl_b32 {s(sT)}, {s(sTQ)}, 7
    s_add_u32 {s(sT)}, {s(sT)}, 0x{SC_S:x}
    v_lshl_add_u32 {v(vT1)}, {v(vI)}, 2, {s(sT)}
    s_lshl_b32 {s(sT)}, {s(sFH)}, 8
    s_add_u32 {s(sT)}, {s(sT)}, 0x{SC_C:x}
    v_lshl_add_u32 {v(vT2)}, {v(vHI)}, 4, {s(sT)}
    s_waitcnt vmcnt(0) lgkmcnt(0)
    s_barrier
    ds_read_b32 {v(vSUM)}, {v(vT1)}
    ds_read_b32 {v(vSQ)}, {v(vT1)} offset:{SC_Q-SC_S}
    """)
    for ft in (0, 1):
        for q in range(4): a(f"ds_read_b128 {v(CSV+16*ft+4*q,4)}, {v(vT2)} offset:{128*ft+32*q}")
    a(f"""
    ds_write_b128 {v(vT0)}, {v(W3V,4)}
    ds_write_b128 {v(vT0)}, {v(W3V+4,4)} offset:1024
    s_cmp_eq_u32 {s(sTY)}, 0
    s_cselect_b32 {s(sSC)}, {fl(0.25*LOG2E)}, 1.0
    s_lshl_b32 {s(sT2)}, {s(sRB)}, 2
    s_add_u32 {s(sT2)}, {s(sT2)}, {s(sTQ)}
    v_mov_b32 {v(vTB)}, {fl(1/512)}
    s_lshr_b32 {s(sT)}, 1024, {s(sNAT)}
    v_add_u32 {v(vT0)}, {s(sT)}, {v(vPT)}
    v_xor_b32 {v(vT1)}, 64, {v(vPT)}
    v_xor_b32 {v(vT2)}, 64, {v(vT0)}
    s_waitcnt lgkmcnt(10)
    v_mul_f32 {v(vMEAN)}, {v(vTB)}, {v(vSUM)}
    v_mul_f32 {v(vTA)}, {v(vMEAN)}, {v(vMEAN)}
    v_fma_f32 {v(vTA)}, {v(vSQ)}, {v(vTB)}, -{v(vTA)}
    v_max_f32 {v(vTA)}, 0, {v(vTA)}
    v_add_f32 {v(vTB)}, {fl(EPS)}, {v(vTA)}
    v_rsq_f32 {v(vR1)}, {v(vTB)}
    s_cmp_lg_u32 {s(sTY)}, 3
    v_mul_f32 {v(vR)}, {s(sSC)}, {v(vR1)}
    s_cbranch_scc1 K1_NOR2
    v_mul_f32 {v(vTB)}, {v(vR1)}, {v(vR1)}
    v_fmaak_f32 {v(vTB)}, {v(vTB)}, {v(vTA)}, {fl(EPS)}
    v_rsq_f32 {v(vTB)}, {v(vTB)}
    v_mov_b32 {v(vC1)}, {fl(-GC1)}
    v_mov_b32 {v(vC1+1)}, {fl(-GC1)}
    v_mov_b32 {v(vC2)}, {fl(-GC2)}
    v_mov_b32 {v(vC2+1)}, {fl(-GC2)}
    v_mov_b32 {v(vONE)}, 1.0
    v_mov_b32 {v(vONE+1)}, 1.0
    v_mul_f32 {v(vR)}, {v(vR1)}, {v(vTB)}
    """)
    a.label("K1_NOR2")
    a(f"""
    s_cmp_lg_u32 {s(sHB)}, 0
    s_cbranch_scc1 K1_NOST
    s_lshl_b32 {s(sT)}, {s(sT2)}, 8
    s_add_u32 {s(sT)}, {s(sT)}, 0x{ST1:x}
    v_lshlrev_b32 {v(vTA)}, 3, {v(vI)}
    v_mov_b32 {v(PK)}, {v(vMEAN)}
    v_mov_b32 {v(PK+1)}, {v(vR1)}
    buffer_store_dwordx2 {v(PK,2)}, {v(vTA)}, {s(sWS,4)}, {s(sT)} offen
    """)
    a.label("K1_NOST")
    a(f"""
    v_sub_f32 {v(vMEAN)}, 0, {v(vMEAN)}
    v_mov_b32 {v(vR+1)}, {v(vR)}
    v_mov_b32 {v(vMEAN+1)}, {v(vMEAN)}
    s_waitcnt lgkmcnt(0)
    ds_read_b64_tr_b16 {v(W3V,2)}, {v(vPT)}
    ds_read_b64_tr_b16 {v(W3V+2,2)}, {v(vT0)}
    ds_read_b64_tr_b16 {v(W3V+4,2)}, {v(vT1)}
    ds_read_b64_tr_b16 {v(W3V+6,2)}, {v(vT2)}
    """)
    for j in range(0, 32, 2): a(f"v_pk_fma_f32 {v(ACC(0)+j,2)}, {v(CSV+j,2)}, {v(vMEAN,2)}, {v(ACC(0)+j,2)}")
    for j in range(0, 32, 2): a(f"v_pk_mul_f32 {v(ACC(0)+j,2)}, {v(ACC(0)+j,2)}, {v(vR,2)}")
    a(f"""
    v_lshlrev_b32 {v(vT3)}, 4, {v(vL)}
    s_and_b32 {s(sT)}, {s(sHB)}, 7
    s_cmp_eq_u32 {s(sTY)}, 3
    s_cbranch_scc1 K1_H
    """)
    for j in range(16): a(f"v_cvt_pk_bf16_f32 {v(PK+j)}, {v(ACC(0)+2*j)}, {v(ACC(0)+2*j+1)}")
    a(f"""
    s_cmp_eq_u32 {s(sTY)}, 0
    s_cbranch_scc1 K1_Q
    s_mov_b32 {s(sBS)}, 0x20000
    s_lshl_b32 {s(sBO)}, {s(sT)}, 19
    s_lshl_b32 {s(sT)}, {s(sT2)}, 11
    s_add_u32 {s(sBO)}, {s(sBO)}, {s(sT)}
    s_add_u32 {s(sBO)}, {s(sBO)}, 0x{KVF:x}
    s_cmp_eq_u32 {s(sTY)}, 2
    s_cbranch_scc1 K1_V
    v_and_b32 {v(vOFF)}, 0x33, {v(vL)}
    v_bfe_u32 {v(vTA)}, {v(vL)}, 2, 1
    v_lshl_add_u32 {v(vOFF)}, {v(vTA)}, 3, {v(vOFF)}
    v_bfe_u32 {v(vTA)}, {v(vL)}, 3, 1
    v_lshl_add_u32 {v(vOFF)}, {v(vTA)}, 2, {v(vOFF)}
    v_lshlrev_b32 {v(vOFF)}, 4, {v(vOFF)}
    s_branch K1_STORE
    """)
    a.label("K1_V")
    a(f"""
    s_add_u32 {s(sBO)}, {s(sBO)}, 1024
    s_lshl_b32 {s(sT)}, {s(sW_)}, 12
    v_lshlrev_b32 {v(vTA)}, 5, {v(vI)}
    v_lshl_add_u32 {v(vTA)}, {v(vHI)}, 4, {v(vTA)}
    v_add_u32 {v(vTA)}, {s(sT)}, {v(vTA)}
    """)
    for b in range(4): a(f"ds_write_b128 {v(vTA)}, {v(PK+4*b,4)} offset:{1024*b}")
    a(f"""
    v_bfe_u32 {v(vTB)}, {v(vL)}, 4, 1
    v_lshlrev_b32 {v(vOFF)}, 9, {v(vTB)}
    v_lshl_add_u32 {v(vTA)}, {v(vHI)}, 7, {v(vOFF)}
    v_and_b32 {v(vTB)}, 15, {v(vL)}
    v_lshl_add_u32 {v(vTA)}, {v(vTB)}, 3, {v(vTA)}
    v_add_u32 {v(vTA)}, {s(sT)}, {v(vTA)}
    v_lshl_add_u32 {v(vOFF)}, {v(vHI)}, 8, {v(vOFF)}
    v_lshl_add_u32 {v(vOFF)}, {v(vTB)}, 4, {v(vOFF)}
    s_waitcnt lgkmcnt(0)
    """)
    for b in range(4):
        a(f"ds_read_b64_tr_b16 {v(PK+4*b,2)}, {v(vTA)} offset:{1024*b}")
        a(f"ds_read_b64_tr_b16 {v(PK+4*b+2,2)}, {v(vTA)} offset:{1024*b+256}")
    a("s_waitcnt lgkmcnt(0)")
    a("s_branch K1_STORE")
    a.label("K1_Q")
    a(f"""
    s_mov_b32 {s(sBS)}, 0x10000
    s_lshl_b32 {s(sBO)}, {s(sT)}, 18
    s_lshl_b32 {s(sT)}, {s(sT2)}, 10
    s_add_u32 {s(sBO)}, {s(sBO)}, {s(sT)}
    v_mov_b32 {v(vOFF)}, {v(vT3)}
    """)
    a.label("K1_STORE")
    for b in range(4):
        a(f"buffer_store_dwordx4 {v(PK+4*b,4)}, {v(vOFF)}, {s(sWS,4)}, {s(sBO)} offen {K1F}")
        if b < 3: a(f"s_add_u32 {s(sBO)}, {s(sBO)}, {s(sBS)}")
    a("s_branch K1_PACK")
    a.label("K1_H")
    a(f"""
    s_lshl_b32 {s(sBO)}, {s(sT)}, 12
    s_lshl_b32 {s(sT)}, {s(sT2)}, 15
    s_add_u32 {s(sBO)}, {s(sBO)}, {s(sT)}
    s_add_u32 {s(sBO)}, {s(sBO)}, 0x{HF:x}
    """)
    for g in range(4):
        gelu_pk(a, [ACC(0)+8*g+j for j in range(8)], [TMP+j for j in range(8)], vC1, vC2, vONE)
        for j in range(4): a(f"v_cvt_pk_bf16_f32 {v(PK+4*g+j)}, {v(ACC(0)+8*g+2*j)}, {v(ACC(0)+8*g+2*j+1)}")
        a(f"buffer_store_dwordx4 {v(PK+4*g,4)}, {v(vT3)}, {s(sWS,4)}, {s(sBO)} offen offset:{1024*g} {K1F}")
    a.label("K1_PACK")
    stamp(a, 12)
    a(f"""
    s_waitcnt lgkmcnt(0)
    buffer_store_dwordx4 {v(W3V,4)}, {v(vT3)}, {s(sWS,4)}, {s(sPD)} offen {K1F}
    buffer_store_dwordx4 {v(W3V+4,4)}, {v(vT3)}, {s(sWS,4)}, {s(sPD)} offen offset:1024 {K1F}
    s_cmp_ge_u32 s2, 88
    s_cbranch_scc1 K1_FIN
    v_mfma_f32_16x16x32_bf16 {v(TMP,4)}, {v(SEL,4)}, {v(W3V,4)}, 0
    v_mfma_f32_16x16x32_bf16 {v(TMP+4,4)}, {v(SEL,4)}, {v(W3V+4,4)}, 0
    s_lshl_b32 {s(sT)}, {s(sW_)}, 8
    s_add_u32 {s(sT)}, {s(sT)}, 0x{SC_3P:x}
    v_lshl_add_u32 {v(vT0)}, {v(vL)}, 2, {s(sT)}
    s_mov_b64 exec, 0xffff
    ds_write_b32 {v(vT0)}, {v(TMP)}
    ds_write_b32 {v(vT0)}, {v(TMP+1)} offset:64
    ds_write_b32 {v(vT0)}, {v(TMP+4)} offset:128
    ds_write_b32 {v(vT0)}, {v(TMP+5)} offset:192
    s_mov_b64 exec, -1
    s_waitcnt lgkmcnt(0)
    s_barrier
    s_cmp_lg_u32 {s(sW_)}, 1
    s_cbranch_scc1 K1_NOCS3
    v_lshlrev_b32 {v(vT0)}, 2, {v(vL)}
    v_add_u32 {v(vT1)}, 0x{SC_3P:x}, {v(vT0)}
    """)
    for w in range(8): a(f"ds_read_b32 {v(TMP+w)}, {v(vT1)} offset:{256*w}")
    a(f"""
    s_mul_i32 {s(sT)}, {s(sKP)}, 6144
    s_lshl_b32 {s(sT2)}, {s(sCI)}, 8
    s_add_u32 {s(sT)}, {s(sT)}, {s(sT2)}
    s_add_u32 {s(sT)}, {s(sT)}, 0x{CS3P:x}
    s_waitcnt lgkmcnt(0)
    """)
    for w in range(1, 8): a(f"v_add_f32 {v(TMP)}, {v(TMP)}, {v(TMP+w)}")
    a(f"buffer_store_dword {v(TMP)}, {v(vT0)}, {s(sWS,4)}, {s(sT)} offen")
    a.label("K1_NOCS3")
    a(f"""
    s_or_b32 {s(sT)}, s2, {s(sW_)}
    s_cmp_lg_u32 {s(sT)}, 0
    s_cbranch_scc1 K1_FIN
    v_mov_b32 {v(TMP)}, 0
    v_mov_b32 {v(TMP+1)}, 0
    v_mov_b32 {v(TMP+2)}, 0
    v_mov_b32 {v(TMP+3)}, 0
    s_mov_b32 {s(sT)}, 0x{FLG:x}
    s_add_u32 {s(sT2)}, {s(sT)}, 4096
    """)
    for j in range(8): a(f"buffer_store_dwordx4 {v(TMP,4)}, {v(vT3)}, {s(sWS,4)}, {s(sT if j < 4 else sT2)} offen offset:{(j&3)*1024}")
    a.label("K1_FIN")
    if PROF: a("s_waitcnt vmcnt(0)")
    stamp(a, 13)
    stamp_flush(a, 0, sW_, pWS)
    a.label("K1_END")
    a("s_endpgm")
    lines, added = a.done()
    return kernel_text("k1_proj_kernel", lines, 204)
```

```python
from common import *

TB = 2080
PROG_A = 16*TB
PROG_B = PROG_A + 1024
CNT_B = PROG_B + 1024
CS3L = CNT_B + 64
BR = 36*1024
DUMP = BR + 72*1024
K2_LDS = BR + 120*1024
SPIN = 400000
LDF = os.environ.get('LDF', 'sc1')
STF = os.environ.get('STF', 'sc1')
PSL = int(os.environ.get('PSL', 2))
ONEPOLL = int(os.environ.get('ONEPOLL', 1))
OUTF = os.environ.get('OUTF', '')

def attention(a):
    sKV, sQO = 8, 12
    sW, sHD, sQB, sT, sT2, sKO, sM, sNEED, sIT, sEX = 28, 29, 30, 31, 32, 33, 34, 35, 36, 38
    vL, vIDX, vKA, vV0, vV1, vPW, vPR, vPROG, vC, vT0, vT1, vOO = 1, 2, 3, 4, 5, 6, 7, 8, 9, 10, 11, 12
    Sa, Sb, Oa, Ob, Ma, Mb, Qa, Qb = 16, 32, 48, 64, 80, 96, 112, 116
    K = [120, 124]; V = [128, 136]
    pWS = 26
    a(f"""
    s_and_b32 {s(sT)}, s2, 7
    s_lshl_b32 {s(sHD)}, {s(sT)}, 2
    s_bfe_u32 {s(sT)}, s2, 0x20003
    s_add_u32 {s(sHD)}, {s(sHD)}, {s(sT)}
    s_lshr_b32 {s(sQB)}, s2, 5
    v_lshlrev_b32 {v(vKA)}, 4, {v(vL)}
    s_lshl_b32 {s(sT)}, {s(sHD)}, 17
    s_add_u32 {s(sT)}, {s(sT)}, 0x{KVF:x}
    s_lshl_b32 {s(sKO)}, {s(sW)}, 11
    s_lshl_b32 {s(sT2)}, {s(sQB)}, 14
    s_add_u32 {s(sKO)}, {s(sKO)}, {s(sT2)}
    s_mul_i32 {s(sM)}, {s(sW)}, {TB}
    s_waitcnt lgkmcnt(0)
    s_add_u32 {s(sKV)}, {s(pWS)}, {s(sT)}
    s_addc_u32 {s(sKV+1)}, {s(pWS+1)}, 0
    s_mov_b32 {s(sKV+2)}, 0x20000
    s_mov_b32 {s(sKV+3)}, 0x20000
    """)
    def dma(slot):
        return [f"s_add_u32 m0, {s(sM)}, {slot*4*TB}",
                f"s_nop 0",
                f"buffer_load_dwordx4 {v(vKA)}, {s(sKV,4)}, {s(sKO)} offen lds",
                f"buffer_load_dwordx4 {v(vKA)}, {s(sKV,4)}, {s(sKO)} offen offset:1024 lds",
                f"s_add_u32 {s(sKO)}, {s(sKO)}, 8192",
                f"s_and_b32 {s(sKO)}, {s(sKO)}, 0x1ffff"]
    for l in dma(0): a(l)
    srd(a, sQO, pWS, 0, WS_USED)
    a(f"""
    s_lshl_b32 {s(sT)}, {s(sHD)}, 16
    s_lshl_b32 {s(sT2)}, {s(sQB)}, 13
    s_add_u32 {s(sT)}, {s(sT)}, {s(sT2)}
    s_lshl_b32 {s(sT2)}, {s(sW)}, 11
    s_add_u32 {s(sT)}, {s(sT)}, {s(sT2)}
    buffer_load_dwordx4 {v(Qa,4)}, {v(vKA)}, {s(sQO,4)}, {s(sT)} offen
    buffer_load_dwordx4 {v(Qb,4)}, {v(vKA)}, {s(sQO,4)}, {s(sT)} offen offset:1024
    """)
    for l in dma(1) + dma(2): a(l)
    a(f"""
    v_mov_b32 {v(vIDX)}, 0xdddddddd
    v_and_b32 {v(vT0)}, 15, {v(vL)}
    v_lshrrev_b32 {v(vT1)}, 5, {v(vL)}
    v_lshlrev_b32 {v(vV0)}, 4, {v(vT0)}
    v_lshl_add_u32 {v(vV0)}, {v(vT1)}, 8, {v(vV0)}
    v_add_u32 {v(vV0)}, 1024, {v(vV0)}
    v_add_u32 {v(vV1)}, 512, {v(vV0)}
    v_and_b32 {v(vPR)}, 11, {v(vL)}
    v_cmp_eq_u32 vcc, 0, {v(vPR)}
    v_mov_b32 {v(vPW)}, 2048
    v_mov_b32 {v(vC)}, 2064
    v_cndmask_b32 {v(vC)}, {v(vC)}, {v(vPW)}, vcc
    v_and_b32 {v(vPR)}, 16, {v(vL)}
    v_cmp_ne_u32 vcc, 0, {v(vPR)}
    v_mov_b32 {v(V[1]+4)}, 0
    v_mov_b32 {v(V[1]+5)}, 0
    v_cndmask_b32 {v(vV0)}, {v(vV0)}, {v(vC)}, vcc
    v_cndmask_b32 {v(vV1)}, {v(vV1)}, {v(vC)}, vcc
    v_mov_b32 {v(V[1]+6)}, 0
    v_mov_b32 {v(V[1]+7)}, 0
    v_mul_u32_u24 {v(vT0)}, {TB}, {v(vT0)}
    v_mov_b32 {v(V[0])}, 0x{ONES:x}
    v_mov_b32 {v(V[0]+1)}, 0x{ONES:x}
    v_mov_b32 {v(V[0]+2)}, 0x{ONES:x}
    v_mov_b32 {v(V[0]+3)}, 0x{ONES:x}
    ds_write_b128 {v(vT0)}, {v(V[0],4)} offset:2048
    ds_write_b128 {v(vT0)}, {v(V[1]+4,4)} offset:2064
    s_lshl_b32 {s(sT)}, {s(sW)}, 8
    v_lshl_add_u32 {v(vPW)}, {v(vL)}, 2, {s(sT)}
    v_and_b32 {v(vPR)}, 3, {v(vL)}
    v_lshlrev_b32 {v(vPR)}, 8, {v(vPR)}
    v_lshl_add_u32 {v(vPR)}, {v(vL)}, 2, {v(vPR)}
    v_mov_b32 {v(vPROG)}, 0
    ds_write_b32 {v(vPW)}, {v(vPROG)} offset:{PROG_A}
    v_mov_b32 {v(vPROG)}, 1
    s_waitcnt lgkmcnt(0)
    s_barrier
    """)
    for j in range(9):
        a(f"v_mov_b32 {v(Oa+j)}, 0"); a(f"v_mov_b32 {v(Ob+j)}, 0")
    a(f"""
    s_mov_b32 {s(sNEED)}, 2
    s_mov_b32 {s(sIT)}, 4
    s_mov_b32 {s(sT)}, {SPIN}
    s_waitcnt vmcnt(4)
    ds_write_b32 {v(vPW)}, {v(vPROG)} offset:{PROG_A}
    """)
    a.label("AT_W0")
    a(f"""
    ds_read_b32 {v(vC)}, {v(vPR)} offset:{PROG_A}
    s_sub_u32 {s(sT)}, {s(sT)}, 1
    s_cmp_eq_u32 {s(sT)}, 0
    s_cbranch_scc1 AT_X0
    s_waitcnt lgkmcnt(0)
    v_cmp_gt_u32 vcc, 1, {v(vC)}
    s_cbranch_vccnz AT_W0
    """)
    a.label("AT_X0")
    stamp(a, 1)
    if os.environ.get("NOATT"): a("s_endpgm")
    a(f"""
    ds_read_b128 {v(K[0],4)}, {v(vKA)}
    ds_read_b128 {v(V[0],4)}, {v(vV0)}
    ds_read_b128 {v(V[0]+4,4)}, {v(vV1)}
    s_waitcnt lgkmcnt(2)
    v_mfma_f32_32x32x16_bf16 {v(Sa,16)}, {v(K[0],4)}, {v(Qa,4)}, 0
    v_mfma_f32_32x32x16_bf16 {v(Sb,16)}, {v(K[0],4)}, {v(Qb,4)}, 0
    """)
    def rowmax(S, dst, first=True):
        if first: a(f"v_max3_f32 {v(dst)}, {v(S)}, {v(S+1)}, {v(S+2)}")
        else: a(f"v_max3_f32 {v(dst)}, {v(dst)}, {v(S)}, {v(S+1)}"); a(f"v_max_f32 {v(dst)}, {v(dst)}, {v(S+2)}")
        for j in range(3, 15, 2): a(f"v_max3_f32 {v(dst)}, {v(dst)}, {v(S+j)}, {v(S+j+1)}")
        a(f"v_max_f32 {v(dst)}, {v(dst)}, {v(S+15)}")
    def spread(M, t):
        a(f"v_mov_b32 {v(t)}, {v(M)}")
        a(f"v_permlane32_swap_b32 {v(M)}, {v(t)}")
        a(f"v_max_f32 {v(t)}, {v(M)}, {v(t)}")
        for j in range(16): a(f"v_sub_f32 {v(M+j)}, 0, {v(t)}")
    rowmax(Sa, Ma); spread(Ma, vT0)
    a(f"v_mfma_f32_32x32x16_bf16 {v(Sa,16)}, {v(K[0],4)}, {v(Qa,4)}, {v(Ma,16)}")
    rowmax(Sb, Mb); spread(Mb, vT1)
    for j in range(8): a(f"v_mov_b32 {v(Sb+8+j)}, 0")
    pv = lambda O, Vr, S: f"v_smfmac_f32_32x32x32_bf16 {v(O,16)}, {v(Vr,4)}, {v(S,8)}, {v(vIDX)}"
    qk = lambda S, Kr, Q, M: f"v_mfma_f32_32x32x16_bf16 {v(S,16)}, {v(Kr,4)}, {v(Q,4)}, {v(M,16)}"
    stamp(a, 2)
    if os.environ.get("DIAG"):
        for r_ in range(40, 52): a(f"s_mov_b32 s{r_}, 0")
    a(".p2align 6")
    a.label("AT_LOOP")
    for t in range(16):
        p = t & 1; q = p ^ 1; j = t & 3; nx = ((t+1) % 16)*TB
        A = {2: [pv(Ob, V[q]+4, Sb+8), "s_waitcnt lgkmcnt(0)"], 6: [qk(Sb, K[p], Qb, Mb), f"ds_read_b128 {v(V[q],4)}, {v(vV0)} offset:{nx}"],
             11: [pv(Oa, V[p], Sa), f"ds_read_b128 {v(V[q]+4,4)}, {v(vV1)} offset:{nx}"]}
        B = {2: [pv(Oa, V[p]+4, Sa+8), "s_waitcnt lgkmcnt(2)"], 6: [qk(Sa, K[q], Qa, Ma)], 11: [pv(Ob, V[p], Sb)]}
        if j == 3:
            A[2] += [f"v_cmp_gt_u32 vcc, {s(sNEED)}, {v(vC)}", f"s_cbranch_vccnz AT_SPIN{t}", f"AT_BACK{t}:"]
            d = dma(((t >> 2) + 3) & 3)
            B[6] += [d[0], f"s_add_u32 {s(sNEED)}, {s(sNEED)}, 1", d[2]]
            B[11] += [d[3], d[4], d[5]]
        A[2] += [f"ds_read_b128 {v(K[q],4)}, {v(vKA)} offset:{nx}"]
        if j == 0:
            B[6] += [f"v_add_u32 {v(vPROG)}, 1, {v(vPROG)}"]
            B[11] += ["s_waitcnt vmcnt(2)", f"ds_write_b32 {v(vPW)}, {v(vPROG)} offset:{PROG_A}"]
        if t == 5:
            B[6] += [f"s_cmp_eq_u32 {s(sIT)}, 1", f"s_cselect_b32 {s(sKV+2)}, 0, {s(sKV+2)}"]
        if j == 2:
            B[11] += [f"ds_read_b32 {v(vC)}, {v(vPR)} offset:{PROG_A}"]
        if os.environ.get("DIAG"):
            if j == 3:
                B[6] = [B[6][0], "s_memtime s[40:41]"] + B[6][1:] + ["s_memtime s[42:43]"]
                B[11] = [B[11][0], "s_memtime s[44:45]"] + B[11][1:] + ["s_memtime s[46:47]"]
            if j == 0:
                A[2] = A[2][:2] + ["s_sub_u32 s42, s42, s40", "s_add_u32 s74, s74, s42", "s_sub_u32 s46, s46, s44", "s_add_u32 s76, s76, s46"] + A[2][2:]
                B[11] = [B[11][0], "s_memtime s[48:49]", B[11][1], "s_memtime s[50:51]"] + B[11][2:]
            if j == 1:
                A[2] = A[2][:2] + ["s_sub_u32 s50, s50, s48", "s_add_u32 s78, s78, s50"] + A[2][2:]
        if t == 15:
            B[14] = [f"s_sub_u32 {s(sIT)}, {s(sIT)}, 1", f"s_cmp_lg_u32 {s(sIT)}, 0"]
        for S, ins in ((Sa, A), (Sb, B)):
            for i in range(16):
                for l in ins.get(i, []): a(l)
                a(f"v_exp_f32 {v(S+i)}, {v(S+i)}")
    a("s_cbranch_scc1 AT_LOOP")
    a("s_nop 0")
    a(pv(Ob, V[1]+4, Sb+8))
    stamp(a, 3)
    a.label("AT_FIN")
    a("s_nop 7")
    for O, t in ((Oa, vT0), (Ob, vT1)):
        a(f"v_max3_f32 {v(t)}, abs({v(O)}), abs({v(O+1)}), {v(O+8)}")
        for j in range(2, 8, 2): a(f"v_max3_f32 {v(t)}, abs({v(O+j)}), abs({v(O+j+1)}), {v(t)}")
    a(f"""
    v_max_f32 {v(vT0)}, {v(vT0)}, {v(vT1)}
    v_cmp_nlt_f32 vcc, {v(vT0)}, {v(vBIG)}
    s_cmp_eq_u32 {s(sIT)}, 0
    s_cselect_b64 vcc, vcc, 0
    s_cbranch_vccnz AT_SLOW
    v_rcp_f32 {v(vT0)}, {v(Oa+8)}
    v_rcp_f32 {v(vT1)}, {v(Ob+8)}
    s_lshl_b32 {s(sT)}, {s(sHD)}, 10
    s_lshl_b32 {s(sT2)}, {s(sQB)}, 18
    s_add_u32 {s(sT)}, {s(sT)}, {s(sT2)}
    s_lshl_b32 {s(sT2)}, {s(sW)}, 16
    s_add_u32 {s(sT)}, {s(sT)}, {s(sT2)}
    s_add_u32 {s(sT)}, {s(sT)}, 0x{OF:x}
    s_add_u32 {s(sT2)}, {s(sT)}, 0x8000
    """)
    for O, t, o in ((Oa, vT0, sT), (Ob, vT1, sT2)):
        for j in range(8): a(f"v_mul_f32 {v(O+j)}, {v(O+j)}, {v(t)}")
        for j in range(4): a(f"v_cvt_pk_bf16_f32 {v(O+j)}, {v(O+2*j)}, {v(O+2*j+1)}")
        a(f"buffer_store_dwordx4 {v(O,4)}, {v(vKA)}, {s(sQO,4)}, {s(o)} offen sc1")
    a(f"""
    s_lshl_b32 {s(sT)}, {s(sQB)}, 2
    s_add_u32 {s(sT)}, {s(sT)}, {s(sW)}
    s_lshl_b32 {s(sT)}, {s(sT)}, 7
    s_add_u32 {s(sT)}, {s(sT)}, 0x{FLG+4096:x}
    v_mov_b32 {v(vT0)}, 1
    v_mov_b32 {v(vT1)}, 0
    s_mov_b64 exec, 1
    s_waitcnt vmcnt(0)
    buffer_atomic_add {v(vT0)}, {v(vT1)}, {s(sQO,4)}, {s(sT)} offen sc1
    """)
    stamp(a, 4)
    stamp_flush(a, 1, sW, pWS)
    a("s_endpgm")
    for t in (3, 7, 11, 15):
        a.label(f"AT_SPIN{t}")
        a(f"s_mov_b32 {s(sT)}, {SPIN}")
        a.label(f"AT_SPINL{t}")
        if os.environ.get("DIAG"): a("s_add_u32 s80, s80, 1")
        a(f"""
        ds_read_b32 {v(vC)}, {v(vPR)} offset:{PROG_A}
        s_sub_u32 {s(sT)}, {s(sT)}, 1
        s_cmp_eq_u32 {s(sT)}, 0
        s_cbranch_scc1 AT_BACK{t}
        s_waitcnt lgkmcnt(0)
        v_cmp_gt_u32 vcc, {s(sNEED)}, {v(vC)}
        s_cbranch_vccnz AT_SPINL{t}
        s_branch AT_BACK{t}
        """)
    a.label("AT_SLOW")
    a(f"""
    s_mov_b32 {s(sIT)}, 1
    s_mov_b32 {s(sKV+2)}, 0x20000
    s_mov_b32 {s(sKO)}, 0
    v_mov_b32 {v(Ma)}, 0xff800000
    v_mov_b32 {v(Mb)}, 0xff800000
    s_waitcnt vmcnt(0) lgkmcnt(0)
    """)
    a.label("AT_SLOW1")
    a(f"""
    buffer_load_dwordx4 {v(K[0],4)}, {v(vKA)}, {s(sKV,4)}, {s(sKO)} offen
    s_add_u32 {s(sKO)}, {s(sKO)}, 2048
    s_waitcnt vmcnt(0)
    v_mfma_f32_32x32x16_bf16 {v(Sa,16)}, {v(K[0],4)}, {v(Qa,4)}, 0
    v_mfma_f32_32x32x16_bf16 {v(Sb,16)}, {v(K[0],4)}, {v(Qb,4)}, 0
    """)
    rowmax(Sa, Ma, False); rowmax(Sb, Mb, False)
    a(f"""
    s_cmp_lt_u32 {s(sKO)}, 0x20000
    s_cbranch_scc1 AT_SLOW1
    """)
    spread(Ma, vT0); spread(Mb, vT1)
    for j in range(9):
        a(f"v_mov_b32 {v(Oa+j)}, 0"); a(f"v_mov_b32 {v(Ob+j)}, 0")
    for j in range(8): a(f"v_mov_b32 {v(V[0]+j)}, 0x{ONES:x}")
    a(f"""
    s_mov_b32 {s(sKO)}, 0
    s_mov_b32 {s(sEX)}, 0xffff
    s_mov_b32 {s(sEX+1)}, 0xffff
    """)
    a.label("AT_SLOW2")
    a(f"""
    buffer_load_dwordx4 {v(K[0],4)}, {v(vKA)}, {s(sKV,4)}, {s(sKO)} offen
    s_mov_b64 exec, {s(sEX,2)}
    buffer_load_dwordx4 {v(V[0],4)}, {v(vV0)}, {s(sKV,4)}, {s(sKO)} offen
    buffer_load_dwordx4 {v(V[0]+4,4)}, {v(vV1)}, {s(sKV,4)}, {s(sKO)} offen
    s_mov_b64 exec, -1
    s_add_u32 {s(sKO)}, {s(sKO)}, 2048
    s_waitcnt vmcnt(0)
    """)
    a(qk(Sa, K[0], Qa, Ma)); a(qk(Sb, K[0], Qb, Mb))
    for S in (Sa, Sb):
        for i in range(16): a(f"v_exp_f32 {v(S+i)}, {v(S+i)}")
    a(pv(Oa, V[0], Sa)); a(pv(Oa, V[0]+4, Sa+8)); a(pv(Ob, V[0], Sb)); a(pv(Ob, V[0]+4, Sb+8))
    a(f"""
    s_cmp_lt_u32 {s(sKO)}, 0x20000
    s_cbranch_scc1 AT_SLOW2
    s_nop 3
    s_branch AT_FIN
    """)
vBIG = 13

def chain(a, pfx="CH"):
    vm = VM(a)
    PRIO = os.environ.get("PRIO", 2)
    sH, sX, sWS, sOUT = 8, 12, 40, 44
    pX, pOUT, pWS = 16, 18, 26
    sW, sC, sTG, sM16, sT64, sJ, sT, sT2, sT3, sSO, sFL, sNB, sFT, sTH = 28, 29, 30, 31, 32, 33, 34, 35, 36, 37, 38, 39, 48, 49
    sR1, sR2, sB1, sB2, sTT, sWB, sROT = 50, 51, 52, 53, 54, 55, 56
    vL, vI, vHI, vT0, vT1, vT2, vT3 = 1, 2, 3, 4, 5, 6, 7
    vPW, vPR, vPROG, vC, vDUMP, vTOK = 9, 10, 11, 12, 14, 15
    vWA = [16, 17]; vRA = [18, 19, 20]; vH = [21, 22]; vXO, vSTO, vZ = 23, 24, 25
    v3A = [26, 27]; vL16 = 28
    ACC = 32
    WF = lambda p, f: 96 + 12*p + 4*f
    BIG = 120
    XR, STv = 248, 252
    lo = lambda: a("s_setprio 0")
    hi = lambda: a(f"s_setprio {PRIO}")
    a(f"""
    s_sub_u32 {s(sC)}, {s(sW)}, 4
    s_lshl_b32 {s(sT)}, {s(sC)}, 8
    v_lshl_add_u32 {v(vPW)}, {v(vL)}, 2, {s(sT)}
    v_mov_b32 {v(vPROG)}, 0
    v_mov_b32 {v(vZ)}, 0
    ds_write_b32 {v(vPW)}, {v(vPROG)} offset:{PROG_B}
    ds_write_b32 {v(vZ)}, {v(vZ)} offset:{CNT_B}
    ds_write_b32 {v(vZ)}, {v(vZ)} offset:{CNT_B+4}
    s_and_b32 {s(sT)}, s2, 7
    s_lshl_b32 {s(sTG)}, {s(sT)}, 1
    s_bfe_u32 {s(sT2)}, s2, 0x10003
    s_add_u32 {s(sTG)}, {s(sTG)}, {s(sT2)}
    s_lshr_b32 {s(sM16)}, s2, 4
    s_and_b32 {s(sT)}, {s(sM16)}, 1
    s_lshl_b32 {s(sT64)}, {s(sTG)}, 1
    s_add_u32 {s(sT64)}, {s(sT64)}, {s(sT)}
    s_lshr_b32 {s(sJ)}, {s(sM16)}, 1
    s_and_b32 {s(sFT)}, {s(sC)}, 1
    s_lshr_b32 {s(sTH)}, {s(sC)}, 1
    s_lshl_b32 {s(sTT)}, {s(sT64)}, 1
    s_add_u32 {s(sTT)}, {s(sTT)}, {s(sTH)}
    v_and_b32 {v(vI)}, 31, {v(vL)}
    v_lshrrev_b32 {v(vHI)}, 5, {v(vL)}
    v_lshlrev_b32 {v(vL16)}, 4, {v(vL)}
    s_lshl_b32 {s(sT)}, {s(sJ)}, 1
    s_add_u32 {s(sT)}, {s(sT)}, {s(sFT)}
    s_lshl_b32 {s(sT)}, {s(sT)}, 10
    v_add_u32 {v(vWA[0])}, {s(sT)}, {v(vL16)}
    v_xor_b32 {v(vWA[1])}, 1024, {v(vWA[0])}
    s_add_u32 {s(sT)}, {s(sTH)}, 1
    s_sub_u32 {s(sT2)}, 0, {s(sT)}
    s_cmp_eq_u32 {s(sFT)}, 0
    s_cselect_b32 {s(sT)}, {s(sT2)}, {s(sT)}
    s_lshl_b32 {s(sT3)}, {s(sTT)}, 5
    v_add_u32 {v(vTOK)}, {s(sT3)}, {v(vI)}
    v_mov_b32 {v(vT3)}, 0x40000000
    """)
    for b in (0, 1):
        a(f"""
        v_xor_b32 {v(vT0)}, {32*b}, {v(vTOK)}
        v_add_u32 {v(vT0)}, {s(sT)}, {v(vT0)}
        v_cmp_gt_u32 vcc, 0x800, {v(vT0)}
        v_lshrrev_b32 {v(vT1)}, 5, {v(vT0)}
        v_and_b32 {v(vT0)}, 31, {v(vT0)}
        v_lshlrev_b32 {v(vT0)}, 4, {v(vT0)}
        v_lshl_add_u32 {v(vT0)}, {v(vT1)}, 15, {v(vT0)}
        v_lshl_add_u32 {v(vT0)}, {v(vHI)}, 9, {v(vT0)}
        v_cndmask_b32 {v(vH[b])}, {v(vT3)}, {v(vT0)}, vcc
        """)
    a(f"""
    s_and_b32 {s(sT)}, {s(sT64)}, 3
    s_lshl_b32 {s(sROT)}, {s(sT)}, 1
    s_add_u32 {s(sROT)}, {s(sROT)}, {s(sJ)}
    s_mov_b32 {s(sR1)}, {s(sROT)}
    s_lshl_b32 {s(sB1)}, {s(sC)}, 3
    s_waitcnt lgkmcnt(0)
    """)
    srd(a, sWS, pWS, 0, WS_USED)
    srd(a, sH, pWS, HF, 0x200000)
    a("s_barrier")
    def rot8(r):
        a(f"""
        s_and_b32 {s(r)}, {s(r)}, 7
        s_add_u32 {s(sT)}, {s(r)}, {s(sB1)}
        s_add_u32 {s(r)}, {s(r)}, 1
        """)
    def wload(dst, base, tag):
        a(f"s_lshl_b32 {s(sSO)}, {s(sT)}, 14")
        a(f"s_add_u32 {s(sSO)}, {s(sSO)}, 0x{base:x}")
        for f in (0, 1): vm.op(f"buffer_load_dwordx4 {v(dst+4*f,4)}, {v(vWA[f])}, {s(sWS,4)}, {s(sSO)} offen", tag)
    def load1(st):
        rot8(sR1)
        a(f"s_lshl_b32 {s(sT2)}, {s(sT)}, 10")
        wload(BIG+16*st, W2F, f"a{st}")
        for b in (0, 1): vm.op(f"buffer_load_dwordx4 {v(BIG+16*st+8+4*b,4)}, {v(vH[b])}, {s(sH,4)}, {s(sT2)} offen", f"a{st}")
    load1(0); load1(1)
    srd(a, sX, pX, 0, 0x200000)
    srd(a, sOUT, pOUT, 0, 0x200000)
    a(f"""
    v_lshlrev_b32 {v(vXO)}, 10, {v(vTOK)}
    v_lshl_add_u32 {v(vXO)}, {v(vHI)}, 4, {v(vXO)}
    s_lshl_b32 {s(sT)}, {s(sJ)}, 7
    s_lshl_b32 {s(sT2)}, {s(sFT)}, 6
    s_add_u32 {s(sT)}, {s(sT)}, {s(sT2)}
    v_add_u32 {v(vXO)}, {s(sT)}, {v(vXO)}
    v_lshlrev_b32 {v(vSTO)}, 3, {v(vTOK)}
    v_add_u32 {v(v3A[0])}, {BR}, {v(vL16)}
    v_add_u32 {v(v3A[1])}, {BR+49152}, {v(vL16)}
    s_mul_i32 {s(sT)}, {s(sC)}, 12288
    s_add_u32 {s(sT)}, {s(sT)}, {DUMP}
    v_add_u32 {v(vDUMP)}, {s(sT)}, {v(vL16)}
    """)
    for u in (1, 2, 3):
        a(f"""
        s_xor_b32 {s(sT)}, {s(sC)}, {u}
        s_mul_i32 {s(sT)}, {s(sT)}, 12288
        s_add_u32 {s(sT)}, {s(sT)}, {DUMP + (u-1)*4096}
        v_add_u32 {v(vRA[u-1])}, {s(sT)}, {v(vL16)}
        """)
    a(f"""
    v_and_b32 {v(vPR)}, 3, {v(vL)}
    v_lshlrev_b32 {v(vPR)}, 8, {v(vPR)}
    v_lshl_add_u32 {v(vPR)}, {v(vL)}, 2, {v(vPR)}
    s_lshl_b32 {s(sFL)}, {s(sTG)}, 7
    s_add_u32 {s(sFL)}, {s(sFL)}, 0x{FLG:x}
    s_mov_b32 {s(sNB)}, 0
    s_and_b32 {s(sT)}, {s(sTG)}, 1
    s_lshl_b32 {s(sT)}, {s(sT)}, 2
    s_lshl_b32 {s(sR2)}, {s(sM16)}, 1
    s_add_u32 {s(sR2)}, {s(sR2)}, {s(sT)}
    s_mul_i32 {s(sWB)}, {s(sM16)}, 3072
    s_add_u32 {s(sWB)}, {s(sWB)}, 0x{W3F:x}
    """)
    nlab = [0]
    def arrive():
        a(f"""
        v_add_u32 {v(vPROG)}, 1, {v(vPROG)}
        s_add_u32 {s(sNB)}, {s(sNB)}, 1
        s_waitcnt lgkmcnt(0)
        ds_write_b32 {v(vPW)}, {v(vPROG)} offset:{PROG_B}
        """)
    def await_(prog=PROG_B, need=None, sleep=0):
        n = nlab[0]; nlab[0] += 1
        a(f"s_mov_b32 {s(sT)}, {SPIN}")
        a.label(f"{pfx}_W{n}")
        if sleep: a(f"s_sleep {sleep}")
        a(f"""
        ds_read_b32 {v(vC)}, {v(vPR)} offset:{prog}
        s_sub_u32 {s(sT)}, {s(sT)}, 1
        s_cmp_eq_u32 {s(sT)}, 0
        s_cbranch_scc1 {pfx}_X{n}
        s_waitcnt lgkmcnt(0)
        v_cmp_gt_u32 vcc, {s(sNB) if need is None else need}, {v(vC)}
        s_cbranch_vccnz {pfx}_W{n}
        """)
        a.label(f"{pfx}_X{n}")
        a("s_waitcnt lgkmcnt(0)")
    def signal(k):
        n = nlab[0]; nlab[0] += 1
        a(f"""
        s_mov_b64 exec, 1
        v_mov_b32 {v(vT0)}, 1
        ds_add_rtn_u32 {v(vT1)}, {v(vZ)}, {v(vT0)} offset:{CNT_B+4*k}
        s_add_u32 {s(sT2)}, {s(sFL)}, {2048*k}
        s_waitcnt lgkmcnt(0)
        v_cmp_ne_u32 vcc, 3, {v(vT1)}
        s_cbranch_vccnz {pfx}_S{n}
        buffer_atomic_add {v(vT0)}, {v(vZ)}, {s(sWS,4)}, {s(sT2)} offen sc1
        """)
        a.label(f"{pfx}_S{n}")
        a("s_mov_b64 exec, -1")
    def poll(count):
        n = nlab[0]; nlab[0] += 1
        if ONEPOLL:
            a(f"s_cmp_lg_u32 {s(sC)}, 0")
            a(f"s_cbranch_scc1 {pfx}_Q{n}")
        a(f"s_mov_b32 {s(sT)}, {SPIN}")
        a("s_mov_b64 exec, 1")
        a.label(f"{pfx}_P{n}")
        a(f"""
        buffer_load_dword {v(vC)}, {v(vZ)}, {s(sWS,4)}, {s(sT2)} offen sc1
        s_sub_u32 {s(sT)}, {s(sT)}, 1
        s_cmp_eq_u32 {s(sT)}, 0
        s_cbranch_scc1 {pfx}_Q{n}
        s_waitcnt vmcnt(0)
        v_cmp_gt_u32 vcc, {count}, {v(vC)}
        s_cbranch_vccz {pfx}_Q{n}
        s_sleep {PSL}
        s_branch {pfx}_P{n}
        """)
        a.label(f"{pfx}_Q{n}")
        a("s_mov_b64 exec, -1")
        a("s_waitcnt vmcnt(0)")
        vm.q = []
        if ONEPOLL:
            arrive(); await_(sleep=1)
    def mm4(wreg, breg, first, keep0):
        for u in (1, 2, 3, 0):
            c = "0" if (first and not (keep0 and u == 0)) else v(ACC+16*u, 16)
            a(f"v_mfma_f32_32x32x16_bf16 {v(ACC+16*u,16)}, {v(wreg+4*(u&1),4)}, {v(breg+4*(u>>1),4)}, {c}")
    def reduce4(between=None):
        for u in (1, 2, 3):
            for q in range(4): a(f"ds_write_b128 {v(vDUMP)}, {v(ACC+16*u+4*q,4)} offset:{(u-1)*4096+q*1024}")
        arrive()
        if between: between()
        await_()
        for u in (1, 2, 3):
            for q in range(4): a(f"ds_read_b128 {v(ACC+16*u+4*q,4)}, {v(vRA[u-1])} offset:{q*1024}")
        for u in (1, 2, 3):
            a(f"s_waitcnt lgkmcnt({4*(3-u)})")
            for j in range(0, 16, 2): a(f"v_pk_add_f32 {v(ACC+j,2)}, {v(ACC+j,2)}, {v(ACC+16*u+j,2)}")
    def w3dma(slot0, per, i):
        a(f"""
        s_mul_i32 {s(sT)}, {s(sC)}, {per}
        s_add_u32 {s(sT)}, {s(sT)}, {slot0+i}
        s_add_u32 {s(sT2)}, {s(sT)}, {s(sR2)}
        s_and_b32 {s(sT2)}, {s(sT2)}, 31
        s_mul_i32 {s(sT)}, {s(sT)}, 3072
        s_add_u32 m0, {s(sT)}, {BR}
        s_mul_i32 {s(sT2)}, {s(sT2)}, {44*1024}
        s_add_u32 {s(sT2)}, {s(sT2)}, {s(sWB)}
        """)
        for f in range(3): vm.op(f"buffer_load_dwordx4 {v(vL16)}, {s(sWS,4)}, {s(sT2)} offen offset:{1024*f} lds", "w3")
    if os.environ.get("NOCHAIN"): a("s_endpgm")
    stamp(a, 1)
    XA, XB, C3 = WF(0, 0), WF(0, 1), WF(0, 2)
    for st in range(8):
        if st+2 < 8: load1(st+2)
        if st == 6:
            a(f"""
            s_mov_b32 {s(sT2)}, 0x{ST1:x}
            s_mul_i32 {s(sT)}, {s(sM16)}, 384
            s_add_u32 {s(sT)}, {s(sT)}, 0x{CS3P:x}
            v_lshlrev_b32 {v(vC)}, 3, {v(vL)}
            """)
            vm.op(f"buffer_load_dwordx4 {v(XA,4)}, {v(vXO)}, {s(sX,4)}, 0 offen", "x")
            vm.op(f"buffer_load_dwordx4 {v(XB,4)}, {v(vXO)}, {s(sX,4)}, 0 offen offset:32", "x")
            vm.op(f"buffer_load_dwordx2 {v(STv,2)}, {v(vSTO)}, {s(sWS,4)}, {s(sT2)} offen", "x")
            for kp in range(4):
                vm.op(f"buffer_load_dwordx2 {v(C3+2*kp,2)}, {v(vC)}, {s(sWS,4)}, {s(sT)} offen", "x")
                if kp < 3: a(f"s_add_u32 {s(sT)}, {s(sT)}, 6144")
        if st == 7: w3dma(0, 2, 0); w3dma(0, 2, 1)
        vm.wait(f"a{st}")
        mm4(BIG+16*st, BIG+16*st+8, st == 0, False)
    hi()
    stamp(a, 2)
    XF = BIG
    def resid():
        vm.wait("x")
        a(f"""
        v_pk_add_f32 {v(C3,2)}, {v(C3,2)}, {v(C3+2,2)}
        v_pk_add_f32 {v(C3+4,2)}, {v(C3+4,2)}, {v(C3+6,2)}
        v_lshlrev_b32 {v(vT0)}, 3, {v(vL)}
        v_pk_add_f32 {v(C3,2)}, {v(C3,2)}, {v(C3+4,2)}
        v_permlane32_swap_b32 {v(XA)}, {v(XA+2)}
        v_permlane32_swap_b32 {v(XA+1)}, {v(XA+3)}
        ds_write_b64 {v(vT0)}, {v(C3,2)} offset:{CS3L}
        v_permlane32_swap_b32 {v(XB)}, {v(XB+2)}
        v_permlane32_swap_b32 {v(XB+1)}, {v(XB+3)}
        v_mul_f32 {v(STv)}, {v(STv)}, {v(STv+1)}
        v_sub_f32 {v(STv+2)}, 0, {v(STv)}
        v_sub_f32 {v(STv+3)}, 0, {v(STv)}
        v_mov_b32 {v(STv)}, {v(STv+1)}
        """)
        for j in range(8):
            a(f"v_lshlrev_b32 {v(XF+2*j)}, 16, {v(XA+j)}")
            a(f"v_and_b32 {v(XF+2*j+1)}, 0xffff0000, {v(XA+j)}")
        for j in range(0, 16, 2): a(f"v_pk_fma_f32 {v(XF+16+j,2)}, {v(XF+j,2)}, {v(STv,2)}, {v(STv+2,2)}")
        for j in range(0, 16, 2): a(f"v_pk_add_f32 {v(ACC+j,2)}, {v(ACC+j,2)}, {v(XF+16+j,2)}")
    reduce4(resid)
    stamp(a, 3)
    arrive()
    for j in range(8): a(f"v_cvt_pk_bf16_f32 {v(XF+16+j)}, {v(ACC+2*j)}, {v(ACC+2*j+1)}")
    a(f"""
    s_lshl_b32 {s(sT3)}, {s(sJ)}, 1
    s_add_u32 {s(sT3)}, {s(sT3)}, {s(sFT)}
    s_lshl_b32 {s(sT)}, {s(sT3)}, 11
    s_lshl_b32 {s(sT2)}, {s(sTT)}, 15
    s_add_u32 {s(sT)}, {s(sT)}, {s(sT2)}
    s_add_u32 {s(sT)}, {s(sT)}, 0x{X1F:x}
    """)
    vm.op(f"buffer_store_dwordx4 {v(XF+16,4)}, {v(vL16)}, {s(sWS,4)}, {s(sT)} offen {STF}", "st")
    vm.op(f"buffer_store_dwordx4 {v(XF+20,4)}, {v(vL16)}, {s(sWS,4)}, {s(sT)} offen offset:1024 {STF}", "st")
    a(f"v_pk_add_f32 {v(XR,2)}, {v(ACC,2)}, {v(ACC+2,2)}")
    a(f"v_pk_mul_f32 {v(XR+2,2)}, {v(ACC,2)}, {v(ACC,2)}")
    a(f"v_pk_fma_f32 {v(XR+2,2)}, {v(ACC+2,2)}, {v(ACC+2,2)}, {v(XR+2,2)}")
    for j in range(4, 16, 2):
        a(f"v_pk_add_f32 {v(XR,2)}, {v(XR,2)}, {v(ACC+j,2)}")
        a(f"v_pk_fma_f32 {v(XR+2,2)}, {v(ACC+j,2)}, {v(ACC+j,2)}, {v(XR+2,2)}")
    a(f"v_add_f32 {v(XR)}, {v(XR)}, {v(XR+1)}")
    a(f"v_add_f32 {v(XR+1)}, {v(XR+2)}, {v(XR+3)}")
    halves_sum(a, XR, vT0); halves_sum(a, XR+1, vT1)
    a(f"""
    s_lshl_b32 {s(sT)}, {s(sT3)}, 14
    s_add_u32 {s(sT)}, {s(sT)}, 0x{ST2:x}
    """)
    vm.op(f"buffer_store_dwordx2 {v(XR,2)}, {v(vSTO)}, {s(sWS,4)}, {s(sT)} offen {STF}", "st")
    for j in range(0, 16, 2): a(f"v_pk_add_f32 {v(ACC+j,2)}, {v(ACC+j,2)}, {v(XF+j,2)}")
    await_()
    stamp(a, 4)
    vm.wait("st")
    stamp(a, 5)
    signal(0)
    lo()
    for i in range(6): w3dma(8, 6, i)
    a(f"""
    s_lshl_b32 {s(sT)}, {s(sTG)}, 7
    s_lshl_b32 {s(sT2)}, {s(sC)}, 5
    s_add_u32 {s(sT)}, {s(sT)}, {s(sT2)}
    v_add_u32 {v(vT3)}, {s(sT)}, {v(vI)}
    v_lshlrev_b32 {v(vT3)}, 3, {v(vT3)}
    v_lshl_add_u32 {v(vT3)}, {v(vHI)}, 17, {v(vT3)}
    s_lshl_b32 {s(sB2)}, {s(sT)}, 10
    s_add_u32 {s(sB2)}, {s(sB2)}, 0x{X1F:x}
    s_mov_b32 {s(sT2)}, {s(sFL)}
    """)
    stamp(a, 6)
    poll(16)
    if not ONEPOLL: arrive()
    stamp(a, 7)
    A3 = ACC+16; S2 = WF(1, 0) - 4
    def xload(kb):
        a(f"""
        s_and_b32 {s(sR2)}, {s(sR2)}, 31
        s_lshl_b32 {s(sT)}, {s(sR2)}, 10
        s_add_u32 {s(sT)}, {s(sT)}, {s(sB2)}
        s_add_u32 {s(sR2)}, {s(sR2)}, 1
        """)
        vm.op(f"buffer_load_dwordx4 {v(BIG+4*kb,4)}, {v(vL16)}, {s(sWS,4)}, {s(sT)} offen {LDF}", f"x{kb}")
    LA = 8
    a(f"s_mov_b32 {s(sT2)}, 0x{ST2:x}")
    for t in range(8):
        vm.op(f"buffer_load_dwordx2 {v(S2+2*t,2)}, {v(vT3)}, {s(sWS,4)}, {s(sT2)} offen {LDF}", "s2")
        a(f"s_add_u32 {s(sT2)}, {s(sT2)}, 0x4000")
    for kb in range(LA): xload(kb)
    hi()
    if not ONEPOLL: await_()
    vm.wait("s2")
    for t in range(1, 8): a(f"v_pk_add_f32 {v(S2,2)}, {v(S2,2)}, {v(S2+2*t,2)}")
    a(f"v_mov_b32 {v(XR)}, {v(S2)}")
    a(f"v_mov_b32 {v(XR+2)}, {v(S2+1)}")
    def t3(kb):
        for f in range(3): a(f"ds_read_b128 {v(WF(kb&1,f),4)}, {v(v3A[kb>>4])} offset:{(kb&15)*3072+1024*f}")
    t3(0)
    halves_sum(a, XR, vT0); halves_sum(a, XR+2, vT1)
    a(f"""
    v_mul_f32 {v(XR)}, {fl(-1/512)}, {v(XR)}
    v_mul_f32 {v(vT0)}, {v(XR)}, {v(XR)}
    v_mov_b32 {v(vT1)}, {fl(1/512)}
    v_fma_f32 {v(vT0)}, {v(XR+2)}, {v(vT1)}, -{v(vT0)}
    v_max_f32 {v(vT0)}, 0, {v(vT0)}
    v_add_f32 {v(vT0)}, {fl(EPS)}, {v(vT0)}
    v_rsq_f32 {v(XR+2)}, {v(vT0)}
    v_mov_b32 {v(XR+1)}, {v(XR)}
    v_mov_b32 {v(XR+3)}, {v(XR+2)}
    """)
    lo()
    for kb in range(32):
        if kb < 31: t3(kb+1)
        if kb+LA < 32: xload(kb+LA)
        vm.wait(f"x{kb}")
        a(f"s_waitcnt lgkmcnt({3 if kb < 31 else 0})")
        for f in range(3):
            a(f"v_mfma_f32_32x32x16_bf16 {v(A3+16*f,16)}, {v(WF(kb&1,f),4)}, {v(BIG+4*kb,4)}, {'0' if kb == 0 else v(A3+16*f,16)}")
    hi()
    stamp(a, 8)
    NW, NG = 10, 5
    WR = lambda st: 96 + 8*(st % NW)
    GR = lambda st: 176 + 8*(st % NG)
    CSV = 176; PK = 216; TMP = 240; vC1, vC2, vONE = STv, STv+2, 8
    a(f"""
    s_and_b32 {s(sT)}, {s(sT64)}, 3
    s_mul_i32 {s(sT)}, {s(sT)}, 5
    s_mul_i32 {s(sR1)}, {s(sJ)}, 3
    s_add_u32 {s(sR1)}, {s(sR1)}, {s(sT)}
    s_sub_u32 {s(sT)}, {s(sR1)}, 22
    s_cmp_ge_u32 {s(sR1)}, 22
    s_cselect_b32 {s(sR1)}, {s(sT)}, {s(sR1)}
    s_mov_b32 {s(sR2)}, {s(sR1)}
    s_mul_i32 {s(sB2)}, {s(sC)}, 22
    v_lshlrev_b32 {v(vT0)}, 4, {v(vHI)}
    s_lshl_b32 {s(sT)}, {s(sTG)}, 2
    s_add_u32 {s(sT)}, {s(sT)}, {s(sC)}
    s_mul_i32 {s(sT3)}, {s(sT)}, {96*1024}
    s_mul_i32 {s(sT)}, {s(sM16)}, 6144
    s_add_u32 {s(sT3)}, {s(sT3)}, {s(sT)}
    s_add_u32 {s(sT3)}, {s(sT3)}, 0x{GF:x}
    s_add_u32 {s(sWB)}, {s(sT3)}, 4096
    v_mov_b32 {v(vC1)}, {fl(-GC1)}
    v_mov_b32 {v(vC1+1)}, {fl(-GC1)}
    v_mov_b32 {v(vC2)}, {fl(-GC2)}
    v_mov_b32 {v(vC2+1)}, {fl(-GC2)}
    v_mov_b32 v30, 1.0
    v_mov_b32 v31, 1.0
    """)
    vONE = 30
    def rot22(r):
        a(f"""
        s_add_u32 {s(sT)}, {s(r)}, {s(sB2)}
        s_add_u32 {s(r)}, {s(r)}, 1
        s_cmp_eq_u32 {s(r)}, 22
        s_cselect_b32 {s(r)}, 0, {s(r)}
        """)
    def w4load(st): rot22(sR1); wload(WR(st), W4F, f"w{st}")
    def gload(st):
        rot22(sR2)
        a(f"s_lshl_b32 {s(sT2)}, {s(sT)}, 10")
        for b in (0, 1): vm.op(f"buffer_load_dwordx4 {v(GR(st)+4*b,4)}, {v(vH[b])}, {s(sWS,4)}, {s(sT2)} offen {LDF}", f"g{st}")
    def csread(g):
        for q in (0, 1): a(f"ds_read_b128 {v(CSV+8*(g&1)+4*q,4)}, {v(vT0)} offset:{CS3L+64*g+32*q}")
    csread(0)
    for g in range(6):
        xs = [A3+8*g+j for j in range(8)]
        if g < 5: csread(g+1)
        a(f"s_waitcnt lgkmcnt({2 if g < 5 else 0})")
        for j in range(0, 8, 2): a(f"v_pk_fma_f32 {v(xs[j],2)}, {v(CSV+8*(g&1)+j,2)}, {v(XR,2)}, {v(xs[j],2)}")
        for j in range(0, 8, 2): a(f"v_pk_mul_f32 {v(xs[j],2)}, {v(xs[j],2)}, {v(XR+2,2)}")
        gelu_pk(a, xs, [TMP+j for j in range(8)], vC1, vC2, vONE)
        for j in range(4): a(f"v_cvt_pk_bf16_f32 {v(PK+4*g+j)}, {v(xs[2*j])}, {v(xs[2*j+1])}")
        vm.op(f"buffer_store_dwordx4 {v(PK+4*g,4)}, {v(vL16)}, {s(sWS,4)}, {s(sT3 if g < 4 else sWB)} offen offset:{1024*(g&3)} {STF}", "st")
        if g < 4: w4load(g)
    stamp(a, 9)
    a(f"""
    s_mul_i32 {s(sT)}, {s(sTT)}, {96*1024}
    s_add_u32 {s(sT)}, {s(sT)}, 0x{GF:x}
    s_xor_b32 {s(sT2)}, {s(sTT)}, 1
    s_mul_i32 {s(sT2)}, {s(sT2)}, {96*1024}
    s_add_u32 {s(sT2)}, {s(sT2)}, 0x{GF:x}
    v_add_u32 {v(vH[0])}, {s(sT)}, {v(vL16)}
    v_add_u32 {v(vH[1])}, {s(sT2)}, {v(vL16)}
    """)
    vm.wait("st")
    stamp(a, 10)
    signal(1)
    lo()
    for st in range(4, NW): w4load(st)
    a(f"s_add_u32 {s(sT2)}, {s(sFL)}, 2048")
    poll(16)
    stamp(a, 11)
    for st in range(NG-1): gload(st)
    for st in range(22):
        if st+NG-1 < 22: gload(st+NG-1)
        vm.wait(f"w{st}", f"g{st}")
        mm4(WR(st), GR(st), st == 0, True)
        if st+NW < 22: w4load(st+NW)
    stamp(a, 12)
    a(f"s_mov_b32 {s(sR1)}, {s(sROT)}")
    WO = lambda st: 96 + 8*st
    OO = lambda st: 176 + 8*st
    for st in range(8): rot8(sR1); wload(WO(st), WOF, "wo")
    a(f"""
    s_lshl_b32 {s(sT)}, {s(sTT)}, 15
    s_add_u32 {s(sT)}, {s(sT)}, 0x{OF:x}
    v_add_u32 {v(vH[0])}, {s(sT)}, {v(vL16)}
    v_xor_b32 {v(vH[1])}, 0x8000, {v(vH[0])}
    s_mov_b32 {s(sR1)}, {s(sROT)}
    """)
    if not os.environ.get("NOATT"):
        await_(PROG_A, 17, 8)
        a(f"s_lshl_b32 {s(sT2)}, {s(sT64)}, 7")
        a(f"s_add_u32 {s(sT2)}, {s(sT2)}, 0x{FLG+4096:x}")
        poll(32)
    stamp(a, 13)
    hi()
    for st in range(8):
        rot8(sR1)
        a(f"s_lshl_b32 {s(sT2)}, {s(sT)}, 10")
        for b in (0, 1): vm.op(f"buffer_load_dwordx4 {v(OO(st)+4*b,4)}, {v(vH[b])}, {s(sWS,4)}, {s(sT2)} offen {LDF}", f"o{st}")
    for st in range(8):
        vm.wait(f"o{st}", "wo")
        mm4(WO(st), OO(st), False, True)
    reduce4()
    Y = BIG
    for j in range(8): a(f"v_cvt_pk_bf16_f32 {v(Y+j)}, {v(ACC+2*j)}, {v(ACC+2*j+1)}")
    for b in (0, 1):
        a(f"v_permlane32_swap_b32 {v(Y+4*b)}, {v(Y+4*b+2)}")
        a(f"v_permlane32_swap_b32 {v(Y+4*b+1)}, {v(Y+4*b+3)}")
    for b in (0, 1): a(f"buffer_store_dwordx4 {v(Y+4*b,4)}, {v(vXO)}, {s(sOUT,4)}, 0 offen offset:{32*b} {OUTF}")
    if PROF:
        a("s_waitcnt vmcnt(0)")
        stamp(a, 1)
    stamp_flush(a, 1, sW, pWS)
    a("s_endpgm")

def gen_k2():
    a = Asm()
    a(f"""
    s_cmp_ge_u32 s2, 256
    s_cbranch_scc1 K2_END
    """)
    stamp_init(a); stamp(a, 0)
    a(f"""
    s_load_dwordx2 s[26:27], s[0:1], {P_WS}
    s_load_dwordx2 s[16:17], s[0:1], {A_X}
    s_load_dwordx2 s[18:19], s[0:1], {P_OUT}
    v_lshrrev_b32 v2, 6, v0
    v_and_b32 v1, 63, v0
    v_readfirstlane_b32 s28, v2
    v_mov_b32 {v(vBIG)}, {fl(2.0**126)}
    s_cmp_ge_u32 s28, 4
    s_cbranch_scc1 K2_CHAIN
    """)
    attention(a)
    a(".p2align 6")
    a.label("K2_CHAIN")
    chain(a)
    a.label("K2_END")
    a("s_endpgm")
    lines, added = a.done()
    return kernel_text("k2_mix_kernel", lines, 256)
```

```python
import struct
from asmlib import *

QF, KVF, HF, X1F, OF, GF = 0x000000, 0x200000, 0x600000, 0x800000, 0xA00000, 0xC00000
GF_SIZE = 64*96*1024
YB, ST1, ST2, FLG = 0x1200000, 0x1600000, 0x1610000, 0x1B00000
import os
FSH = int(os.environ.get('FSH', 8))
MERGE = int(os.environ.get('MERGE', 1))
C_S1, C_S2, C_HB, C_HR, C_W3, C_W2, C_WO, C_W4, C_S3 = 0, 16, 32, 56, 72, 96, 104, 112, 128
SC_N = 0x27f00
def cnt(i): return FLG + (i << FSH)
CS3P = 0x1668000
W2F, WOF, W3F, W4F = 0x1700000, 0x1780000, 0x1800000, 0x1980000
WS_USED = 0x1C00000
A_X, A_WQKV, A_WO, B_W1, B_W2, B_W3, B_W4, P_OUT, P_DBG, P_WS = 0, 8, 16, 32, 40, 48, 56, 64, 72, 80

def f2u(x): return struct.unpack("<I", struct.pack("<f", x))[0]
def fl(x): return f"0x{f2u(x):08x}"
LOG2E = 1.4426950408889634
GC1 = 2*0.7978845608028654*LOG2E
GC2 = GC1*0.044715
EPS = 1e-5
ONES = 0x3f803f80

def srd(a, d, base, off, size):
    if off:
        a(f"s_add_u32 {s(d)}, {s(base)}, 0x{off:x}")
        a(f"s_addc_u32 {s(d+1)}, {s(base+1)}, 0")
    else:
        a(f"s_mov_b32 {s(d)}, {s(base)}")
        a(f"s_mov_b32 {s(d+1)}, {s(base+1)}")
    a(f"s_mov_b32 {s(d+2)}, 0x{size:x}")
    a(f"s_mov_b32 {s(d+3)}, 0x20000")

def gelu(a, xs, tmp, vnc1):
    for x, t in zip(xs, tmp): a(f"v_mul_f32 {v(t)}, {v(x)}, {v(x)}")
    for x, t in zip(xs, tmp): a(f"v_fmamk_f32 {v(t)}, {v(t)}, {fl(-GC2)}, {v(vnc1)}")
    for x, t in zip(xs, tmp): a(f"v_mul_f32 {v(t)}, {v(t)}, {v(x)}")
    for x, t in zip(xs, tmp): a(f"v_exp_f32 {v(t)}, {v(t)}")
    for x, t in zip(xs, tmp): a(f"v_add_f32 {v(t)}, 1.0, {v(t)}")
    for x, t in zip(xs, tmp): a(f"v_rcp_f32 {v(t)}, {v(t)}")
    for x, t in zip(xs, tmp): a(f"v_mul_f32 {v(x)}, {v(x)}, {v(t)}")

def gelu_pk(a, xs, tmp, vC1, vC2, vONE):
    P = range(0, len(xs), 2)
    for j in P: a(f"v_pk_mul_f32 {v(tmp[j],2)}, {v(xs[j],2)}, {v(xs[j],2)}")
    for j in P: a(f"v_pk_fma_f32 {v(tmp[j],2)}, {v(tmp[j],2)}, {v(vC2,2)}, {v(vC1,2)}")
    for j in P: a(f"v_pk_mul_f32 {v(tmp[j],2)}, {v(tmp[j],2)}, {v(xs[j],2)}")
    for t in tmp: a(f"v_exp_f32 {v(t)}, {v(t)}")
    for j in P: a(f"v_pk_add_f32 {v(tmp[j],2)}, {v(tmp[j],2)}, {v(vONE,2)}")
    for t in tmp: a(f"v_rcp_f32 {v(t)}, {v(t)}")
    for j in P: a(f"v_pk_mul_f32 {v(xs[j],2)}, {v(xs[j],2)}, {v(tmp[j],2)}")

def gelu_scaled(a, xs, tmp, vA, vB, vI):
    P = range(0, len(xs), 2)
    for j in P: a(f"v_pk_mul_f32 {v(tmp[j],2)}, {v(xs[j],2)}, {v(xs[j],2)}")
    for j in P: a(f"v_pk_fma_f32 {v(tmp[j],2)}, {v(tmp[j],2)}, {v(vB,2)}, {v(vA,2)}")
    for j in P: a(f"v_pk_mul_f32 {v(tmp[j],2)}, {v(tmp[j],2)}, {v(xs[j],2)}")
    for t in tmp: a(f"v_exp_f32 {v(t)}, {v(t)}")
    for j in P: a(f"v_pk_fma_f32 {v(tmp[j],2)}, {v(tmp[j],2)}, {v(vI,2)}, {v(vI,2)}")
    for t in tmp: a(f"v_rcp_f32 {v(t)}, {v(t)}")
    for j in P: a(f"v_pk_mul_f32 {v(xs[j],2)}, {v(xs[j],2)}, {v(tmp[j],2)}")

def gelu_consts(a, vR, vA, vB, vI):
    a(f"""
    v_rcp_f32 {v(vI)}, {v(vR)}
    v_mul_f32 {v(vA)}, {fl(-GC1)}, {v(vR)}
    v_mul_f32 {v(vB)}, {v(vR)}, {v(vR)}
    v_mul_f32 {v(vB)}, {v(vB)}, {v(vR)}
    v_mul_f32 {v(vB)}, {fl(-GC2)}, {v(vB)}
    v_mov_b32 {v(vI+1)}, {v(vI)}
    v_mov_b32 {v(vA+1)}, {v(vA)}
    v_mov_b32 {v(vB+1)}, {v(vB)}
    """)

def halves_sum(a, x, t):
    a(f"v_mov_b32 {v(t)}, {v(x)}")
    a(f"v_permlane32_swap_b32 {v(x)}, {v(t)}")
    a(f"v_add_f32 {v(x)}, {v(x)}, {v(t)}")

def kernel_text(name, lines, vgpr, sgpr=100):
    head = [f".globl {name}", ".p2align 8", f".type {name},@function", f"{name}:"]
    desc = [".p2align 6", f".amdhsa_kernel {name}", f"  .amdhsa_next_free_vgpr {vgpr}", f"  .amdhsa_next_free_sgpr {sgpr}",
            f"  .amdhsa_accum_offset {(vgpr+3)//4*4}", "  .amdhsa_group_segment_fixed_size 0", "  .amdhsa_kernarg_size 88",
            "  .amdhsa_user_sgpr_count 2", "  .amdhsa_user_sgpr_kernarg_segment_ptr 1", "  .amdhsa_system_sgpr_workgroup_id_x 1",
            "  .amdhsa_float_denorm_mode_32 3", ".end_amdhsa_kernel"]
    return head + lines, desc


class VM:
    def __init__(self, a): self.a = a; self.q = []
    def op(self, text, tag=None):
        self.a(text); self.q.append(tag)
    def wait(self, *tags):
        last = max((i for i, t in enumerate(self.q) if t in tags), default=-1)
        if last < 0: return
        n = len(self.q) - 1 - last
        assert n <= 63
        self.a(f"s_waitcnt vmcnt({n})")
        self.q = self.q[last+1:]


import os
PROF = int(os.environ.get("PROF", "0"))
TSB = 0x2000000
def stamp(a, i):
    if PROF: a(f"{'s_memtime' if PROF == 2 else 's_memrealtime'} {s(64+2*i,2)}")
def stamp_init(a):
    if PROF:
        for i in range(64, 96, 2): a(f"s_mov_b64 {s(i,2)}, 0")
        a("s_getreg_b32 s94, hwreg(HW_REG_HW_ID)")
        a("s_memtime s[96:97]")
def stamp_flush(a, kidx, sWave, pWS, nwaves=8):
    if not PROF: return
    a("s_memtime s[92:93]")
    a("s_waitcnt lgkmcnt(0)")
    a("s_sub_u32 s92, s92, s96")
    a("s_mov_b64 exec, -1")
    a("v_mov_b32 v251, 0")
    for i in range(16): a(f"v_writelane_b32 v251, {s(64+2*i)}, {i}")
    a(f"""
    s_add_u32 s64, {s(pWS)}, 0x{TSB + kidx*0x40000:x}
    s_addc_u32 s65, {s(pWS+1)}, 0
    s_mov_b32 s66, 0x40000
    s_mov_b32 s67, 0x20000
    s_lshl_b32 s68, s2, 3
    s_add_u32 s68, s68, {s(sWave)}
    s_lshl_b32 s68, s68, 6
    v_and_b32 v250, 63, v0
    v_lshlrev_b32 v250, 2, v250
    s_mov_b64 exec, 0xffff
    buffer_store_dword v251, v250, s[64:67], s68 offen
    s_mov_b64 exec, -1
    """)
```

```python
from common import *

SC_3, SC_S, SC_C, SC_3P, SC_N = 0x20000, 0x24000, 0x24800, 0x24c00, 0x25400

K1F = os.environ.get('K1F', 'sc1')

STATS = os.environ.get('STATS', 'dots')

def gen_k1(a=None):
    own = a is None
    if own: a = Asm()
    sX, sW, sWS = 8, 12, 16
    pX, pQKV, pW1, pWS = 20, 22, 24, 26
    sW_, sTQ, sFH, sRB, sCB, sHB, sTY, sSTR, sCOL = 28, 29, 30, 31, 32, 33, 34, 35, 36
    sXO, sWO, sM0, sT, sT2, sCH, sSC, sBS, sBO, s8S, s64S = 37, 38, 39, 40, 41, 42, 43, 44, 45, 46, 47
    sP, pA, sKP, sCI, sXB, sPS, sPD, sPR, sNAT = 48, 52, 60, 61, 62, 63, 3, 4, 5
    pWO, pDBG, sRDY, sU, sDB = 6, 98, 100, 101, 92
    vL, vT0, vT1, vT2, vT3 = 1, 2, 3, 4, 5
    vX0, vX1, vWD = 6, 7, 8
    vI, vHI, vPA, vPT = 9, 10, 11, 12
    XA = lambda st, k: 16 + st*4 + k
    WA = lambda st, ft: 24 + st*3 + ft
    SEL = 32
    XF = lambda p: 36 + 16*p
    WF = lambda p, ft: 40 + 16*p + 4*ft
    ACC = lambda ft: 84 + 16*ft
    GR = 116
    CSV = 124; PK = 156; TMP = 172
    vMEAN, vR, vR1, vOFF, vTA, vTB, vSUM, vSQ = 180, 182, 184, 185, 186, 187, 188, 189
    vC1, vC2, vONE, W3V = 190, 192, 194, 196
    a(f"""
    s_cmp_ge_u32 s2, 256
    s_cbranch_scc1 K1_END
    """)
    stamp_init(a); stamp(a, 0)
    a(f"""
    s_load_dwordx4 {s(pX,4)}, s[0:1], {A_X}
    s_load_dwordx2 {s(pW1,2)}, s[0:1], {B_W1}
    s_load_dwordx2 {s(pWS,2)}, s[0:1], {P_WS}
    s_load_dwordx2 {s(pWO,2)}, s[0:1], {A_WO}
    s_load_dwordx2 {s(pA,2)}, s[0:1], {B_W2}
    s_load_dwordx4 {s(pA+4,4)}, s[0:1], {B_W3}
    s_load_dwordx2 {s(pDBG,2)}, s[0:1], {P_DBG}
    v_lshrrev_b32 {v(vT0)}, 6, v0
    v_and_b32 {v(vL)}, 63, v0
    v_readfirstlane_b32 {s(sW_)}, {v(vT0)}
    s_and_b32 {s(sT)}, s2, 3
    s_lshl_b32 {s(sRB)}, {s(sT)}, 2
    s_bfe_u32 {s(sT)}, s2, 0x20003
    s_add_u32 {s(sRB)}, {s(sRB)}, {s(sT)}
    s_lshl_b32 {s(sCH)}, {s(sT)}, 1
    s_bfe_u32 {s(sT)}, s2, 0x10002
    s_lshl_b32 {s(sCB)}, {s(sT)}, 3
    s_lshr_b32 {s(sT2)}, s2, 5
    s_add_u32 {s(sCB)}, {s(sCB)}, {s(sT2)}
    s_add_u32 {s(sCH)}, {s(sCH)}, {s(sT2)}
    s_and_b32 {s(sCH)}, {s(sCH)}, 7
    s_and_b32 {s(sTQ)}, {s(sW_)}, 3
    s_lshr_b32 {s(sFH)}, {s(sW_)}, 2
    s_mul_i32 {s(sT)}, {s(sFH)}, 24
    s_add_u32 {s(sHB)}, {s(sT)}, {s(sCB)}
    s_lshl_b32 {s(sT)}, {s(sCB)}, 1
    s_add_u32 {s(sT)}, {s(sT)}, {s(sFH)}
    s_sub_u32 {s(sT)}, {s(sT)}, 8
    s_cmp_lt_u32 {s(sCB)}, 8
    s_cselect_b32 {s(sHB)}, {s(sHB)}, {s(sT)}
    s_lshr_b32 {s(sTY)}, {s(sHB)}, 3
    s_lshl_b32 {s(sCOL)}, {s(sHB)}, 7
    s_sub_u32 {s(sT)}, {s(sCOL)}, 3072
    s_cmp_eq_u32 {s(sTY)}, 3
    s_cselect_b32 {s(sCOL)}, {s(sT)}, {s(sCOL)}
    s_mov_b32 {s(sSTR)}, 3072
    s_cmov_b32 {s(sSTR)}, 1024
    s_lshl_b32 {s(s8S)}, {s(sSTR)}, 3
    s_lshl_b32 {s(s64S)}, {s(sSTR)}, 6
    v_lshrrev_b32 {v(vT0)}, 3, {v(vL)}
    v_lshrrev_b32 {v(vT1)}, 4, {v(vL)}
    v_and_b32 {v(vT2)}, 7, {v(vL)}
    v_xor_b32 {v(vT3)}, {v(vT2)}, {v(vT1)}
    v_lshlrev_b32 {v(vT3)}, 4, {v(vT3)}
    s_lshl_b32 {s(sT)}, {s(sW_)}, 4
    v_add_u32 {v(vX0)}, {s(sT)}, {v(vT0)}
    v_lshl_add_u32 {v(vX0)}, {v(vX0)}, 10, {v(vT3)}
    v_xor_b32 {v(vX1)}, 64, {v(vX0)}
    v_add_u32 {v(vX1)}, 0x2000, {v(vX1)}
    v_and_b32 {v(vT1)}, 1, {v(vT1)}
    v_lshlrev_b32 {v(vT1)}, 2, {v(vT1)}
    v_xor_b32 {v(vT1)}, {v(vT1)}, {v(vT2)}
    v_lshlrev_b32 {v(vT1)}, 4, {v(vT1)}
    s_lshl_b32 {s(sT)}, {s(sTQ)}, 4
    v_add_u32 {v(vT3)}, {s(sT)}, {v(vT0)}
    v_mul_lo_u32 {v(vWD)}, {v(vT3)}, {s(sSTR)}
    v_add3_u32 {v(vWD)}, {v(vWD)}, {v(vT1)}, {s(sCOL)}
    s_lshl_b32 {s(sXB)}, {s(sRB)}, 17
    s_lshl_b32 {s(sM0)}, {s(sW_)}, 11
    s_waitcnt lgkmcnt(0)
    """)
    srd(a, sX, pX, 0, 0x200000)
    a(f"""
    s_cmp_eq_u32 {s(sTY)}, 3
    s_cselect_b32 {s(sW)}, {s(pW1)}, {s(pQKV)}
    s_cselect_b32 {s(sW+1)}, {s(pW1+1)}, {s(pQKV+1)}
    s_lshl_b32 {s(sW+2)}, {s(sSTR)}, 9
    s_mov_b32 {s(sW+3)}, 0x20000
    """)
    def dma(vm, c, i):
        sl = (c % 4)*32768
        if i == 0:
            a(f"""
            s_lshl_b32 {s(sXO)}, {s(sCH)}, 7
            s_add_u32 m0, {s(sM0)}, {sl}
            s_add_u32 {s(sXO)}, {s(sXO)}, {s(sXB)}
            """)
            vm.op(f"buffer_load_dwordx4 {v(vX0)}, {s(sX,4)}, {s(sXO)} offen lds", c)
        elif i == 1:
            a(f"s_add_u32 m0, {s(sM0)}, {sl+16384}")
            a(f"s_mul_i32 {s(sWO)}, {s(sCH)}, {s(s64S)}")
            vm.op(f"buffer_load_dwordx4 {v(vWD)}, {s(sW,4)}, {s(sWO)} offen lds", c)
        elif i == 2:
            a(f"s_add_u32 m0, {s(sM0)}, {sl+1024}")
            a(f"s_add_u32 {s(sCH)}, {s(sCH)}, 1")
            vm.op(f"buffer_load_dwordx4 {v(vX1)}, {s(sX,4)}, {s(sXO)} offen lds", c)
        else:
            a(f"s_add_u32 m0, {s(sM0)}, {sl+17408}")
            a(f"s_add_u32 {s(sWO)}, {s(sWO)}, {s(s8S)}")
            vm.op(f"buffer_load_dwordx4 {v(vWD)}, {s(sW,4)}, {s(sWO)} offen lds", c)
            a(f"s_and_b32 {s(sCH)}, {s(sCH)}, 7")
    vm0 = VM(a)
    stamp(a, 1)
    for i in range(4): dma(vm0, 0, i)
    srd(a, sWS, pWS, 0, WS_USED)
    a(f"""
    s_lshr_b32 {s(sT)}, s2, 3
    s_lshl_b32 {s(sT)}, {s(sT)}, 2
    s_and_b32 {s(sT2)}, s2, 3
    s_add_u32 {s(sT)}, {s(sT)}, {s(sT2)}
    s_add_u32 {s(sU)}, {s(sT)}, 128
    s_cmp_lt_u32 {s(sT)}, 88
    s_cselect_b32 {s(sU)}, {s(sT)}, {s(sU)}
    s_add_u32 {s(sT)}, {s(sT)}, 88
    s_cmp_ge_u32 {s(sCB)}, 8
    s_cselect_b32 {s(sU)}, {s(sT)}, {s(sU)}
    s_mul_i32 {s(sKP)}, {s(sU)}, 2979
    s_lshr_b32 {s(sKP)}, {s(sKP)}, 16
    s_mul_i32 {s(sT)}, {s(sKP)}, 22
    s_sub_u32 {s(sCI)}, {s(sU)}, {s(sT)}
    s_mov_b64 {s(sP,2)}, {s(pA+4,2)}
    s_mov_b32 {s(sP+2)}, {512*2752}
    s_mov_b32 {s(sP+3)}, 0x20000
    s_mov_b32 {s(sPR)}, 2752
    s_mov_b32 {s(sPD)}, 0x{W3F:x}
    s_mov_b32 {s(sT2)}, 44
    s_mov_b32 {s(sNAT)}, 0
    s_cmp_lt_u32 {s(sU)}, 88
    s_cbranch_scc1 K1_JOB
    s_and_b32 {s(sCI)}, {s(sU)}, 7
    s_mov_b32 {s(sPR)}, 1024
    s_mov_b32 {s(sT2)}, 16
    s_mov_b32 {s(sP+2)}, 0x80000
    s_sub_u32 {s(sKP)}, {s(sU)}, 88
    s_mov_b64 {s(sP,2)}, {s(pA,2)}
    s_mov_b32 {s(sPD)}, 0x{W2F:x}
    s_cmp_lt_u32 {s(sU)}, 120
    s_cbranch_scc1 K1_JOBS
    s_sub_u32 {s(sKP)}, {s(sU)}, 120
    s_mov_b64 {s(sP,2)}, {s(pWO,2)}
    s_mov_b32 {s(sPD)}, 0x{WOF:x}
    s_mov_b32 {s(sNAT)}, 1
    s_cmp_lt_u32 {s(sU)}, 152
    s_cbranch_scc1 K1_JOBS
    s_sub_u32 {s(sKP)}, {s(sU)}, 152
    s_mov_b64 {s(sP,2)}, {s(pA+6,2)}
    s_mov_b32 {s(sP+2)}, {1376*1024}
    s_mov_b32 {s(sPD)}, 0x{W4F:x}
    s_mov_b32 {s(sNAT)}, 0
    s_cmp_lt_u32 {s(sU)}, 240
    s_cbranch_scc1 K1_JOBS
    s_mov_b32 {s(sPD)}, 0x40000000
    """)
    a.label("K1_JOBS")
    a(f"s_lshr_b32 {s(sKP)}, {s(sKP)}, 3")
    a.label("K1_JOB")
    a(f"""
    s_lshl_b32 {s(sT)}, {s(sKP)}, 3
    s_add_u32 {s(sT)}, {s(sT)}, {s(sW_)}
    s_mul_i32 {s(sT2)}, {s(sT2)}, {s(sT)}
    s_lshl_b32 {s(sPS)}, {s(sCI)}, 1
    s_add_u32 {s(sT2)}, {s(sT2)}, {s(sPS)}
    s_lshl_b32 {s(sT2)}, {s(sT2)}, 10
    s_add_u32 {s(sPD)}, {s(sPD)}, {s(sT2)}
    s_mul_i32 {s(sT)}, {s(sT)}, {s(sPR)}
    s_lshl_b32 {s(sT)}, {s(sT)}, 4
    s_lshl_b32 {s(sPS)}, {s(sCI)}, 7
    s_add_u32 {s(sPS)}, {s(sPS)}, {s(sT)}
    v_mul_lo_u32 {v(vPA)}, {v(vT0)}, {s(sPR)}
    v_add_u32 {v(vPA)}, {v(vPA)}, {v(vT1)}
    s_lshl_b32 {s(sPR)}, {s(sPR)}, 3
    s_add_u32 {s(sPR)}, {s(sPR)}, {s(sPS)}
    """)
    if MERGE:
        a(f"""
        v_mov_b32 {v(TMP)}, 0
        v_mov_b32 {v(TMP+1)}, 0
        v_mov_b32 {v(vTA)}, 0x{SC_N:x}
        ds_write_b64 {v(vTA)}, {v(TMP,2)}
        s_cmp_lg_u32 s2, 0
        s_cbranch_scc1 K1_NOINIT
        s_cmp_lg_u32 {s(sW_)}, 7
        s_cbranch_scc1 K1_NOINIT
        v_lshlrev_b32 {v(vTA)}, {FSH}, {v(vL)}
        s_mov_b32 {s(sT)}, 0x{cnt(0):x}
        s_mov_b32 {s(sT2)}, 0x{cnt(64):x}
        buffer_store_dword {v(TMP)}, {v(vTA)}, {s(sWS,4)}, {s(sT)} offen sc1
        buffer_store_dword {v(TMP)}, {v(vTA)}, {s(sWS,4)}, {s(sT2)} offen sc1
        """)
        a.label("K1_NOINIT")
        a("s_waitcnt lgkmcnt(0)")
    a("s_barrier")
    for i in range(4): dma(vm0, 1, i)
    a(f"""
    v_and_b32 {v(vI)}, 31, {v(vL)}
    v_lshrrev_b32 {v(vHI)}, 5, {v(vL)}
    s_lshl_b32 {s(sT)}, {s(sTQ)}, 5
    v_add_u32 {v(vT0)}, {s(sT)}, {v(vI)}
    v_lshlrev_b32 {v(vT0)}, 7, {v(vT0)}
    v_bfe_u32 {v(vT1)}, {v(vI)}, 1, 3
    v_xor_b32 {v(vT1)}, {v(vT1)}, {v(vHI)}
    v_bfe_u32 {v(vT2)}, {v(vL)}, 2, 2
    v_lshlrev_b32 {v(vT3)}, 7, {v(vT2)}
    v_lshrrev_b32 {v(vT2)}, 1, {v(vT2)}
    v_lshl_add_u32 {v(vT3)}, {v(vT2)}, 6, {v(vT3)}
    v_bfe_u32 {v(vT2)}, {v(vL)}, 4, 1
    v_lshl_add_u32 {v(vT3)}, {v(vT2)}, 5, {v(vT3)}
    v_and_b32 {v(vTB)}, 15, {v(vL)}
    v_cmp_eq_u32 vcc, {v(vTB)}, {v(vT2)}
    v_and_b32 {v(vT2)}, 3, {v(vL)}
    v_lshl_add_u32 {v(vT3)}, {v(vT2)}, 3, {v(vT3)}
    v_lshl_add_u32 {v(vTB)}, {v(vHI)}, 10, {v(vT3)}
    v_mov_b32 {v(vT2)}, 0x{ONES:x}
    v_cndmask_b32 {v(SEL)}, 0, {v(vT2)}, vcc
    s_add_u32 {s(sT)}, {s(sNAT)}, 9
    v_lshlrev_b32 {v(vPT)}, {s(sT)}, {v(vHI)}
    s_lshl_b32 {s(sT)}, {s(sW_)}, 11
    s_add_u32 {s(sT)}, {s(sT)}, 0x{SC_3:x}
    v_add3_u32 {v(vPT)}, {v(vPT)}, {v(vT3)}, {s(sT)}
    s_lshl_b32 {s(sT)}, {s(sFH)}, 13
    s_add_u32 {s(sT)}, {s(sT)}, 16384
    v_add_u32 {v(WA(0,0))}, {s(sT)}, {v(vTB)}
    v_xor_b32 {v(WA(0,1))}, 64, {v(WA(0,0))}
    s_and_b32 {s(sT)}, {s(sTQ)}, 1
    s_lshl_b32 {s(sT)}, {s(sT)}, 13
    s_add_u32 {s(sT)}, {s(sT)}, 16384
    s_lshr_b32 {s(sT2)}, {s(sTQ)}, 1
    s_lshl_b32 {s(sT2)}, {s(sT2)}, 6
    v_xor_b32 {v(WA(0,2))}, {s(sT2)}, {v(vTB)}
    v_add_u32 {v(WA(0,2))}, {s(sT)}, {v(WA(0,2))}
    v_mov_b32 {v(SEL+1)}, {v(SEL)}
    v_mov_b32 {v(SEL+2)}, {v(SEL)}
    v_mov_b32 {v(SEL+3)}, {v(SEL)}
    v_mov_b32 {v(GR)}, 0
    v_mov_b32 {v(GR+1)}, 0
    v_mov_b32 {v(GR+2)}, 0
    v_mov_b32 {v(GR+3)}, 0
    v_mov_b32 {v(vONE)}, 0x{ONES:x}
    """)
    for k in range(4):
        a(f"v_xor_b32 {v(vT2)}, {2*k}, {v(vT1)}")
        a(f"v_lshl_add_u32 {v(XA(0,k))}, {v(vT2)}, 4, {v(vT0)}")
    for k in range(4): a(f"v_add_u32 {v(XA(1,k))}, 65536, {v(XA(0,k))}")
    for ft in range(3): a(f"v_add_u32 {v(WA(1,ft))}, 65536, {v(WA(0,ft))}")
    stamp(a, 2)
    def body(fh):
        vm = VM(a); vm.q = list(vm0.q)
        nr = 5 + 2*fh
        def reads(n):
            c, k = divmod(n, 4); sl = c % 4; st = sl >> 1; o = (sl & 1)*32768; p = n % 3
            a(f"ds_read_b128 {v(XF(p),4)}, {v(XA(st,k))} offset:{o}")
            for ft in range(2+fh):
                a(f"ds_read_b64_tr_b16 {v(WF(p,ft),2)}, {v(WA(st,ft))} offset:{o+k*2048}")
                a(f"ds_read_b64_tr_b16 {v(WF(p,ft)+2,2)}, {v(WA(st,ft))} offset:{o+k*2048+512}")
        def compute(n):
            p = n % 3
            z = lambda r, w: "0" if n == 0 else v(r, w)
            mine = {"valu": fh == 0, "valu2": (n & 1) == fh, "valu31": (n % 4 == 3) == (fh == 1)}.get(STATS, False)
            if STATS == "dots" and fh == 0:
                for j in range(4):
                    a(f"v_dot2_f32_bf16 {v(GR+2)}, {v(XF(p)+j)}, {v(XF(p)+j)}, {v(GR+2)}")
                    a(f"v_dot2_f32_bf16 {v(GR)}, {v(XF(p)+j)}, {v(vONE)}, {v(GR)}")
            for ft in (0, 1):
                a(f"v_mfma_f32_32x32x16_bf16 {v(ACC(ft),16)}, {v(WF(p,ft),4)}, {v(XF(p),4)}, {z(ACC(ft),16)}")
                if mine:
                    for j in (2*ft, 2*ft+1):
                        a(f"v_lshlrev_b32 {v(TMP+2*j)}, 16, {v(XF(p)+j)}")
                        a(f"v_and_b32 {v(TMP+2*j+1)}, 0xffff0000, {v(XF(p)+j)}")
                    for j in range(4*ft, 4*ft+4):
                        a(f"v_add_f32 {v(GR+(j&1))}, {v(GR+(j&1))}, {v(TMP+j)}")
                        a(f"v_fmac_f32 {v(GR+2+(j&1))}, {v(TMP+j)}, {v(TMP+j)}")
            if fh == 1 and STATS != "none":
                a(f"v_mfma_f32_16x16x32_bf16 {v(GR+4,4)}, {v(SEL,4)}, {v(WF(p,2),4)}, {z(GR+4,4)}")
        sched = {0: [(2, 0), (2, 1)], 1: [(2, 2), (2, 3)]}
        for c in range(5):
            for i in range(4): sched[4*c+2+i] = [(c+3, i)]
        vm.wait(0)
        a("s_barrier")
        if MERGE and fh == 1:
            a(f"""
            s_xor_b32 {s(sT)}, {s(sW_)}, 7
            s_or_b32 {s(sT)}, {s(sT)}, s2
            s_cbranch_scc1 K1_NOFLAG
            """)
            srd(a, sDB, pDBG, 0, 256)
            a(f"""
            v_mov_b32 {v(TMP+1)}, 1
            s_mov_b64 exec, 1
            buffer_store_dword {v(TMP+1)}, {v(TMP)}, {s(sDB,4)}, 0 offen sc1
            s_mov_b64 exec, -1
            """)
            a.label("K1_NOFLAG")
        stamp(a, 3)
        reads(0); reads(1)
        extra = 0
        for n in range(32):
            c, k = divmod(n, 4)
            if k == 2 and c < 7:
                vm.wait(c+1)
                a("s_barrier")
                stamp(a, 4+c)
            if n < 30: reads(n+2)
            a(f"s_waitcnt lgkmcnt({min(15, nr*min(2, 31-n))})")
            compute(n)
            for cc, i in sched.get(n, []): dma(vm, cc, i)
            if n == 24 and MERGE: a(f"s_load_dword {s(sRDY)}, {s(pDBG,2)}, 0")
            if n == 26:
                vm.op(f"buffer_load_dwordx4 {v(W3V,4)}, {v(vPA)}, {s(sP,4)}, {s(sPS)} offen", "p")
                vm.op(f"buffer_load_dwordx4 {v(W3V+4,4)}, {v(vPA)}, {s(sP,4)}, {s(sPR)} offen", "p")
        stamp(a, 11)
        a(f"v_add_f32 {v(GR)}, {v(GR)}, {v(GR+1)}")
        a(f"v_add_f32 {v(GR+1)}, {v(GR+2)}, {v(GR+3)}")
        halves_sum(a, GR, vT1); halves_sum(a, GR+1, vT2)
        a(f"""
        s_lshl_b32 {s(sT)}, {s(sTQ)}, 9
        s_add_u32 {s(sT)}, {s(sT)}, 0x{SC_S+8*fh:x}
        v_lshl_add_u32 {v(vT0)}, {v(vI)}, 4, {s(sT)}
        ds_write_b64 {v(vT0)}, {v(GR,2)}
        """)
        if fh == 0: pass
        else:
            a(f"""
            s_and_b32 {s(sT)}, {s(sTQ)}, 1
            s_lshl_b32 {s(sT)}, {s(sT)}, 8
            s_lshr_b32 {s(sT2)}, {s(sTQ)}, 1
            s_lshl_b32 {s(sT2)}, {s(sT2)}, 7
            s_add_u32 {s(sT)}, {s(sT)}, {s(sT2)}
            s_add_u32 {s(sT)}, {s(sT)}, 0x{SC_C:x}
            v_lshl_add_u32 {v(vT1)}, {v(vL)}, 2, {s(sT)}
            s_mov_b64 exec, 0xffff
            ds_write_b32 {v(vT1)}, {v(GR+4)}
            ds_write_b32 {v(vT1)}, {v(GR+5)} offset:64
            s_mov_b64 exec, -1
            """)
    a(f"""
    s_cmp_eq_u32 {s(sFH)}, 1
    s_cbranch_scc1 K1_B1
    """)
    body(0)
    a("s_branch K1_JOIN")
    a.label("K1_B1")
    body(1)
    a.label("K1_JOIN")
    a(f"""
    s_lshl_b32 {s(sT)}, {s(sTQ)}, 9
    s_add_u32 {s(sT)}, {s(sT)}, 0x{SC_S:x}
    v_lshl_add_u32 {v(vT1)}, {v(vI)}, 4, {s(sT)}
    s_lshl_b32 {s(sT)}, {s(sFH)}, 8
    s_add_u32 {s(sT)}, {s(sT)}, 0x{SC_C:x}
    v_lshl_add_u32 {v(vT2)}, {v(vHI)}, 4, {s(sT)}
    s_waitcnt lgkmcnt(0)
    s_barrier
    ds_read_b128 {v(TMP,4)}, {v(vT1)}
    """)
    for ft in (0, 1):
        for q in range(4): a(f"ds_read_b128 {v(CSV+16*ft+4*q,4)}, {v(vT2)} offset:{128*ft+32*q}")
    a(f"""
    s_cmp_eq_u32 {s(sTY)}, 0
    s_cselect_b32 {s(sSC)}, {fl(0.25*LOG2E)}, 1.0
    s_lshl_b32 {s(sT2)}, {s(sRB)}, 2
    s_add_u32 {s(sT2)}, {s(sT2)}, {s(sTQ)}
    v_mov_b32 {v(vTB)}, {fl(1/512)}
    s_waitcnt lgkmcnt(8)
    v_add_f32 {v(vSUM)}, {v(TMP)}, {v(TMP+2)}
    v_add_f32 {v(vSQ)}, {v(TMP+1)}, {v(TMP+3)}
    v_mul_f32 {v(vMEAN)}, {v(vTB)}, {v(vSUM)}
    v_mul_f32 {v(vTA)}, {v(vMEAN)}, {v(vMEAN)}
    v_fma_f32 {v(vTA)}, {v(vSQ)}, {v(vTB)}, -{v(vTA)}
    v_max_f32 {v(vTA)}, 0, {v(vTA)}
    v_add_f32 {v(vTB)}, {fl(EPS)}, {v(vTA)}
    v_rsq_f32 {v(vR1)}, {v(vTB)}
    s_cmp_lg_u32 {s(sTY)}, 3
    v_mul_f32 {v(vR)}, {s(sSC)}, {v(vR1)}
    s_cbranch_scc1 K1_NOR2
    v_mul_f32 {v(vTB)}, {v(vR1)}, {v(vR1)}
    v_fmaak_f32 {v(vTB)}, {v(vTB)}, {v(vTA)}, {fl(EPS)}
    v_rsq_f32 {v(vTB)}, {v(vTB)}
    s_nop 0
    v_mul_f32 {v(vR)}, {v(vR1)}, {v(vTB)}
    """)
    gelu_consts(a, vR, vC1, vC2, vONE)
    a.label("K1_NOR2")
    a(f"""
    s_cmp_lg_u32 {s(sHB)}, 24
    s_cbranch_scc1 K1_NOST
    s_lshl_b32 {s(sT)}, {s(sT2)}, 8
    s_add_u32 {s(sT)}, {s(sT)}, 0x{ST1:x}
    v_lshlrev_b32 {v(vTA)}, 3, {v(vI)}
    v_mov_b32 {v(PK)}, {v(vMEAN)}
    v_mov_b32 {v(PK+1)}, {v(vR1)}
    buffer_store_dwordx2 {v(PK,2)}, {v(vTA)}, {s(sWS,4)}, {s(sT)} offen {K1F}
    """)
    a.label("K1_NOST")
    a(f"""
    v_sub_f32 {v(vMEAN)}, 0, {v(vMEAN)}
    v_mov_b32 {v(vR+1)}, {v(vR)}
    v_mov_b32 {v(vMEAN+1)}, {v(vMEAN)}
    s_waitcnt lgkmcnt(0)
    """)
    for j in range(0, 32, 2): a(f"v_pk_fma_f32 {v(ACC(0)+j,2)}, {v(CSV+j,2)}, {v(vMEAN,2)}, {v(ACC(0)+j,2)}")
    a(f"""
    v_lshlrev_b32 {v(vT3)}, 4, {v(vL)}
    s_and_b32 {s(sT)}, {s(sHB)}, 7
    s_cmp_eq_u32 {s(sTY)}, 3
    s_cbranch_scc1 K1_H
    """)
    for j in range(0, 32, 2): a(f"v_pk_mul_f32 {v(ACC(0)+j,2)}, {v(ACC(0)+j,2)}, {v(vR,2)}")
    for j in range(16): a(f"v_cvt_pk_bf16_f32 {v(PK+j)}, {v(ACC(0)+2*j)}, {v(ACC(0)+2*j+1)}")
    a(f"""
    s_cmp_eq_u32 {s(sTY)}, 0
    s_cbranch_scc1 K1_Q
    s_mov_b32 {s(sBS)}, 0x20000
    s_lshl_b32 {s(sBO)}, {s(sT)}, 19
    s_lshl_b32 {s(sT)}, {s(sT2)}, 11
    s_add_u32 {s(sBO)}, {s(sBO)}, {s(sT)}
    s_add_u32 {s(sBO)}, {s(sBO)}, 0x{KVF:x}
    s_cmp_eq_u32 {s(sTY)}, 2
    s_cbranch_scc1 K1_V
    v_and_b32 {v(vOFF)}, 0x33, {v(vL)}
    v_bfe_u32 {v(vTA)}, {v(vL)}, 2, 1
    v_lshl_add_u32 {v(vOFF)}, {v(vTA)}, 3, {v(vOFF)}
    v_bfe_u32 {v(vTA)}, {v(vL)}, 3, 1
    v_lshl_add_u32 {v(vOFF)}, {v(vTA)}, 2, {v(vOFF)}
    v_lshlrev_b32 {v(vOFF)}, 4, {v(vOFF)}
    s_branch K1_STORE
    """)
    a.label("K1_V")
    a(f"""
    s_add_u32 {s(sBO)}, {s(sBO)}, 1024
    s_lshl_b32 {s(sT)}, {s(sW_)}, 12
    v_lshlrev_b32 {v(vTA)}, 5, {v(vI)}
    v_lshl_add_u32 {v(vTA)}, {v(vHI)}, 4, {v(vTA)}
    v_add_u32 {v(vTA)}, {s(sT)}, {v(vTA)}
    """)
    for b in range(4): a(f"ds_write_b128 {v(vTA)}, {v(PK+4*b,4)} offset:{1024*b}")
    a(f"""
    v_bfe_u32 {v(vTB)}, {v(vL)}, 4, 1
    v_lshlrev_b32 {v(vOFF)}, 9, {v(vTB)}
    v_lshl_add_u32 {v(vTA)}, {v(vHI)}, 7, {v(vOFF)}
    v_and_b32 {v(vTB)}, 15, {v(vL)}
    v_lshl_add_u32 {v(vTA)}, {v(vTB)}, 3, {v(vTA)}
    v_add_u32 {v(vTA)}, {s(sT)}, {v(vTA)}
    v_lshl_add_u32 {v(vOFF)}, {v(vHI)}, 8, {v(vOFF)}
    v_lshl_add_u32 {v(vOFF)}, {v(vTB)}, 4, {v(vOFF)}
    s_waitcnt lgkmcnt(0)
    """)
    for b in range(4):
        a(f"ds_read_b64_tr_b16 {v(PK+4*b,2)}, {v(vTA)} offset:{1024*b}")
        a(f"ds_read_b64_tr_b16 {v(PK+4*b+2,2)}, {v(vTA)} offset:{1024*b+256}")
    a("s_waitcnt lgkmcnt(0)")
    a("s_branch K1_STORE")
    a.label("K1_Q")
    a(f"""
    s_mov_b32 {s(sBS)}, 0x10000
    s_lshl_b32 {s(sBO)}, {s(sT)}, 18
    s_lshl_b32 {s(sT)}, {s(sT2)}, 10
    s_add_u32 {s(sBO)}, {s(sBO)}, {s(sT)}
    v_mov_b32 {v(vOFF)}, {v(vT3)}
    """)
    a.label("K1_STORE")
    for b in range(4):
        a(f"buffer_store_dwordx4 {v(PK+4*b,4)}, {v(vOFF)}, {s(sWS,4)}, {s(sBO)} offen {K1F}")
        if b < 3: a(f"s_add_u32 {s(sBO)}, {s(sBO)}, {s(sBS)}")
    a("s_branch K1_PACK")
    a.label("K1_H")
    a(f"""
    s_lshl_b32 {s(sBO)}, {s(sT)}, 12
    s_lshl_b32 {s(sT)}, {s(sT2)}, 15
    s_add_u32 {s(sBO)}, {s(sBO)}, {s(sT)}
    s_add_u32 {s(sBO)}, {s(sBO)}, 0x{HF:x}
    """)
    for g in range(4):
        gelu_scaled(a, [ACC(0)+8*g+j for j in range(8)], [TMP+j for j in range(8)], vC1, vC2, vONE)
        for j in range(4): a(f"v_cvt_pk_bf16_f32 {v(PK+4*g+j)}, {v(ACC(0)+8*g+2*j)}, {v(ACC(0)+8*g+2*j+1)}")
        a(f"buffer_store_dwordx4 {v(PK+4*g,4)}, {v(vT3)}, {s(sWS,4)}, {s(sBO)} offen offset:{1024*g} {K1F}")
    a.label("K1_PACK")
    stamp(a, 12)
    a(f"""
    s_lshl_b32 {s(sT)}, {s(sW_)}, 11
    s_add_u32 {s(sT)}, {s(sT)}, 0x{SC_3:x}
    v_add_u32 {v(vT0)}, {s(sT)}, {v(vT3)}
    s_waitcnt vmcnt(4)
    ds_write_b128 {v(vT0)}, {v(W3V,4)}
    ds_write_b128 {v(vT0)}, {v(W3V+4,4)} offset:1024
    s_lshr_b32 {s(sT)}, 1024, {s(sNAT)}
    v_add_u32 {v(vT0)}, {s(sT)}, {v(vPT)}
    v_xor_b32 {v(vT1)}, 64, {v(vPT)}
    v_xor_b32 {v(vT2)}, 64, {v(vT0)}
    s_waitcnt lgkmcnt(0)
    ds_read_b64_tr_b16 {v(W3V,2)}, {v(vPT)}
    ds_read_b64_tr_b16 {v(W3V+2,2)}, {v(vT0)}
    ds_read_b64_tr_b16 {v(W3V+4,2)}, {v(vT1)}
    ds_read_b64_tr_b16 {v(W3V+6,2)}, {v(vT2)}
    s_waitcnt lgkmcnt(0)
    buffer_store_dwordx4 {v(W3V,4)}, {v(vT3)}, {s(sWS,4)}, {s(sPD)} offen {K1F}
    buffer_store_dwordx4 {v(W3V+4,4)}, {v(vT3)}, {s(sWS,4)}, {s(sPD)} offen offset:1024 {K1F}
    """)
    if MERGE:
        a(f"""
        s_cmp_lg_u32 {s(sRDY)}, 0
        s_cbranch_scc1 K1_RDY
        """)
        srd(a, sDB, pDBG, 0, 256)
        a(f"s_mov_b32 {s(sT)}, 400000")
        a("s_mov_b64 exec, 1")
        a.label("K1_RDYL")
        a(f"""
        v_mov_b32 {v(TMP)}, 0
        v_mov_b32 {v(TMP+1)}, 0
        buffer_atomic_add {v(TMP)}, {v(TMP+1)}, {s(sDB,4)}, 0 offen sc0 sc1
        s_sub_u32 {s(sT)}, {s(sT)}, 1
        s_cmp_eq_u32 {s(sT)}, 0
        s_cbranch_scc1 K1_RDY
        s_waitcnt vmcnt(0)
        v_cmp_eq_u32 vcc, 0, {v(TMP)}
        s_cbranch_vccz K1_RDY
        s_sleep 8
        s_branch K1_RDYL
        """)
        a.label("K1_RDY")
        a(f"""
        s_mov_b64 exec, 1
        s_add_u32 {s(sT)}, {s(sHB)}, {C_HB}
        s_add_u32 {s(sT2)}, {s(sRB)}, {C_HR}
        s_cmp_eq_u32 {s(sTY)}, 3
        s_cselect_b32 {s(sT)}, {s(sT2)}, {s(sT)}
        s_lshl_b32 {s(sT)}, {s(sT)}, {FSH}
        s_add_u32 {s(sT)}, {s(sT)}, 0x{FLG:x}
        s_lshl_b32 {s(sT2)}, {s(sFH)}, 2
        s_add_u32 {s(sT2)}, {s(sT2)}, 0x{SC_N:x}
        v_mov_b32 {v(vT0)}, {s(sT2)}
        v_mov_b32 {v(vT1)}, 1
        v_mov_b32 {v(vTA)}, 0
        s_waitcnt vmcnt(2)
        ds_add_rtn_u32 {v(vT2)}, {v(vT0)}, {v(vT1)}
        s_waitcnt lgkmcnt(0)
        v_cmp_ne_u32 vcc, 3, {v(vT2)}
        s_cbranch_vccnz K1_NOSIG
        buffer_atomic_add {v(vT1)}, {v(vTA)}, {s(sWS,4)}, {s(sT)} offen sc1
        """)
        a.label("K1_NOSIG")
        a("s_mov_b64 exec, -1")
    a(f"""
    s_cmp_ge_u32 {s(sU)}, 88
    s_cbranch_scc1 K1_NOCS3
    v_mfma_f32_16x16x32_bf16 {v(TMP,4)}, {v(SEL,4)}, {v(W3V,4)}, 0
    v_mfma_f32_16x16x32_bf16 {v(TMP+4,4)}, {v(SEL,4)}, {v(W3V+4,4)}, 0
    s_lshl_b32 {s(sT)}, {s(sW_)}, 8
    s_add_u32 {s(sT)}, {s(sT)}, 0x{SC_3P:x}
    v_lshl_add_u32 {v(vT0)}, {v(vL)}, 2, {s(sT)}
    s_mov_b64 exec, 0xffff
    ds_write_b32 {v(vT0)}, {v(TMP)}
    ds_write_b32 {v(vT0)}, {v(TMP+1)} offset:64
    ds_write_b32 {v(vT0)}, {v(TMP+4)} offset:128
    ds_write_b32 {v(vT0)}, {v(TMP+5)} offset:192
    s_mov_b64 exec, -1
    s_waitcnt lgkmcnt(0)
    s_barrier
    s_cmp_lg_u32 {s(sW_)}, 7
    s_cbranch_scc1 K1_NOCS3
    v_lshlrev_b32 {v(vT0)}, 2, {v(vL)}
    v_add_u32 {v(vT1)}, 0x{SC_3P:x}, {v(vT0)}
    """)
    for w in range(8): a(f"ds_read_b32 {v(TMP+w)}, {v(vT1)} offset:{256*w}")
    a(f"""
    s_mul_i32 {s(sT)}, {s(sKP)}, 6144
    s_lshl_b32 {s(sT2)}, {s(sCI)}, 8
    s_add_u32 {s(sT)}, {s(sT)}, {s(sT2)}
    s_add_u32 {s(sT)}, {s(sT)}, 0x{CS3P:x}
    s_waitcnt lgkmcnt(0)
    """)
    for w in range(1, 8): a(f"v_add_f32 {v(TMP)}, {v(TMP)}, {v(TMP+w)}")
    a(f"buffer_store_dword {v(TMP)}, {v(vT0)}, {s(sWS,4)}, {s(sT)} offen {K1F}")
    a.label("K1_NOCS3")
    if MERGE:
        a(f"""
        s_waitcnt vmcnt(0)
        s_barrier
        s_cmp_lg_u32 {s(sW_)}, 7
        s_cbranch_scc1 K1_FIN
        s_cmp_ge_u32 {s(sU)}, 240
        s_cbranch_scc1 K1_FIN
        s_sub_u32 {s(sT)}, {s(sU)}, 88
        s_cmp_lt_u32 {s(sT)}, 32
        s_mov_b32 {s(sT)}, 0x{cnt(C_PK):x}
        s_cmov_b32 {s(sT)}, 0x{cnt(C_W2):x}
        v_lshlrev_b32 {v(vT0)}, {FSH}, {v(vL)}
        v_mov_b32 {v(vT1)}, 1
        s_mov_b64 exec, 0xff
        buffer_atomic_add {v(vT1)}, {v(vT0)}, {s(sWS,4)}, {s(sT)} offen sc1
        s_mov_b64 exec, -1
        """)
    else:
        a(f"""
        s_or_b32 {s(sT)}, s2, {s(sW_)}
        s_cmp_lg_u32 {s(sT)}, 0
        s_cbranch_scc1 K1_FIN
        v_mov_b32 {v(TMP)}, 0
        v_lshlrev_b32 {v(vT0)}, {FSH}, {v(vL)}
        s_mov_b32 {s(sT)}, 0x{FLG:x}
        buffer_store_dword {v(TMP)}, {v(vT0)}, {s(sWS,4)}, {s(sT)} offen
        """)
    a.label("K1_FIN")
    if PROF and not MERGE: a("s_waitcnt vmcnt(0)")
    stamp(a, 13)
    stamp_flush(a, 0, sW_, pWS)
    if not own: return
    a.label("K1_END")
    a("s_endpgm")
    lines, added = a.done()
    return kernel_text("k1_proj_kernel", lines, 256 if PROF else 204, 102)
```

```python
from common import *

TB = 2080
PROG_A = 16*TB
PROG_B = PROG_A + 1024
CNT_B = PROG_B + 1024
GO_A = CNT_B + 8
CS3L = CNT_B + 64
BR = 36*1024
DUMP = BR + 72*1024
K2_LDS = BR + 120*1024
SPIN = 400000
P1F = 'sc1' if MERGE else ''
POLL = os.environ.get('POLL', 'atomic')
EARLY = int(os.environ.get('EARLY', 2))
POS = eval(os.environ.get('POS', '(2,6,11)'))
LDF = os.environ.get('LDF', 'sc1')
STF = os.environ.get('STF', 'sc1')
PSL = int(os.environ.get('PSL', 2))
ONEPOLL = int(os.environ.get('ONEPOLL', 1))
OUTF = os.environ.get('OUTF', '')

def attention(a):
    sKV, sQO = 8, 12
    sW, sHD, sQB, sT, sT2, sKO, sM, sNEED, sIT, sEX = 28, 29, 30, 31, 32, 33, 34, 35, 36, 38
    vL, vIDX, vKA, vV0, vV1, vPW, vPR, vPROG, vC, vT0, vT1, vOO = 1, 2, 3, 4, 5, 6, 7, 8, 9, 10, 11, 12
    Sa, Sb, Oa, Ob, Ma, Mb, Qa, Qb = 16, 32, 48, 64, 80, 96, 112, 116
    K = [120, 124]; V = [128, 136]
    pWS = 26
    a(f"""
    s_and_b32 {s(sT)}, s2, 7
    s_lshl_b32 {s(sHD)}, {s(sT)}, 2
    s_bfe_u32 {s(sT)}, s2, 0x20003
    s_add_u32 {s(sHD)}, {s(sHD)}, {s(sT)}
    s_lshr_b32 {s(sQB)}, s2, 5
    v_lshlrev_b32 {v(vKA)}, 4, {v(vL)}
    s_lshl_b32 {s(sT)}, {s(sHD)}, 17
    s_add_u32 {s(sT)}, {s(sT)}, 0x{KVF:x}
    s_lshl_b32 {s(sKO)}, {s(sW)}, 11
    s_lshl_b32 {s(sT2)}, {s(sQB)}, 14
    s_add_u32 {s(sKO)}, {s(sKO)}, {s(sT2)}
    s_mul_i32 {s(sM)}, {s(sW)}, {TB}
    s_waitcnt lgkmcnt(0)
    s_add_u32 {s(sKV)}, {s(pWS)}, {s(sT)}
    s_addc_u32 {s(sKV+1)}, {s(pWS+1)}, 0
    s_mov_b32 {s(sKV+2)}, 0x20000
    s_mov_b32 {s(sKV+3)}, 0x20000
    """)
    def dma(slot):
        return [f"s_add_u32 m0, {s(sM)}, {slot*4*TB}",
                f"s_nop 0",
                f"buffer_load_dwordx4 {v(vKA)}, {s(sKV,4)}, {s(sKO)} offen {P1F} lds",
                f"buffer_load_dwordx4 {v(vKA)}, {s(sKV,4)}, {s(sKO)} offen offset:1024 {P1F} lds",
                f"s_add_u32 {s(sKO)}, {s(sKO)}, 8192",
                f"s_and_b32 {s(sKO)}, {s(sKO)}, 0x1ffff"]
    def first_loads():
        for l in dma(0): a(l)
        a(f"""
        s_lshl_b32 {s(sT)}, {s(sHD)}, 16
        s_lshl_b32 {s(sT2)}, {s(sQB)}, 13
        s_add_u32 {s(sT)}, {s(sT)}, {s(sT2)}
        s_lshl_b32 {s(sT2)}, {s(sW)}, 11
        s_add_u32 {s(sT)}, {s(sT)}, {s(sT2)}
        buffer_load_dwordx4 {v(Qa,4)}, {v(vKA)}, {s(sQO,4)}, {s(sT)} offen {P1F}
        buffer_load_dwordx4 {v(Qb,4)}, {v(vKA)}, {s(sQO,4)}, {s(sT)} offen offset:1024 {P1F}
        """)
        for l in dma(1) + dma(2): a(l)
    srd(a, sQO, pWS, 0, WS_USED)
    if not MERGE: first_loads()
    a(f"""
    v_mov_b32 {v(vIDX)}, 0xdddddddd
    v_and_b32 {v(vT0)}, 15, {v(vL)}
    v_lshrrev_b32 {v(vT1)}, 5, {v(vL)}
    v_lshlrev_b32 {v(vV0)}, 4, {v(vT0)}
    v_lshl_add_u32 {v(vV0)}, {v(vT1)}, 8, {v(vV0)}
    v_add_u32 {v(vV0)}, 1024, {v(vV0)}
    v_add_u32 {v(vV1)}, 512, {v(vV0)}
    v_and_b32 {v(vPR)}, 11, {v(vL)}
    v_cmp_eq_u32 vcc, 0, {v(vPR)}
    v_mov_b32 {v(vPW)}, 2048
    v_mov_b32 {v(vC)}, {2048 if os.environ.get("ALLONES") else 2064}
    v_cndmask_b32 {v(vC)}, {v(vC)}, {v(vPW)}, vcc
    v_and_b32 {v(vPR)}, 16, {v(vL)}
    v_cmp_ne_u32 vcc, 0, {v(vPR)}
    v_mov_b32 {v(V[1]+4)}, 0
    v_mov_b32 {v(V[1]+5)}, 0
    v_cndmask_b32 {v(vV0)}, {v(vV0)}, {v(vC)}, vcc
    v_cndmask_b32 {v(vV1)}, {v(vV1)}, {v(vC)}, vcc
    v_mov_b32 {v(V[1]+6)}, 0
    v_mov_b32 {v(V[1]+7)}, 0
    v_mul_u32_u24 {v(vT0)}, {TB}, {v(vT0)}
    v_mov_b32 {v(V[0])}, 0x{ONES:x}
    v_mov_b32 {v(V[0]+1)}, 0x{ONES:x}
    v_mov_b32 {v(V[0]+2)}, 0x{ONES:x}
    v_mov_b32 {v(V[0]+3)}, 0x{ONES:x}
    ds_write_b128 {v(vT0)}, {v(V[0],4)} offset:2048
    ds_write_b128 {v(vT0)}, {v(V[1]+4,4)} offset:2064
    s_lshl_b32 {s(sT)}, {s(sW)}, 8
    v_lshl_add_u32 {v(vPW)}, {v(vL)}, 2, {s(sT)}
    v_and_b32 {v(vPR)}, 3, {v(vL)}
    v_lshlrev_b32 {v(vPR)}, 8, {v(vPR)}
    v_lshl_add_u32 {v(vPR)}, {v(vL)}, 2, {v(vPR)}
    v_mov_b32 {v(vPROG)}, 0
    ds_write_b32 {v(vPW)}, {v(vPROG)} offset:{PROG_A}
    v_mov_b32 {v(vPROG)}, 1
    s_waitcnt lgkmcnt(0)
    s_barrier
    """)
    for j in range(9):
        a(f"v_mov_b32 {v(Oa+j)}, 0"); a(f"v_mov_b32 {v(Ob+j)}, 0")
    if MERGE:
        a(f"""
        s_lshr_b32 {s(sT)}, {s(sHD)}, 2
        s_add_u32 {s(sT)}, {s(sT)}, {C_HB}
        v_lshl_add_u32 {v(vT0)}, {v(vL)}, 3, {s(sT)}
        v_lshlrev_b32 {v(vT0)}, {FSH}, {v(vT0)}
        s_mov_b32 {s(sT2)}, 0x{FLG:x}
        s_mov_b32 {s(sT)}, {SPIN}
        s_cmp_lg_u32 {s(sW)}, 0
        s_cbranch_scc1 AT_GOW
        s_mov_b64 exec, 7
        """)
        a.label("AT_P")
        a(f"""
        v_mov_b32 {v(vC)}, 0
        buffer_atomic_add {v(vC)}, {v(vT0)}, {s(sQO,4)}, {s(sT2)} offen sc0 sc1
        s_sub_u32 {s(sT)}, {s(sT)}, 1
        s_cmp_eq_u32 {s(sT)}, 0
        s_cbranch_scc1 AT_PX
        s_waitcnt vmcnt(0)
        v_cmp_gt_u32 vcc, 16, {v(vC)}
        s_cbranch_vccnz AT_P
        """)
        a.label("AT_PX")
        a(f"""
        s_mov_b64 exec, -1
        s_waitcnt vmcnt(0)
        v_mov_b32 {v(vT1)}, 0
        ds_write_b32 {v(vT1)}, {v(vPROG)} offset:{GO_A}
        s_branch AT_GO
        """)
        a.label("AT_GOW")
        a(f"""
        v_mov_b32 {v(vT1)}, 0
        ds_read_b32 {v(vC)}, {v(vT1)} offset:{GO_A}
        s_sub_u32 {s(sT)}, {s(sT)}, 1
        s_cmp_eq_u32 {s(sT)}, 0
        s_cbranch_scc1 AT_GO
        s_waitcnt lgkmcnt(0)
        v_cmp_eq_u32 vcc, 0, {v(vC)}
        s_cbranch_vccnz AT_GOW
        """)
        a.label("AT_GO")
        stamp(a, 9)
        first_loads()
    a(f"""
    s_mov_b32 {s(sNEED)}, 2
    s_mov_b32 {s(sIT)}, 4
    s_mov_b32 {s(sT)}, {SPIN}
    s_waitcnt vmcnt(4)
    ds_write_b32 {v(vPW)}, {v(vPROG)} offset:{PROG_A}
    """)
    a.label("AT_W0")
    a(f"""
    ds_read_b32 {v(vC)}, {v(vPR)} offset:{PROG_A}
    s_sub_u32 {s(sT)}, {s(sT)}, 1
    s_cmp_eq_u32 {s(sT)}, 0
    s_cbranch_scc1 AT_X0
    s_waitcnt lgkmcnt(0)
    v_cmp_gt_u32 vcc, 1, {v(vC)}
    s_cbranch_vccnz AT_W0
    """)
    a.label("AT_X0")
    stamp(a, 1)
    if os.environ.get("NOATT"): a("s_endpgm")
    a(f"""
    ds_read_b128 {v(K[0],4)}, {v(vKA)}
    ds_read_b128 {v(V[0],4)}, {v(vV0)}
    ds_read_b128 {v(V[0]+4,4)}, {v(vV1)}
    s_waitcnt lgkmcnt(2)
    v_mfma_f32_32x32x16_bf16 {v(Sa,16)}, {v(K[0],4)}, {v(Qa,4)}, 0
    v_mfma_f32_32x32x16_bf16 {v(Sb,16)}, {v(K[0],4)}, {v(Qb,4)}, 0
    """)
    def rowmax(S, dst, first=True):
        if first: a(f"v_max3_f32 {v(dst)}, {v(S)}, {v(S+1)}, {v(S+2)}")
        else: a(f"v_max3_f32 {v(dst)}, {v(dst)}, {v(S)}, {v(S+1)}"); a(f"v_max_f32 {v(dst)}, {v(dst)}, {v(S+2)}")
        for j in range(3, 15, 2): a(f"v_max3_f32 {v(dst)}, {v(dst)}, {v(S+j)}, {v(S+j+1)}")
        a(f"v_max_f32 {v(dst)}, {v(dst)}, {v(S+15)}")
    def spread(M, t):
        a(f"v_mov_b32 {v(t)}, {v(M)}")
        a(f"v_permlane32_swap_b32 {v(M)}, {v(t)}")
        a(f"v_max_f32 {v(t)}, {v(M)}, {v(t)}")
        for j in range(16): a(f"v_sub_f32 {v(M+j)}, 0, {v(t)}")
    rowmax(Sa, Ma); spread(Ma, vT0)
    a(f"v_mfma_f32_32x32x16_bf16 {v(Sa,16)}, {v(K[0],4)}, {v(Qa,4)}, {v(Ma,16)}")
    rowmax(Sb, Mb); spread(Mb, vT1)
    for j in range(8): a(f"v_mov_b32 {v(Sb+8+j)}, 0")
    pv = lambda O, Vr, S: "s_nop 0" if os.environ.get("NOPV") else f"v_smfmac_f32_32x32x32_bf16 {v(O,16)}, {v(Vr,4)}, {v(S,8)}, {v(vIDX)}"
    qk = lambda S, Kr, Q, M: f"v_mfma_f32_32x32x16_bf16 {v(S,16)}, {v(Kr,4)}, {v(Q,4)}, {'0' if os.environ.get('CZERO') else v(M,16)}"
    stamp(a, 2)
    if os.environ.get("DIAG"):
        for r_ in range(40, 52): a(f"s_mov_b32 s{r_}, 0")
    a(".p2align 6")
    a.label("AT_LOOP")
    for t in range(16):
        p = t & 1; q = p ^ 1; j = t & 3; nx = ((t+1) % 16)*TB
        A = {2: [pv(Ob, V[q]+4, Sb+8), "s_waitcnt lgkmcnt(0)"], 6: [qk(Sb, K[p], Qb, Mb), f"ds_read_b128 {v(V[q],4)}, {v(vV0)} offset:{nx}"],
             11: [pv(Oa, V[p], Sa), f"ds_read_b128 {v(V[q]+4,4)}, {v(vV1)} offset:{nx}"]}
        B = {2: [pv(Oa, V[p]+4, Sa+8), "s_waitcnt lgkmcnt(2)"], 6: [qk(Sa, K[q], Qa, Ma)], 11: [pv(Ob, V[p], Sb)]}
        if POS[0] < 2:
            A[2] = A[2][::-1]; B[2] = B[2][::-1]
        if j == 3:
            A[2] += [f"v_cmp_gt_u32 vcc, {s(sNEED)}, {v(vC)}", f"s_cbranch_vccnz AT_SPIN{t}", f"AT_BACK{t}:"]
            d = dma(((t >> 2) + 3) & 3)
            B[6] += [d[0], f"s_add_u32 {s(sNEED)}, {s(sNEED)}, 1", d[2]]
            B[11] += [d[3], d[4], d[5]]
        A[2] += [f"ds_read_b128 {v(K[q],4)}, {v(vKA)} offset:{nx}"]
        if j == 0:
            B[6] += [f"v_add_u32 {v(vPROG)}, 1, {v(vPROG)}"]
            B[11] += ["s_waitcnt vmcnt(2)", f"ds_write_b32 {v(vPW)}, {v(vPROG)} offset:{PROG_A}"]
        if t == 5:
            B[6] += [f"s_cmp_eq_u32 {s(sIT)}, 1", f"s_cselect_b32 {s(sKV+2)}, 0, {s(sKV+2)}"]
        if j == 2:
            B[11] += [f"ds_read_b32 {v(vC)}, {v(vPR)} offset:{PROG_A}"]
        if os.environ.get("DIAG"):
            if j == 3:
                B[6] = [B[6][0], "s_memtime s[40:41]"] + B[6][1:] + ["s_memtime s[42:43]"]
                B[11] = [B[11][0], "s_memtime s[44:45]"] + B[11][1:] + ["s_memtime s[46:47]"]
            if j == 0:
                A[2] = A[2][:2] + ["s_sub_u32 s42, s42, s40", "s_add_u32 s74, s74, s42", "s_sub_u32 s46, s46, s44", "s_add_u32 s76, s76, s46"] + A[2][2:]
                B[11] = [B[11][0], "s_memtime s[48:49]", B[11][1], "s_memtime s[50:51]"] + B[11][2:]
            if j == 1:
                A[2] = A[2][:2] + ["s_sub_u32 s50, s50, s48", "s_add_u32 s78, s78, s50"] + A[2][2:]
        if t == 15:
            B[14] = [f"s_sub_u32 {s(sIT)}, {s(sIT)}, 1", f"s_cmp_lg_u32 {s(sIT)}, 0"]
        for S, ins in ((Sa, A), (Sb, B)):
            ins = {{2: POS[0], 6: POS[1], 11: POS[2]}.get(k_, k_): v_ for k_, v_ in ins.items()}
            for i in range(16):
                for l in ins.get(i, []): a(l)
                a(f"{os.environ.get('EXPOP', 'v_exp_f32')} {v(S+i)}, {v(S+i)}")
    a("s_cbranch_scc1 AT_LOOP")
    a("s_nop 0")
    a(pv(Ob, V[1]+4, Sb+8))
    stamp(a, 3)
    a.label("AT_FIN")
    a("s_nop 7")
    for O, t in ((Oa, vT0), (Ob, vT1)):
        a(f"v_max3_f32 {v(t)}, abs({v(O)}), abs({v(O+1)}), {v(O+8)}")
        for j in range(2, 8, 2): a(f"v_max3_f32 {v(t)}, abs({v(O+j)}), abs({v(O+j+1)}), {v(t)}")
    a(f"""
    v_max_f32 {v(vT0)}, {v(vT0)}, {v(vT1)}
    v_cmp_nlt_f32 vcc, {v(vT0)}, {v(vBIG)}
    s_cmp_eq_u32 {s(sIT)}, 0
    s_cselect_b64 vcc, vcc, 0
    s_cbranch_vccnz AT_SLOW
    v_rcp_f32 {v(vT0)}, {v(Oa+8)}
    v_rcp_f32 {v(vT1)}, {v(Ob+8)}
    s_lshl_b32 {s(sT)}, {s(sHD)}, 10
    s_lshl_b32 {s(sT2)}, {s(sQB)}, 18
    s_add_u32 {s(sT)}, {s(sT)}, {s(sT2)}
    s_lshl_b32 {s(sT2)}, {s(sW)}, 16
    s_add_u32 {s(sT)}, {s(sT)}, {s(sT2)}
    s_add_u32 {s(sT)}, {s(sT)}, 0x{OF:x}
    s_add_u32 {s(sT2)}, {s(sT)}, 0x8000
    """)
    for O, t, o in ((Oa, vT0, sT), (Ob, vT1, sT2)):
        for j in range(8): a(f"v_mul_f32 {v(O+j)}, {v(O+j)}, {v(t)}")
        for j in range(4): a(f"v_cvt_pk_bf16_f32 {v(O+j)}, {v(O+2*j)}, {v(O+2*j+1)}")
        a(f"buffer_store_dwordx4 {v(O,4)}, {v(vKA)}, {s(sQO,4)}, {s(o)} offen sc1")
    a(f"""
    s_lshl_b32 {s(sT)}, {s(sQB)}, 2
    s_add_u32 {s(sT)}, {s(sT)}, {s(sW)}
    s_lshl_b32 {s(sT)}, {s(sT)}, {FSH}
    s_add_u32 {s(sT)}, {s(sT)}, 0x{cnt(C_S3):x}
    v_mov_b32 {v(vT0)}, 1
    v_mov_b32 {v(vT1)}, 0
    s_mov_b64 exec, 1
    s_waitcnt vmcnt(0)
    buffer_atomic_add {v(vT0)}, {v(vT1)}, {s(sQO,4)}, {s(sT)} offen sc1
    """)
    stamp(a, 4)
    stamp_flush(a, 1, sW, pWS)
    a("s_endpgm")
    for t in (3, 7, 11, 15):
        a.label(f"AT_SPIN{t}")
        a(f"s_mov_b32 {s(sT)}, {SPIN}")
        a.label(f"AT_SPINL{t}")
        if os.environ.get("DIAG"): a("s_add_u32 s80, s80, 1")
        a(f"""
        ds_read_b32 {v(vC)}, {v(vPR)} offset:{PROG_A}
        s_sub_u32 {s(sT)}, {s(sT)}, 1
        s_cmp_eq_u32 {s(sT)}, 0
        s_cbranch_scc1 AT_BACK{t}
        s_waitcnt lgkmcnt(0)
        v_cmp_gt_u32 vcc, {s(sNEED)}, {v(vC)}
        s_cbranch_vccnz AT_SPINL{t}
        s_branch AT_BACK{t}
        """)
    a.label("AT_SLOW")
    a(f"""
    s_mov_b32 {s(sIT)}, 1
    s_mov_b32 {s(sKV+2)}, 0x20000
    s_mov_b32 {s(sKO)}, 0
    v_mov_b32 {v(Ma)}, 0xff800000
    v_mov_b32 {v(Mb)}, 0xff800000
    s_waitcnt vmcnt(0) lgkmcnt(0)
    """)
    a.label("AT_SLOW1")
    a(f"""
    buffer_load_dwordx4 {v(K[0],4)}, {v(vKA)}, {s(sKV,4)}, {s(sKO)} offen
    s_add_u32 {s(sKO)}, {s(sKO)}, 2048
    s_waitcnt vmcnt(0)
    v_mfma_f32_32x32x16_bf16 {v(Sa,16)}, {v(K[0],4)}, {v(Qa,4)}, 0
    v_mfma_f32_32x32x16_bf16 {v(Sb,16)}, {v(K[0],4)}, {v(Qb,4)}, 0
    """)
    rowmax(Sa, Ma, False); rowmax(Sb, Mb, False)
    a(f"""
    s_cmp_lt_u32 {s(sKO)}, 0x20000
    s_cbranch_scc1 AT_SLOW1
    """)
    spread(Ma, vT0); spread(Mb, vT1)
    for j in range(9):
        a(f"v_mov_b32 {v(Oa+j)}, 0"); a(f"v_mov_b32 {v(Ob+j)}, 0")
    for j in range(8): a(f"v_mov_b32 {v(V[0]+j)}, 0x{ONES:x}")
    a(f"""
    s_mov_b32 {s(sKO)}, 0
    s_mov_b32 {s(sEX)}, 0xffff
    s_mov_b32 {s(sEX+1)}, 0xffff
    """)
    a.label("AT_SLOW2")
    a(f"""
    buffer_load_dwordx4 {v(K[0],4)}, {v(vKA)}, {s(sKV,4)}, {s(sKO)} offen
    s_mov_b64 exec, {s(sEX,2)}
    buffer_load_dwordx4 {v(V[0],4)}, {v(vV0)}, {s(sKV,4)}, {s(sKO)} offen
    buffer_load_dwordx4 {v(V[0]+4,4)}, {v(vV1)}, {s(sKV,4)}, {s(sKO)} offen
    s_mov_b64 exec, -1
    s_add_u32 {s(sKO)}, {s(sKO)}, 2048
    s_waitcnt vmcnt(0)
    """)
    a(qk(Sa, K[0], Qa, Ma)); a(qk(Sb, K[0], Qb, Mb))
    for S in (Sa, Sb):
        for i in range(16): a(f"v_exp_f32 {v(S+i)}, {v(S+i)}")
    a(pv(Oa, V[0], Sa)); a(pv(Oa, V[0]+4, Sa+8)); a(pv(Ob, V[0], Sb)); a(pv(Ob, V[0]+4, Sb+8))
    a(f"""
    s_cmp_lt_u32 {s(sKO)}, 0x20000
    s_cbranch_scc1 AT_SLOW2
    s_nop 3
    s_branch AT_FIN
    """)
vBIG = 13

def chain(a, pfx="CH"):
    vm = VM(a)
    PRIO = os.environ.get("PRIO", 2)
    sH, sX, sWS, sOUT = 8, 12, 40, 44
    pX, pOUT, pWS = 16, 18, 26
    sW, sC, sTG, sM16, sT64, sJ, sT, sT2, sT3, sSO, sFL, sNB, sFT, sTH = 28, 29, 30, 31, 32, 33, 34, 35, 36, 37, 38, 39, 48, 49
    sR1, sR2, sB1, sB2, sTT, sWB, sROT = 50, 51, 52, 53, 54, 55, 56
    vL, vI, vHI, vT0, vT1, vT2, vT3 = 1, 2, 3, 4, 5, 6, 7
    vPW, vPR, vPROG, vC, vDUMP, vTOK = 9, 10, 11, 12, 14, 15
    vWA = [16, 17]; vRA = [18, 19, 20]; vH = [21, 22]; vXO, vSTO, vZ = 23, 24, 25
    v3A = [26, 27]; vL16 = 28; vPK = 29
    ACC = 32
    WF = lambda p, f: 96 + 12*p + 4*f
    BIG = 120
    XR, STv = 248, 252
    lo = lambda: a("s_setprio 0")
    hi = lambda: a(f"s_setprio {PRIO}")
    a(f"""
    s_sub_u32 {s(sC)}, {s(sW)}, 4
    s_lshl_b32 {s(sT)}, {s(sC)}, 8
    v_lshl_add_u32 {v(vPW)}, {v(vL)}, 2, {s(sT)}
    v_mov_b32 {v(vPROG)}, 0
    v_mov_b32 {v(vZ)}, 0
    ds_write_b32 {v(vPW)}, {v(vPROG)} offset:{PROG_B}
    ds_write_b32 {v(vZ)}, {v(vZ)} offset:{CNT_B}
    ds_write_b32 {v(vZ)}, {v(vZ)} offset:{CNT_B+4}
    ds_write_b32 {v(vZ)}, {v(vZ)} offset:{GO_A}
    s_and_b32 {s(sT)}, s2, 7
    s_lshl_b32 {s(sTG)}, {s(sT)}, 1
    s_bfe_u32 {s(sT2)}, s2, 0x10003
    s_add_u32 {s(sTG)}, {s(sTG)}, {s(sT2)}
    s_lshr_b32 {s(sM16)}, s2, 4
    s_and_b32 {s(sT)}, {s(sM16)}, 1
    s_lshl_b32 {s(sT64)}, {s(sTG)}, 1
    s_add_u32 {s(sT64)}, {s(sT64)}, {s(sT)}
    s_lshr_b32 {s(sJ)}, {s(sM16)}, 1
    s_and_b32 {s(sFT)}, {s(sC)}, 1
    s_lshr_b32 {s(sTH)}, {s(sC)}, 1
    s_lshl_b32 {s(sTT)}, {s(sT64)}, 1
    s_add_u32 {s(sTT)}, {s(sTT)}, {s(sTH)}
    v_and_b32 {v(vI)}, 31, {v(vL)}
    v_lshrrev_b32 {v(vHI)}, 5, {v(vL)}
    v_lshlrev_b32 {v(vL16)}, 4, {v(vL)}
    s_lshl_b32 {s(sT)}, {s(sJ)}, 1
    s_add_u32 {s(sT)}, {s(sT)}, {s(sFT)}
    s_lshl_b32 {s(sT)}, {s(sT)}, 10
    v_add_u32 {v(vWA[0])}, {s(sT)}, {v(vL16)}
    v_xor_b32 {v(vWA[1])}, 1024, {v(vWA[0])}
    s_add_u32 {s(sT)}, {s(sTH)}, 1
    s_sub_u32 {s(sT2)}, 0, {s(sT)}
    s_cmp_eq_u32 {s(sFT)}, 0
    s_cselect_b32 {s(sT)}, {s(sT2)}, {s(sT)}
    s_lshl_b32 {s(sT3)}, {s(sTT)}, 5
    v_add_u32 {v(vTOK)}, {s(sT3)}, {v(vI)}
    v_mov_b32 {v(vT3)}, 0x40000000
    """)
    for b in (0, 1):
        a(f"""
        v_xor_b32 {v(vT0)}, {32*b}, {v(vTOK)}
        v_add_u32 {v(vT0)}, {s(sT)}, {v(vT0)}
        v_cmp_gt_u32 vcc, 0x800, {v(vT0)}
        v_lshrrev_b32 {v(vT1)}, 5, {v(vT0)}
        v_and_b32 {v(vT0)}, 31, {v(vT0)}
        v_lshlrev_b32 {v(vT0)}, 4, {v(vT0)}
        v_lshl_add_u32 {v(vT0)}, {v(vT1)}, 15, {v(vT0)}
        v_lshl_add_u32 {v(vT0)}, {v(vHI)}, 9, {v(vT0)}
        v_cndmask_b32 {v(vH[b])}, {v(vT3)}, {v(vT0)}, vcc
        """)
    a(f"""
    s_and_b32 {s(sT)}, {s(sT64)}, 3
    s_lshl_b32 {s(sROT)}, {s(sT)}, 1
    s_add_u32 {s(sROT)}, {s(sROT)}, {s(sJ)}
    s_mov_b32 {s(sR1)}, {s(sROT)}
    s_lshl_b32 {s(sB1)}, {s(sC)}, 3
    s_waitcnt lgkmcnt(0)
    """)
    srd(a, sWS, pWS, 0, WS_USED)
    srd(a, sH, pWS, HF, 0x200000)
    a("s_barrier")
    def rot8(r):
        a(f"""
        s_and_b32 {s(r)}, {s(r)}, 7
        s_add_u32 {s(sT)}, {s(r)}, {s(sB1)}
        s_add_u32 {s(r)}, {s(r)}, 1
        """)
    def wload(dst, base, tag):
        a(f"s_lshl_b32 {s(sSO)}, {s(sT)}, 14")
        a(f"s_add_u32 {s(sSO)}, {s(sSO)}, 0x{base:x}")
        for f in (0, 1): vm.op(f"buffer_load_dwordx4 {v(dst+4*f,4)}, {v(vWA[f])}, {s(sWS,4)}, {s(sSO)} offen {P1F}", tag)
    def load1(st):
        rot8(sR1)
        a(f"s_lshl_b32 {s(sT2)}, {s(sT)}, 10")
        wload(BIG+16*st, W2F, f"a{st}")
        for b in (0, 1): vm.op(f"buffer_load_dwordx4 {v(BIG+16*st+8+4*b,4)}, {v(vH[b])}, {s(sH,4)}, {s(sT2)} offen {P1F}", f"a{st}")
    LA1 = int(os.environ.get('LA1', 3))
    if not MERGE:
        for st in range(LA1): load1(st)
    srd(a, sX, pX, 0, 0x200000)
    srd(a, sOUT, pOUT, 0, 0x200000)
    a(f"""
    v_lshlrev_b32 {v(vXO)}, 10, {v(vTOK)}
    v_lshl_add_u32 {v(vXO)}, {v(vHI)}, 4, {v(vXO)}
    s_lshl_b32 {s(sT)}, {s(sJ)}, 7
    s_lshl_b32 {s(sT2)}, {s(sFT)}, 6
    s_add_u32 {s(sT)}, {s(sT)}, {s(sT2)}
    v_add_u32 {v(vXO)}, {s(sT)}, {v(vXO)}
    v_lshlrev_b32 {v(vSTO)}, 3, {v(vTOK)}
    v_add_u32 {v(v3A[0])}, {BR}, {v(vL16)}
    v_add_u32 {v(v3A[1])}, {BR+49152}, {v(vL16)}
    s_mul_i32 {s(sT)}, {s(sC)}, 12288
    s_add_u32 {s(sT)}, {s(sT)}, {DUMP}
    v_add_u32 {v(vDUMP)}, {s(sT)}, {v(vL16)}
    """)
    for u in (1, 2, 3):
        a(f"""
        s_xor_b32 {s(sT)}, {s(sC)}, {u}
        s_mul_i32 {s(sT)}, {s(sT)}, 12288
        s_add_u32 {s(sT)}, {s(sT)}, {DUMP + (u-1)*4096}
        v_add_u32 {v(vRA[u-1])}, {s(sT)}, {v(vL16)}
        """)
    a(f"""
    v_and_b32 {v(vPR)}, 3, {v(vL)}
    v_lshlrev_b32 {v(vPR)}, 8, {v(vPR)}
    v_lshl_add_u32 {v(vPR)}, {v(vL)}, 2, {v(vPR)}
    s_lshl_b32 {s(sFL)}, {s(sTG)}, {FSH}
    s_add_u32 {s(sFL)}, {s(sFL)}, 0x{FLG:x}
    s_mov_b32 {s(sNB)}, 0
    s_and_b32 {s(sT)}, {s(sTG)}, 1
    s_lshl_b32 {s(sT)}, {s(sT)}, 2
    s_lshl_b32 {s(sR2)}, {s(sM16)}, 1
    s_add_u32 {s(sR2)}, {s(sR2)}, {s(sT)}
    s_mul_i32 {s(sWB)}, {s(sM16)}, 3072
    s_add_u32 {s(sWB)}, {s(sWB)}, 0x{W3F:x}
    """)
    nlab = [0]
    def arrive():
        a(f"""
        v_add_u32 {v(vPROG)}, 1, {v(vPROG)}
        s_add_u32 {s(sNB)}, {s(sNB)}, 1
        s_waitcnt lgkmcnt(0)
        ds_write_b32 {v(vPW)}, {v(vPROG)} offset:{PROG_B}
        """)
    def await_(prog=PROG_B, need=None, sleep=0):
        n = nlab[0]; nlab[0] += 1
        a(f"s_mov_b32 {s(sT)}, {SPIN}")
        a.label(f"{pfx}_W{n}")
        if sleep: a(f"s_sleep {sleep}")
        a(f"""
        ds_read_b32 {v(vC)}, {v(vPR)} offset:{prog}
        s_sub_u32 {s(sT)}, {s(sT)}, 1
        s_cmp_eq_u32 {s(sT)}, 0
        s_cbranch_scc1 {pfx}_X{n}
        s_waitcnt lgkmcnt(0)
        v_cmp_gt_u32 vcc, {s(sNB) if need is None else need}, {v(vC)}
        s_cbranch_vccnz {pfx}_W{n}
        """)
        a.label(f"{pfx}_X{n}")
        a("s_waitcnt lgkmcnt(0)")
    def signal(k):
        n = nlab[0]; nlab[0] += 1
        a(f"""
        s_mov_b64 exec, 1
        v_mov_b32 {v(vT0)}, 1
        ds_add_rtn_u32 {v(vT1)}, {v(vZ)}, {v(vT0)} offset:{CNT_B+4*k}
        s_add_u32 {s(sT2)}, {s(sFL)}, {(16 << FSH)*k}
        s_waitcnt lgkmcnt(0)
        v_cmp_ne_u32 vcc, 3, {v(vT1)}
        s_cbranch_vccnz {pfx}_S{n}
        buffer_atomic_add {v(vT0)}, {v(vZ)}, {s(sWS,4)}, {s(sT2)} offen sc1
        """)
        a.label(f"{pfx}_S{n}")
        a("s_mov_b64 exec, -1")
    def poll(count, addr=None, lanes=1, everyone=False):
        n = nlab[0]; nlab[0] += 1
        if not everyone:
            a(f"s_cmp_lg_u32 {s(sC)}, 0")
            a(f"s_cbranch_scc1 {pfx}_Q{n}")
        a(f"s_mov_b32 {s(sT)}, {SPIN}")
        a(f"s_mov_b64 exec, {(1 << lanes) - 1}")
        a.label(f"{pfx}_P{n}")
        a(f"""
        v_mov_b32 {v(vC)}, 0
        buffer_atomic_add {v(vC)}, {v(vZ if addr is None else addr)}, {s(sWS,4)}, {s(sT2)} offen sc0 sc1
        s_sub_u32 {s(sT)}, {s(sT)}, 1
        s_cmp_eq_u32 {s(sT)}, 0
        s_cbranch_scc1 {pfx}_Q{n}
        s_waitcnt vmcnt(0)
        v_cmp_gt_u32 vcc, {count}, {v(vC)}
        s_cbranch_vccz {pfx}_Q{n}
        s_sleep {PSL}
        s_branch {pfx}_P{n}
        """)
        a.label(f"{pfx}_Q{n}")
        a("s_mov_b64 exec, -1")
        a("s_waitcnt vmcnt(0)")
        vm.q = []
        if not everyone:
            arrive(); await_()
    def mm4(wreg, breg, first, keep0):
        for u in (1, 2, 3, 0):
            c = "0" if (first and not (keep0 and u == 0)) else v(ACC+16*u, 16)
            a(f"v_mfma_f32_32x32x16_bf16 {v(ACC+16*u,16)}, {v(wreg+4*(u&1),4)}, {v(breg+4*(u>>1),4)}, {c}")
    def reduce4(between=None):
        lo()
        for u in (1, 2, 3):
            for q in range(4): a(f"ds_write_b128 {v(vDUMP)}, {v(ACC+16*u+4*q,4)} offset:{(u-1)*4096+q*1024}")
        hi()
        arrive()
        if between: between()
        await_()
        for u in (1, 2, 3):
            for q in range(4): a(f"ds_read_b128 {v(ACC+16*u+4*q,4)}, {v(vRA[u-1])} offset:{q*1024}")
        for u in (1, 2, 3):
            a(f"s_waitcnt lgkmcnt({4*(3-u)})")
            for j in range(0, 16, 2): a(f"v_pk_add_f32 {v(ACC+j,2)}, {v(ACC+j,2)}, {v(ACC+16*u+j,2)}")
    def w3dma(slot0, per, i):
        a(f"""
        s_mul_i32 {s(sT)}, {s(sC)}, {per}
        s_add_u32 {s(sT)}, {s(sT)}, {slot0+i}
        s_add_u32 {s(sT2)}, {s(sT)}, {s(sR2)}
        s_and_b32 {s(sT2)}, {s(sT2)}, 31
        s_mul_i32 {s(sT)}, {s(sT)}, 3072
        s_add_u32 m0, {s(sT)}, {BR}
        s_mul_i32 {s(sT2)}, {s(sT2)}, {44*1024}
        s_add_u32 {s(sT2)}, {s(sT2)}, {s(sWB)}
        """)
        for f in range(3): vm.op(f"buffer_load_dwordx4 {v(vL16)}, {s(sWS,4)}, {s(sT2)} offen offset:{1024*f} {P1F} lds", "w3")
    if os.environ.get("NOCHAIN"): a("s_endpgm")
    if MERGE:
        a(f"""
        s_lshl_b32 {s(sT)}, {s(sT64)}, 6
        s_add_u32 {s(sT2)}, {s(sT)}, 65
        s_min_u32 {s(sT2)}, {s(sT2)}, 2047
        s_max_u32 {s(sT)}, {s(sT)}, 2
        s_sub_u32 {s(sT)}, {s(sT)}, 2
        s_lshr_b32 {s(sT)}, {s(sT)}, 7
        s_lshr_b32 {s(sT2)}, {s(sT2)}, 7
        s_add_u32 {s(sT)}, {s(sT)}, {C_HR}
        s_add_u32 {s(sT2)}, {s(sT2)}, {C_HR}
        s_and_b32 {s(sT3)}, s2, 7
        s_add_u32 {s(sT3)}, {s(sT3)}, {C_W2}
        v_mov_b32 {v(vT2)}, {s(sT)}
        v_mov_b32 {v(vT3)}, 8
        v_writelane_b32 {v(vT2)}, {s(sT2)}, 1
        v_writelane_b32 {v(vT3)}, 32, 2
        v_writelane_b32 {v(vT2)}, {s(sT3)}, 2
        s_mov_b32 {s(sT2)}, 0x{FLG:x}
        v_lshlrev_b32 {v(vT2)}, {FSH}, {v(vT2)}
        """)
        poll(v(vT3), vT2, 3)
        for st in range(LA1): load1(st)
    stamp(a, 1)
    XA, XB, C3 = WF(0, 0), WF(0, 1), BIG+120
    for st in range(8):
        if st+LA1 < 8: load1(st+LA1)
        if st == 8-LA1:
            a(f"""
            s_mov_b32 {s(sT2)}, 0x{ST1:x}
            """)
            vm.op(f"buffer_load_dwordx4 {v(XA,4)}, {v(vXO)}, {s(sX,4)}, 0 offen", "x")
            vm.op(f"buffer_load_dwordx4 {v(XB,4)}, {v(vXO)}, {s(sX,4)}, 0 offen offset:32", "x")
            vm.op(f"buffer_load_dwordx2 {v(STv,2)}, {v(vSTO)}, {s(sWS,4)}, {s(sT2)} offen {P1F}", "x")
        if st == 7 and MERGE:
            a(f"""
            s_and_b32 {s(sT3)}, s2, 7
            s_lshl_b32 {s(sT3)}, {s(sT3)}, {FSH}
            s_add_u32 {s(sT3)}, {s(sT3)}, 0x{cnt(C_PK):x}
            v_mov_b32 {v(vPK)}, 0
            s_mov_b64 exec, 1
            """)
            vm.op(f"buffer_atomic_add {v(vPK)}, {v(vZ)}, {s(sWS,4)}, {s(sT3)} offen sc0 sc1", "x")
            a("s_mov_b64 exec, -1")
        vm.wait(f"a{st}")
        mm4(BIG+16*st, BIG+16*st+8, st == 0, False)
    hi()
    stamp(a, 2)
    XF = BIG
    def resid():
        vm.wait("x")
        a(f"""
        v_permlane32_swap_b32 {v(XA)}, {v(XA+2)}
        v_permlane32_swap_b32 {v(XA+1)}, {v(XA+3)}
        v_permlane32_swap_b32 {v(XB)}, {v(XB+2)}
        v_permlane32_swap_b32 {v(XB+1)}, {v(XB+3)}
        v_mul_f32 {v(STv)}, {v(STv)}, {v(STv+1)}
        v_sub_f32 {v(STv+2)}, 0, {v(STv)}
        v_sub_f32 {v(STv+3)}, 0, {v(STv)}
        v_mov_b32 {v(STv)}, {v(STv+1)}
        """)
        for j in range(8):
            a(f"v_lshlrev_b32 {v(XF+2*j)}, 16, {v(XA+j)}")
            a(f"v_and_b32 {v(XF+2*j+1)}, 0xffff0000, {v(XA+j)}")
        for j in range(0, 16, 2): a(f"v_pk_fma_f32 {v(XF+16+j,2)}, {v(XF+j,2)}, {v(STv,2)}, {v(STv+2,2)}")
        for j in range(0, 16, 2): a(f"v_pk_add_f32 {v(ACC+j,2)}, {v(ACC+j,2)}, {v(XF+16+j,2)}")
    reduce4(resid)
    stamp(a, 3)
    arrive()
    for j in range(8): a(f"v_cvt_pk_bf16_f32 {v(XF+16+j)}, {v(ACC+2*j)}, {v(ACC+2*j+1)}")
    a(f"""
    s_lshl_b32 {s(sT3)}, {s(sJ)}, 1
    s_add_u32 {s(sT3)}, {s(sT3)}, {s(sFT)}
    s_lshl_b32 {s(sT)}, {s(sT3)}, 11
    s_lshl_b32 {s(sT2)}, {s(sTT)}, 15
    s_add_u32 {s(sT)}, {s(sT)}, {s(sT2)}
    s_add_u32 {s(sT)}, {s(sT)}, 0x{X1F:x}
    """)
    vm.op(f"buffer_store_dwordx4 {v(XF+16,4)}, {v(vL16)}, {s(sWS,4)}, {s(sT)} offen {STF}", "st")
    vm.op(f"buffer_store_dwordx4 {v(XF+20,4)}, {v(vL16)}, {s(sWS,4)}, {s(sT)} offen offset:1024 {STF}", "st")
    a(f"v_pk_add_f32 {v(XR,2)}, {v(ACC,2)}, {v(ACC+2,2)}")
    a(f"v_pk_mul_f32 {v(XR+2,2)}, {v(ACC,2)}, {v(ACC,2)}")
    a(f"v_pk_fma_f32 {v(XR+2,2)}, {v(ACC+2,2)}, {v(ACC+2,2)}, {v(XR+2,2)}")
    for j in range(4, 16, 2):
        a(f"v_pk_add_f32 {v(XR,2)}, {v(XR,2)}, {v(ACC+j,2)}")
        a(f"v_pk_fma_f32 {v(XR+2,2)}, {v(ACC+j,2)}, {v(ACC+j,2)}, {v(XR+2,2)}")
    a(f"v_add_f32 {v(XR)}, {v(XR)}, {v(XR+1)}")
    a(f"v_add_f32 {v(XR+1)}, {v(XR+2)}, {v(XR+3)}")
    halves_sum(a, XR, vT0); halves_sum(a, XR+1, vT1)
    a(f"""
    s_lshl_b32 {s(sT)}, {s(sT3)}, 14
    s_add_u32 {s(sT)}, {s(sT)}, 0x{ST2:x}
    """)
    vm.op(f"buffer_store_dwordx2 {v(XR,2)}, {v(vSTO)}, {s(sWS,4)}, {s(sT)} offen {STF}", "st")
    for j in range(0, 16, 2): a(f"v_pk_add_f32 {v(ACC+j,2)}, {v(ACC+j,2)}, {v(XF+j,2)}")
    await_()
    stamp(a, 4)
    vm.wait("st")
    stamp(a, 5)
    signal(0)
    lo()
    if MERGE:
        a(f"""
        v_readfirstlane_b32 {s(sT)}, {v(vPK)}
        s_and_b32 {s(sT2)}, s2, 7
        s_lshl_b32 {s(sT2)}, {s(sT2)}, {FSH}
        s_add_u32 {s(sT2)}, {s(sT2)}, 0x{cnt(C_PK):x}
        s_cmp_ge_u32 {s(sT)}, 208
        s_cbranch_scc1 CH_PKOK
        v_mov_b32 {v(vT3)}, 208
        """)
        poll(v(vT3), None, 1, True)
        a.label("CH_PKOK")
    a(f"""
    s_mul_i32 {s(sT)}, {s(sM16)}, 384
    s_add_u32 {s(sT)}, {s(sT)}, 0x{CS3P:x}
    v_lshlrev_b32 {v(vT2)}, 3, {v(vL)}
    """)
    for kp in range(4):
        vm.op(f"buffer_load_dwordx2 {v(C3+2*kp,2)}, {v(vT2)}, {s(sWS,4)}, {s(sT)} offen {P1F}", "c3")
        if kp < 3: a(f"s_add_u32 {s(sT)}, {s(sT)}, 6144")
    for i in range(8): w3dma(0, 8, i)
    a(f"""
    s_lshl_b32 {s(sT)}, {s(sTG)}, 7
    s_lshl_b32 {s(sT2)}, {s(sC)}, 5
    s_add_u32 {s(sT)}, {s(sT)}, {s(sT2)}
    v_add_u32 {v(vT3)}, {s(sT)}, {v(vI)}
    v_lshlrev_b32 {v(vT3)}, 3, {v(vT3)}
    v_lshl_add_u32 {v(vT3)}, {v(vHI)}, 17, {v(vT3)}
    s_lshl_b32 {s(sB2)}, {s(sT)}, 10
    s_add_u32 {s(sB2)}, {s(sB2)}, 0x{X1F:x}
    s_mov_b32 {s(sT2)}, {s(sFL)}
    """)
    stamp(a, 6)
    poll(16)
    stamp(a, 7)
    A3 = ACC+16; S2 = WF(1, 0) - 4
    def xload(kb):
        a(f"""
        s_and_b32 {s(sR2)}, {s(sR2)}, 31
        s_lshl_b32 {s(sT)}, {s(sR2)}, 10
        s_add_u32 {s(sT)}, {s(sT)}, {s(sB2)}
        s_add_u32 {s(sR2)}, {s(sR2)}, 1
        """)
        vm.op(f"buffer_load_dwordx4 {v(BIG+4*kb,4)}, {v(vL16)}, {s(sWS,4)}, {s(sT)} offen {LDF}", f"x{kb}")
    LA = 8
    a(f"s_mov_b32 {s(sT2)}, 0x{ST2:x}")
    for t in range(8):
        vm.op(f"buffer_load_dwordx2 {v(S2+2*t,2)}, {v(vT3)}, {s(sWS,4)}, {s(sT2)} offen {LDF}", "s2")
        a(f"s_add_u32 {s(sT2)}, {s(sT2)}, 0x4000")
    for kb in range(LA): xload(kb)
    hi()
    a(f"""
    v_pk_add_f32 {v(C3,2)}, {v(C3,2)}, {v(C3+2,2)}
    v_pk_add_f32 {v(C3+4,2)}, {v(C3+4,2)}, {v(C3+6,2)}
    v_pk_add_f32 {v(C3,2)}, {v(C3,2)}, {v(C3+4,2)}
    ds_write_b64 {v(vT2)}, {v(C3,2)} offset:{CS3L}
    """)
    vm.wait("s2")
    for t in range(1, 8): a(f"v_pk_add_f32 {v(S2,2)}, {v(S2,2)}, {v(S2+2*t,2)}")
    a(f"v_mov_b32 {v(XR)}, {v(S2)}")
    a(f"v_mov_b32 {v(XR+2)}, {v(S2+1)}")
    def t3(kb):
        for f in range(3): a(f"ds_read_b128 {v(WF(kb&1,f),4)}, {v(v3A[kb>>4])} offset:{(kb&15)*3072+1024*f}")
    t3(0)
    halves_sum(a, XR, vT0); halves_sum(a, XR+2, vT1)
    a(f"""
    v_mul_f32 {v(XR)}, {fl(-1/512)}, {v(XR)}
    v_mul_f32 {v(vT0)}, {v(XR)}, {v(XR)}
    v_mov_b32 {v(vT1)}, {fl(1/512)}
    v_fma_f32 {v(vT0)}, {v(XR+2)}, {v(vT1)}, -{v(vT0)}
    v_max_f32 {v(vT0)}, 0, {v(vT0)}
    v_add_f32 {v(vT0)}, {fl(EPS)}, {v(vT0)}
    v_rsq_f32 {v(XR+2)}, {v(vT0)}
    v_mov_b32 {v(XR+1)}, {v(XR)}
    """)
    gelu_consts(a, XR+2, STv, STv+2, 30)
    lo()
    for kb in range(32):
        if kb < 31: t3(kb+1)
        if kb+LA < 32: xload(kb+LA)
        vm.wait(f"x{kb}")
        a(f"s_waitcnt lgkmcnt({3 if kb < 31 else 0})")
        for f in range(3):
            a(f"v_mfma_f32_32x32x16_bf16 {v(A3+16*f,16)}, {v(WF(kb&1,f),4)}, {v(BIG+4*kb,4)}, {'0' if kb == 0 else v(A3+16*f,16)}")
    hi()
    stamp(a, 8)
    NW, NG = 10, 5
    WR = lambda st: 96 + 8*(st % NW)
    GR = lambda st: 176 + 8*(st % NG)
    CSV = 176; PK = 216; TMP = 240; vC1, vC2, vONE = STv, STv+2, 8
    a(f"""
    s_and_b32 {s(sT)}, {s(sT64)}, 3
    s_mul_i32 {s(sT)}, {s(sT)}, 5
    s_mul_i32 {s(sR1)}, {s(sJ)}, 3
    s_add_u32 {s(sR1)}, {s(sR1)}, {s(sT)}
    s_sub_u32 {s(sT)}, {s(sR1)}, 22
    s_cmp_ge_u32 {s(sR1)}, 22
    s_cselect_b32 {s(sR1)}, {s(sT)}, {s(sR1)}
    s_mov_b32 {s(sR2)}, {s(sR1)}
    s_mul_i32 {s(sB2)}, {s(sC)}, 22
    v_lshlrev_b32 {v(vT0)}, 4, {v(vHI)}
    s_lshl_b32 {s(sT)}, {s(sTG)}, 2
    s_add_u32 {s(sT)}, {s(sT)}, {s(sC)}
    s_mul_i32 {s(sT3)}, {s(sT)}, {96*1024}
    s_mul_i32 {s(sT)}, {s(sM16)}, 6144
    s_add_u32 {s(sT3)}, {s(sT3)}, {s(sT)}
    s_add_u32 {s(sT3)}, {s(sT3)}, 0x{GF:x}
    s_add_u32 {s(sWB)}, {s(sT3)}, 4096
    """)
    vONE = 30
    def rot22(r):
        a(f"""
        s_add_u32 {s(sT)}, {s(r)}, {s(sB2)}
        s_add_u32 {s(r)}, {s(r)}, 1
        s_cmp_eq_u32 {s(r)}, 22
        s_cselect_b32 {s(r)}, 0, {s(r)}
        """)
    def w4load(st): rot22(sR1); wload(WR(st), W4F, f"w{st}")
    def gload(st):
        rot22(sR2)
        a(f"s_lshl_b32 {s(sT2)}, {s(sT)}, 10")
        for b in (0, 1): vm.op(f"buffer_load_dwordx4 {v(GR(st)+4*b,4)}, {v(vH[b])}, {s(sWS,4)}, {s(sT2)} offen {LDF}", f"g{st}")
    def csread(g):
        for q in (0, 1): a(f"ds_read_b128 {v(CSV+8*(g&1)+4*q,4)}, {v(vT0)} offset:{CS3L+64*g+32*q}")
    csread(0)
    for g in range(6):
        xs = [A3+8*g+j for j in range(8)]
        if g < 5: csread(g+1)
        a(f"s_waitcnt lgkmcnt({2 if g < 5 else 0})")
        for j in range(0, 8, 2): a(f"v_pk_fma_f32 {v(xs[j],2)}, {v(CSV+8*(g&1)+j,2)}, {v(XR,2)}, {v(xs[j],2)}")
        gelu_scaled(a, xs, [TMP+j for j in range(8)], vC1, vC2, vONE)
        for j in range(4): a(f"v_cvt_pk_bf16_f32 {v(PK+4*g+j)}, {v(xs[2*j])}, {v(xs[2*j+1])}")
        vm.op(f"buffer_store_dwordx4 {v(PK+4*g,4)}, {v(vL16)}, {s(sWS,4)}, {s(sT3 if g < 4 else sWB)} offen offset:{1024*(g&3)} {STF}", "st")
        if g < 4: w4load(g)
    stamp(a, 9)
    a(f"""
    s_mul_i32 {s(sT)}, {s(sTT)}, {96*1024}
    s_add_u32 {s(sT)}, {s(sT)}, 0x{GF:x}
    s_xor_b32 {s(sT2)}, {s(sTT)}, 1
    s_mul_i32 {s(sT2)}, {s(sT2)}, {96*1024}
    s_add_u32 {s(sT2)}, {s(sT2)}, 0x{GF:x}
    v_add_u32 {v(vH[0])}, {s(sT)}, {v(vL16)}
    v_add_u32 {v(vH[1])}, {s(sT2)}, {v(vL16)}
    """)
    vm.wait("st")
    stamp(a, 10)
    signal(1)
    lo()
    for st in range(4, NW): w4load(st)
    a(f"s_add_u32 {s(sT2)}, {s(sFL)}, {16 << FSH}")
    poll(16)
    stamp(a, 11)
    for st in range(NG-1): gload(st)
    for st in range(22):
        if st+NG-1 < 22: gload(st+NG-1)
        vm.wait(f"w{st}", f"g{st}")
        mm4(WR(st), GR(st), st == 0, True)
        if st+NW < 22: w4load(st+NW)
    stamp(a, 12)
    a(f"s_mov_b32 {s(sR1)}, {s(sROT)}")
    WO = lambda st: 96 + 8*st
    OO = lambda st: 176 + 8*st
    for st in range(8): rot8(sR1); wload(WO(st), WOF, "wo")
    a(f"""
    s_lshl_b32 {s(sT)}, {s(sTT)}, 15
    s_add_u32 {s(sT)}, {s(sT)}, 0x{OF:x}
    v_add_u32 {v(vH[0])}, {s(sT)}, {v(vL16)}
    v_xor_b32 {v(vH[1])}, 0x8000, {v(vH[0])}
    s_mov_b32 {s(sR1)}, {s(sROT)}
    """)
    if not os.environ.get("NOATT"):
        await_(PROG_A, 17, 8)
        a(f"s_lshl_b32 {s(sT2)}, {s(sT64)}, {FSH}")
        a(f"s_add_u32 {s(sT2)}, {s(sT2)}, 0x{cnt(C_S3):x}")
        poll(32)
    stamp(a, 13)
    hi()
    for st in range(8):
        rot8(sR1)
        a(f"s_lshl_b32 {s(sT2)}, {s(sT)}, 10")
        for b in (0, 1): vm.op(f"buffer_load_dwordx4 {v(OO(st)+4*b,4)}, {v(vH[b])}, {s(sWS,4)}, {s(sT2)} offen {LDF}", f"o{st}")
    for st in range(8):
        vm.wait(f"o{st}", "wo")
        mm4(WO(st), OO(st), False, True)
    reduce4()
    Y = BIG
    for j in range(8): a(f"v_cvt_pk_bf16_f32 {v(Y+j)}, {v(ACC+2*j)}, {v(ACC+2*j+1)}")
    for b in (0, 1):
        a(f"v_permlane32_swap_b32 {v(Y+4*b)}, {v(Y+4*b+2)}")
        a(f"v_permlane32_swap_b32 {v(Y+4*b+1)}, {v(Y+4*b+3)}")
    for b in (0, 1): a(f"buffer_store_dwordx4 {v(Y+4*b,4)}, {v(vXO)}, {s(sOUT,4)}, 0 offen offset:{32*b} {OUTF}")
    if PROF:
        a("s_waitcnt vmcnt(0)")
        stamp(a, 1)
    stamp_flush(a, 1, sW, pWS)
    a("s_endpgm")

def gen_k2(a=None):
    own = a is None
    if own:
        a = Asm()
        a("s_cmp_ge_u32 s2, 256")
        a("s_cbranch_scc1 K2_END")
    stamp_init(a); stamp(a, 0)
    a(f"""
    s_load_dwordx2 s[26:27], s[0:1], {P_WS}
    s_load_dwordx2 s[16:17], s[0:1], {A_X}
    s_load_dwordx2 s[18:19], s[0:1], {P_OUT}
    v_lshrrev_b32 v2, 6, v0
    v_and_b32 v1, 63, v0
    v_readfirstlane_b32 s28, v2
    v_mov_b32 {v(vBIG)}, {fl(2.0**126)}
    s_cmp_ge_u32 s28, 4
    s_cbranch_scc1 K2_CHAIN
    """)
    attention(a)
    a(".p2align 6")
    a.label("K2_CHAIN")
    chain(a)
    a.label("K2_END" if own else "K1_END")
    a("s_endpgm")
    lines, added = a.done()
    return kernel_text("k2_mix_kernel" if own else NAME, lines, 256, 102)

NAME = "parallel_sum__mha_block__mixer_s_mlp__prompt_kernel"
def gen_merged():
    import k1
    a = Asm()
    k1.gen_k1(a)
    return gen_k2(a)
```

```python
import sys
sys.path.insert(0, "gen")
from common import *
import importlib
HEADER = open("parallel_sum__mha_block__mixer_s_mlp__prompt.s.ref").read().split("; Override launch")[0]
def assemble(kernels, path):
    out = [HEADER.rstrip()]
    for name, grid, block, lds, _ in kernels:
        if len(kernels) == 1 and not os.environ.get("LIST"): out.append(f"; @launch grid=({grid},1,1) block=({block},1,1) lds={lds}")
        else: out.append(f"; @launch kernel={name} grid=({grid},1,1) block=({block},1,1) lds={lds}")
    out += ['.amdgcn_target "amdgcn-amd-amdhsa--gfx950"', ".text"]
    seen = []
    for name, *_, (code, desc) in kernels:
        if name in seen: continue
        seen.append(name); out += code
    out.append('.section .rodata,"a"')
    seen = []
    for name, *_, (code, desc) in kernels:
        if name in seen: continue
        seen.append(name); out += desc
    open(path, "w").write("\n".join(out) + "\n")
if __name__ == "__main__":
    import k1, k2, k3
    if MERGE: ks = [(k2.NAME, 256, 512, 163840, k2.gen_merged())]
    else: ks = [("k1_proj_kernel", 256, 512, 163840, k1.gen_k1()),
          ("k2_mix_kernel", 256, 512, k2.K2_LDS, k2.gen_k2())]
    assemble(ks, sys.argv[1] if len(sys.argv) > 1 else "parallel_sum__mha_block__mixer_s_mlp__prompt.s")
```

```python
from common import *

SC_3, SC_S, SC_C, SC_3P = 0x20000, 0x24000, 0x24800, 0x24c00

K1F = os.environ.get('K1F', 'sc1')

STATS = os.environ.get('STATS', 'dots')

def gen_k1(a=None):
    own = a is None
    if own: a = Asm()
    sX, sW, sWS = 8, 12, 16
    pX, pQKV, pW1, pWS = 20, 22, 24, 26
    sW_, sTQ, sFH, sRB, sCB, sHB, sTY, sSTR, sCOL = 28, 29, 30, 31, 32, 33, 34, 35, 36
    sXO, sWO, sM0, sT, sT2, sCH, sSC, sBS, sBO, s8S, s64S = 37, 38, 39, 40, 41, 42, 43, 44, 45, 46, 47
    sP, pA, sKP, sCI, sXB, sPS, sPD, sPR, sNAT = 48, 52, 60, 61, 62, 63, 3, 4, 5
    pWO, pDBG, sRDY, sU, sDB, sJC = 6, 98, 100, 101, 92, 54
    vL, vT0, vT1, vT2, vT3 = 1, 2, 3, 4, 5
    vX0, vX1, vWD = 6, 7, 8
    vI, vHI, vPA, vPT = 9, 10, 11, 12
    XA = lambda st, k: 16 + st*4 + k
    WA = lambda st, ft: 24 + st*3 + ft
    SEL = 32
    XF = lambda p: 36 + 16*p
    WF = lambda p, ft: 40 + 16*p + 4*ft
    ACC = lambda ft: 84 + 16*ft
    GR = 116
    CSV = 124; PK = 156; TMP = 172
    vMEAN, vR, vR1, vOFF, vTA, vTB, vSUM, vSQ = 180, 182, 184, 185, 186, 187, 188, 189
    vC1, vC2, vONE, W3V = 190, 192, 194, 196
    a(f"""
    s_cmp_ge_u32 s2, 256
    s_cbranch_scc1 K1_END
    """)
    stamp_init(a); stamp(a, 0)
    a(f"""
    s_load_dwordx4 {s(pX,4)}, s[0:1], {A_X}
    s_load_dwordx2 {s(pW1,2)}, s[0:1], {B_W1}
    s_load_dwordx2 {s(pWS,2)}, s[0:1], {P_WS}
    s_load_dwordx2 {s(pWO,2)}, s[0:1], {A_WO}
    s_load_dwordx2 {s(pA,2)}, s[0:1], {B_W2}
    s_load_dwordx4 {s(pA+4,4)}, s[0:1], {B_W3}
    s_load_dwordx2 {s(pDBG,2)}, s[0:1], {P_DBG}
    v_lshrrev_b32 {v(vT0)}, 6, v0
    v_and_b32 {v(vL)}, 63, v0
    v_readfirstlane_b32 {s(sW_)}, {v(vT0)}
    s_and_b32 {s(sT)}, s2, 3
    s_lshl_b32 {s(sRB)}, {s(sT)}, 2
    s_bfe_u32 {s(sT)}, s2, 0x20003
    s_add_u32 {s(sRB)}, {s(sRB)}, {s(sT)}
    s_lshl_b32 {s(sCH)}, {s(sT)}, 1
    s_bfe_u32 {s(sT)}, s2, 0x10002
    s_lshl_b32 {s(sCB)}, {s(sT)}, 3
    s_lshr_b32 {s(sT2)}, s2, 5
    s_add_u32 {s(sCB)}, {s(sCB)}, {s(sT2)}
    s_add_u32 {s(sCH)}, {s(sCH)}, {s(sT2)}
    s_and_b32 {s(sCH)}, {s(sCH)}, 7
    s_and_b32 {s(sTQ)}, {s(sW_)}, 3
    s_lshr_b32 {s(sFH)}, {s(sW_)}, 2
    s_mul_i32 {s(sT)}, {s(sFH)}, 24
    s_add_u32 {s(sHB)}, {s(sT)}, {s(sCB)}
    s_lshl_b32 {s(sT)}, {s(sCB)}, 1
    s_add_u32 {s(sT)}, {s(sT)}, {s(sFH)}
    s_sub_u32 {s(sT)}, {s(sT)}, 8
    s_cmp_lt_u32 {s(sCB)}, 8
    s_cselect_b32 {s(sHB)}, {s(sHB)}, {s(sT)}
    s_lshr_b32 {s(sTY)}, {s(sHB)}, 3
    s_lshl_b32 {s(sCOL)}, {s(sHB)}, 7
    s_sub_u32 {s(sT)}, {s(sCOL)}, 3072
    s_cmp_eq_u32 {s(sTY)}, 3
    s_cselect_b32 {s(sCOL)}, {s(sT)}, {s(sCOL)}
    s_mov_b32 {s(sSTR)}, 3072
    s_cmov_b32 {s(sSTR)}, 1024
    s_lshl_b32 {s(s8S)}, {s(sSTR)}, 3
    s_lshl_b32 {s(s64S)}, {s(sSTR)}, 6
    v_lshrrev_b32 {v(vT0)}, 3, {v(vL)}
    v_lshrrev_b32 {v(vT1)}, 4, {v(vL)}
    v_and_b32 {v(vT2)}, 7, {v(vL)}
    v_xor_b32 {v(vT3)}, {v(vT2)}, {v(vT1)}
    v_lshlrev_b32 {v(vT3)}, 4, {v(vT3)}
    s_lshl_b32 {s(sT)}, {s(sW_)}, 4
    v_add_u32 {v(vX0)}, {s(sT)}, {v(vT0)}
    v_lshl_add_u32 {v(vX0)}, {v(vX0)}, 10, {v(vT3)}
    v_xor_b32 {v(vX1)}, 64, {v(vX0)}
    v_add_u32 {v(vX1)}, 0x2000, {v(vX1)}
    v_and_b32 {v(vT1)}, 1, {v(vT1)}
    v_lshlrev_b32 {v(vT1)}, 2, {v(vT1)}
    v_xor_b32 {v(vT1)}, {v(vT1)}, {v(vT2)}
    v_lshlrev_b32 {v(vT1)}, 4, {v(vT1)}
    s_lshl_b32 {s(sT)}, {s(sTQ)}, 4
    v_add_u32 {v(vT3)}, {s(sT)}, {v(vT0)}
    v_mul_lo_u32 {v(vWD)}, {v(vT3)}, {s(sSTR)}
    v_add3_u32 {v(vWD)}, {v(vWD)}, {v(vT1)}, {s(sCOL)}
    s_lshl_b32 {s(sXB)}, {s(sRB)}, 17
    s_lshl_b32 {s(sM0)}, {s(sW_)}, 11
    s_waitcnt lgkmcnt(0)
    """)
    srd(a, sX, pX, 0, 0x200000)
    a(f"""
    s_cmp_eq_u32 {s(sTY)}, 3
    s_cselect_b32 {s(sW)}, {s(pW1)}, {s(pQKV)}
    s_cselect_b32 {s(sW+1)}, {s(pW1+1)}, {s(pQKV+1)}
    s_lshl_b32 {s(sW+2)}, {s(sSTR)}, 9
    s_mov_b32 {s(sW+3)}, 0x20000
    """)
    def dma(vm, c, i):
        sl = (c % 4)*32768
        if i == 0:
            a(f"""
            s_lshl_b32 {s(sXO)}, {s(sCH)}, 7
            s_add_u32 m0, {s(sM0)}, {sl}
            s_add_u32 {s(sXO)}, {s(sXO)}, {s(sXB)}
            """)
            vm.op(f"buffer_load_dwordx4 {v(vX0)}, {s(sX,4)}, {s(sXO)} offen lds", c)
        elif i == 1:
            a(f"s_add_u32 m0, {s(sM0)}, {sl+16384}")
            a(f"s_mul_i32 {s(sWO)}, {s(sCH)}, {s(s64S)}")
            vm.op(f"buffer_load_dwordx4 {v(vWD)}, {s(sW,4)}, {s(sWO)} offen lds", c)
        elif i == 2:
            a(f"s_add_u32 m0, {s(sM0)}, {sl+1024}")
            a(f"s_add_u32 {s(sCH)}, {s(sCH)}, 1")
            vm.op(f"buffer_load_dwordx4 {v(vX1)}, {s(sX,4)}, {s(sXO)} offen lds", c)
        else:
            a(f"s_add_u32 m0, {s(sM0)}, {sl+17408}")
            a(f"s_add_u32 {s(sWO)}, {s(sWO)}, {s(s8S)}")
            vm.op(f"buffer_load_dwordx4 {v(vWD)}, {s(sW,4)}, {s(sWO)} offen lds", c)
            a(f"s_and_b32 {s(sCH)}, {s(sCH)}, 7")
    vm0 = VM(a)
    stamp(a, 1)
    for i in range(4): dma(vm0, 0, i)
    srd(a, sWS, pWS, 0, WS_USED)
    a(f"""
    s_lshr_b32 {s(sT)}, s2, 3
    s_lshl_b32 {s(sT)}, {s(sT)}, 2
    s_and_b32 {s(sT2)}, s2, 3
    s_add_u32 {s(sT)}, {s(sT)}, {s(sT2)}
    s_add_u32 {s(sU)}, {s(sT)}, 128
    s_cmp_lt_u32 {s(sT)}, 88
    s_cselect_b32 {s(sU)}, {s(sT)}, {s(sU)}
    s_add_u32 {s(sT)}, {s(sT)}, 88
    s_cmp_ge_u32 {s(sCB)}, 8
    s_cselect_b32 {s(sU)}, {s(sT)}, {s(sU)}
    s_mul_i32 {s(sKP)}, {s(sU)}, 2979
    s_lshr_b32 {s(sKP)}, {s(sKP)}, 16
    s_mul_i32 {s(sT)}, {s(sKP)}, 22
    s_sub_u32 {s(sCI)}, {s(sU)}, {s(sT)}
    s_mov_b64 {s(sP,2)}, {s(pA+4,2)}
    s_mov_b32 {s(sP+2)}, {512*2752}
    s_mov_b32 {s(sP+3)}, 0x20000
    s_mov_b32 {s(sPR)}, 2752
    s_mov_b32 {s(sPD)}, 0x{W3F:x}
    s_mov_b32 {s(sJC)}, {C_W3}
    s_mov_b32 {s(sT2)}, 44
    s_mov_b32 {s(sNAT)}, 0
    s_cmp_lt_u32 {s(sU)}, 88
    s_cbranch_scc1 K1_JOB
    s_and_b32 {s(sCI)}, {s(sU)}, 7
    s_mov_b32 {s(sPR)}, 1024
    s_mov_b32 {s(sT2)}, 16
    s_mov_b32 {s(sP+2)}, 0x80000
    s_sub_u32 {s(sKP)}, {s(sU)}, 88
    s_mov_b64 {s(sP,2)}, {s(pA,2)}
    s_mov_b32 {s(sPD)}, 0x{W2F:x}
    s_mov_b32 {s(sJC)}, {C_W2}
    s_cmp_lt_u32 {s(sU)}, 120
    s_cbranch_scc1 K1_JOBS
    s_sub_u32 {s(sKP)}, {s(sU)}, 120
    s_mov_b64 {s(sP,2)}, {s(pWO,2)}
    s_mov_b32 {s(sPD)}, 0x{WOF:x}
    s_mov_b32 {s(sJC)}, {C_WO}
    s_mov_b32 {s(sNAT)}, 1
    s_cmp_lt_u32 {s(sU)}, 152
    s_cbranch_scc1 K1_JOBS
    s_sub_u32 {s(sKP)}, {s(sU)}, 152
    s_mov_b64 {s(sP,2)}, {s(pA+6,2)}
    s_mov_b32 {s(sP+2)}, {1376*1024}
    s_mov_b32 {s(sPD)}, 0x{W4F:x}
    s_mov_b32 {s(sJC)}, {C_W4}
    s_mov_b32 {s(sNAT)}, 0
    s_cmp_lt_u32 {s(sU)}, 240
    s_cbranch_scc1 K1_JOBS
    s_mov_b32 {s(sPD)}, 0x40000000
    """)
    a.label("K1_JOBS")
    a(f"s_lshr_b32 {s(sKP)}, {s(sKP)}, 3")
    a.label("K1_JOB")
    a(f"""
    s_lshl_b32 {s(sT)}, {s(sKP)}, 3
    s_add_u32 {s(sT)}, {s(sT)}, {s(sW_)}
    s_mul_i32 {s(sT2)}, {s(sT2)}, {s(sT)}
    s_lshl_b32 {s(sPS)}, {s(sCI)}, 1
    s_add_u32 {s(sT2)}, {s(sT2)}, {s(sPS)}
    s_lshl_b32 {s(sT2)}, {s(sT2)}, 10
    s_add_u32 {s(sPD)}, {s(sPD)}, {s(sT2)}
    s_mul_i32 {s(sT)}, {s(sT)}, {s(sPR)}
    s_lshl_b32 {s(sT)}, {s(sT)}, 4
    s_lshl_b32 {s(sPS)}, {s(sCI)}, 7
    s_add_u32 {s(sPS)}, {s(sPS)}, {s(sT)}
    v_mul_lo_u32 {v(vPA)}, {v(vT0)}, {s(sPR)}
    v_add_u32 {v(vPA)}, {v(vPA)}, {v(vT1)}
    s_lshl_b32 {s(sPR)}, {s(sPR)}, 3
    s_add_u32 {s(sPR)}, {s(sPR)}, {s(sPS)}
    """)
    a(f"""
    v_mov_b32 {v(TMP)}, 0
    v_mov_b32 {v(TMP+1)}, 0
    v_mov_b32 {v(vTA)}, 0x{SC_N:x}
    ds_write_b64 {v(vTA)}, {v(TMP,2)}
    ds_write_b32 {v(vTA)}, {v(TMP)} offset:8
    """)
    if MERGE:
        a(f"""
        s_cmp_lg_u32 s2, 0
        s_cbranch_scc1 K1_NOINIT
        s_cmp_lg_u32 {s(sW_)}, 7
        s_cbranch_scc1 K1_NOINIT
        v_lshlrev_b32 {v(vTA)}, {FSH}, {v(vL)}
        s_mov_b32 {s(sT)}, 0x{cnt(0):x}
        s_mov_b32 {s(sT2)}, 0x{cnt(64):x}
        buffer_store_dword {v(TMP)}, {v(vTA)}, {s(sWS,4)}, {s(sT)} offen sc1
        buffer_store_dword {v(TMP)}, {v(vTA)}, {s(sWS,4)}, {s(sT2)} offen sc1
        s_mov_b32 {s(sT)}, 0x{cnt(128):x}
        buffer_store_dword {v(TMP)}, {v(vTA)}, {s(sWS,4)}, {s(sT)} offen sc1
        """)
        a.label("K1_NOINIT")
        a("s_waitcnt lgkmcnt(0)")
    a("s_barrier")
    for i in range(4): dma(vm0, 1, i)
    a(f"""
    v_and_b32 {v(vI)}, 31, {v(vL)}
    v_lshrrev_b32 {v(vHI)}, 5, {v(vL)}
    s_lshl_b32 {s(sT)}, {s(sTQ)}, 5
    v_add_u32 {v(vT0)}, {s(sT)}, {v(vI)}
    v_lshlrev_b32 {v(vT0)}, 7, {v(vT0)}
    v_bfe_u32 {v(vT1)}, {v(vI)}, 1, 3
    v_xor_b32 {v(vT1)}, {v(vT1)}, {v(vHI)}
    v_bfe_u32 {v(vT2)}, {v(vL)}, 2, 2
    v_lshlrev_b32 {v(vT3)}, 7, {v(vT2)}
    v_lshrrev_b32 {v(vT2)}, 1, {v(vT2)}
    v_lshl_add_u32 {v(vT3)}, {v(vT2)}, 6, {v(vT3)}
    v_bfe_u32 {v(vT2)}, {v(vL)}, 4, 1
    v_lshl_add_u32 {v(vT3)}, {v(vT2)}, 5, {v(vT3)}
    v_and_b32 {v(vTB)}, 15, {v(vL)}
    v_cmp_eq_u32 vcc, {v(vTB)}, {v(vT2)}
    v_and_b32 {v(vT2)}, 3, {v(vL)}
    v_lshl_add_u32 {v(vT3)}, {v(vT2)}, 3, {v(vT3)}
    v_lshl_add_u32 {v(vTB)}, {v(vHI)}, 10, {v(vT3)}
    v_mov_b32 {v(vT2)}, 0x{ONES:x}
    v_cndmask_b32 {v(SEL)}, 0, {v(vT2)}, vcc
    s_add_u32 {s(sT)}, {s(sNAT)}, 9
    v_lshlrev_b32 {v(vPT)}, {s(sT)}, {v(vHI)}
    s_lshl_b32 {s(sT)}, {s(sW_)}, 11
    s_add_u32 {s(sT)}, {s(sT)}, 0x{SC_3:x}
    v_add3_u32 {v(vPT)}, {v(vPT)}, {v(vT3)}, {s(sT)}
    s_lshl_b32 {s(sT)}, {s(sFH)}, 13
    s_add_u32 {s(sT)}, {s(sT)}, 16384
    v_add_u32 {v(WA(0,0))}, {s(sT)}, {v(vTB)}
    v_xor_b32 {v(WA(0,1))}, 64, {v(WA(0,0))}
    s_and_b32 {s(sT)}, {s(sTQ)}, 1
    s_lshl_b32 {s(sT)}, {s(sT)}, 13
    s_add_u32 {s(sT)}, {s(sT)}, 16384
    s_lshr_b32 {s(sT2)}, {s(sTQ)}, 1
    s_lshl_b32 {s(sT2)}, {s(sT2)}, 6
    v_xor_b32 {v(WA(0,2))}, {s(sT2)}, {v(vTB)}
    v_add_u32 {v(WA(0,2))}, {s(sT)}, {v(WA(0,2))}
    v_mov_b32 {v(SEL+1)}, {v(SEL)}
    v_mov_b32 {v(SEL+2)}, {v(SEL)}
    v_mov_b32 {v(SEL+3)}, {v(SEL)}
    v_mov_b32 {v(GR)}, 0
    v_mov_b32 {v(GR+1)}, 0
    v_mov_b32 {v(GR+2)}, 0
    v_mov_b32 {v(GR+3)}, 0
    v_mov_b32 {v(vONE)}, 0x{ONES:x}
    """)
    for k in range(4):
        a(f"v_xor_b32 {v(vT2)}, {2*k}, {v(vT1)}")
        a(f"v_lshl_add_u32 {v(XA(0,k))}, {v(vT2)}, 4, {v(vT0)}")
    for k in range(4): a(f"v_add_u32 {v(XA(1,k))}, 65536, {v(XA(0,k))}")
    for ft in range(3): a(f"v_add_u32 {v(WA(1,ft))}, 65536, {v(WA(0,ft))}")
    stamp(a, 2)
    def body(fh):
        vm = VM(a); vm.q = list(vm0.q)
        nr = 5 + 2*fh
        def reads(n):
            c, k = divmod(n, 4); sl = c % 4; st = sl >> 1; o = (sl & 1)*32768; p = n % 3
            a(f"ds_read_b128 {v(XF(p),4)}, {v(XA(st,k))} offset:{o}")
            for ft in range(2+fh):
                a(f"ds_read_b64_tr_b16 {v(WF(p,ft),2)}, {v(WA(st,ft))} offset:{o+k*2048}")
                a(f"ds_read_b64_tr_b16 {v(WF(p,ft)+2,2)}, {v(WA(st,ft))} offset:{o+k*2048+512}")
        def compute(n):
            p = n % 3
            z = lambda r, w: "0" if n == 0 else v(r, w)
            mine = {"valu": fh == 0, "valu2": (n & 1) == fh, "valu31": (n % 4 == 3) == (fh == 1)}.get(STATS, False)
            if STATS == "dots" and fh == 0:
                for j in range(4):
                    a(f"v_dot2_f32_bf16 {v(GR+2)}, {v(XF(p)+j)}, {v(XF(p)+j)}, {v(GR+2)}")
                    a(f"v_dot2_f32_bf16 {v(GR)}, {v(XF(p)+j)}, {v(vONE)}, {v(GR)}")
            for ft in (0, 1):
                a(f"v_mfma_f32_32x32x16_bf16 {v(ACC(ft),16)}, {v(WF(p,ft),4)}, {v(XF(p),4)}, {z(ACC(ft),16)}")
                if mine:
                    for j in (2*ft, 2*ft+1):
                        a(f"v_lshlrev_b32 {v(TMP+2*j)}, 16, {v(XF(p)+j)}")
                        a(f"v_and_b32 {v(TMP+2*j+1)}, 0xffff0000, {v(XF(p)+j)}")
                    for j in range(4*ft, 4*ft+4):
                        a(f"v_add_f32 {v(GR+(j&1))}, {v(GR+(j&1))}, {v(TMP+j)}")
                        a(f"v_fmac_f32 {v(GR+2+(j&1))}, {v(TMP+j)}, {v(TMP+j)}")
            if fh == 1 and STATS != "none":
                a(f"v_mfma_f32_16x16x32_bf16 {v(GR+4,4)}, {v(SEL,4)}, {v(WF(p,2),4)}, {z(GR+4,4)}")
        sched = {0: [(2, 0), (2, 1)], 1: [(2, 2), (2, 3)]}
        for c in range(5):
            for i in range(4): sched[4*c+2+i] = [(c+3, i)]
        vm.wait(0)
        a("s_barrier")
        if MERGE and fh == 1:
            a(f"""
            s_xor_b32 {s(sT)}, {s(sW_)}, 7
            s_or_b32 {s(sT)}, {s(sT)}, s2
            s_cbranch_scc1 K1_NOFLAG
            """)
            srd(a, sDB, pDBG, 0, 256)
            a(f"""
            v_mov_b32 {v(TMP+1)}, 1
            s_mov_b64 exec, 1
            buffer_store_dword {v(TMP+1)}, {v(TMP)}, {s(sDB,4)}, 0 offen sc1
            s_mov_b64 exec, -1
            """)
            a.label("K1_NOFLAG")
        stamp(a, 3)
        reads(0); reads(1)
        extra = 0
        for n in range(32):
            c, k = divmod(n, 4)
            if k == 2 and c < 7:
                vm.wait(c+1)
                a("s_barrier")
                stamp(a, 4+c)
            if n < 30: reads(n+2)
            a(f"s_waitcnt lgkmcnt({min(15, nr*min(2, 31-n))})")
            compute(n)
            for cc, i in sched.get(n, []): dma(vm, cc, i)
            if n == 24 and MERGE: a(f"s_load_dword {s(sRDY)}, {s(pDBG,2)}, 0")
            if n == 27 and MERGE:
                a(f"""
                v_lshlrev_b32 {v(vT0)}, 2, v0
                v_mov_b32 {v(vT1)}, 0
                ds_write_b32 {v(vT0)}, {v(vT1)} offset:{16*2080}
                ds_write_b32 {v(vT0)}, {v(vT1)} offset:{16*2080+256}
                """)
            if n == 26:
                vm.op(f"buffer_load_dwordx4 {v(W3V,4)}, {v(vPA)}, {s(sP,4)}, {s(sPS)} offen", "p")
                vm.op(f"buffer_load_dwordx4 {v(W3V+4,4)}, {v(vPA)}, {s(sP,4)}, {s(sPR)} offen", "p")
        stamp(a, 11)
        a(f"v_add_f32 {v(GR)}, {v(GR)}, {v(GR+1)}")
        a(f"v_add_f32 {v(GR+1)}, {v(GR+2)}, {v(GR+3)}")
        halves_sum(a, GR, vT1); halves_sum(a, GR+1, vT2)
        a(f"""
        s_lshl_b32 {s(sT)}, {s(sTQ)}, 9
        s_add_u32 {s(sT)}, {s(sT)}, 0x{SC_S+8*fh:x}
        v_lshl_add_u32 {v(vT0)}, {v(vI)}, 4, {s(sT)}
        ds_write_b64 {v(vT0)}, {v(GR,2)}
        """)
        if fh == 0: pass
        else:
            a(f"""
            s_and_b32 {s(sT)}, {s(sTQ)}, 1
            s_lshl_b32 {s(sT)}, {s(sT)}, 8
            s_lshr_b32 {s(sT2)}, {s(sTQ)}, 1
            s_lshl_b32 {s(sT2)}, {s(sT2)}, 7
            s_add_u32 {s(sT)}, {s(sT)}, {s(sT2)}
            s_add_u32 {s(sT)}, {s(sT)}, 0x{SC_C:x}
            v_lshl_add_u32 {v(vT1)}, {v(vL)}, 2, {s(sT)}
            s_mov_b64 exec, 0xffff
            ds_write_b32 {v(vT1)}, {v(GR+4)}
            ds_write_b32 {v(vT1)}, {v(GR+5)} offset:64
            s_mov_b64 exec, -1
            """)
    a(f"""
    s_cmp_eq_u32 {s(sFH)}, 1
    s_cbranch_scc1 K1_B1
    """)
    body(0)
    a("s_branch K1_JOIN")
    a.label("K1_B1")
    body(1)
    a.label("K1_JOIN")
    a(f"""
    s_lshl_b32 {s(sT)}, {s(sTQ)}, 9
    s_add_u32 {s(sT)}, {s(sT)}, 0x{SC_S:x}
    v_lshl_add_u32 {v(vT1)}, {v(vI)}, 4, {s(sT)}
    s_lshl_b32 {s(sT)}, {s(sFH)}, 8
    s_add_u32 {s(sT)}, {s(sT)}, 0x{SC_C:x}
    v_lshl_add_u32 {v(vT2)}, {v(vHI)}, 4, {s(sT)}
    s_waitcnt lgkmcnt(0)
    s_barrier
    ds_read_b128 {v(TMP,4)}, {v(vT1)}
    """)
    for ft in (0, 1):
        for q in range(4): a(f"ds_read_b128 {v(CSV+16*ft+4*q,4)}, {v(vT2)} offset:{128*ft+32*q}")
    a(f"""
    s_cmp_eq_u32 {s(sTY)}, 0
    s_cselect_b32 {s(sSC)}, {fl(0.25*LOG2E)}, 1.0
    s_lshl_b32 {s(sT2)}, {s(sRB)}, 2
    s_add_u32 {s(sT2)}, {s(sT2)}, {s(sTQ)}
    v_mov_b32 {v(vTB)}, {fl(1/512)}
    s_waitcnt lgkmcnt(8)
    v_add_f32 {v(vSUM)}, {v(TMP)}, {v(TMP+2)}
    v_add_f32 {v(vSQ)}, {v(TMP+1)}, {v(TMP+3)}
    v_mul_f32 {v(vMEAN)}, {v(vTB)}, {v(vSUM)}
    v_mul_f32 {v(vTA)}, {v(vMEAN)}, {v(vMEAN)}
    v_fma_f32 {v(vTA)}, {v(vSQ)}, {v(vTB)}, -{v(vTA)}
    v_max_f32 {v(vTA)}, 0, {v(vTA)}
    v_add_f32 {v(vTB)}, {fl(EPS)}, {v(vTA)}
    v_rsq_f32 {v(vR1)}, {v(vTB)}
    s_cmp_lg_u32 {s(sTY)}, 3
    v_mul_f32 {v(vR)}, {s(sSC)}, {v(vR1)}
    s_cbranch_scc1 K1_NOR2
    v_mul_f32 {v(vTB)}, {v(vR1)}, {v(vR1)}
    v_fmaak_f32 {v(vTB)}, {v(vTB)}, {v(vTA)}, {fl(EPS)}
    v_rsq_f32 {v(vTB)}, {v(vTB)}
    s_nop 0
    v_mul_f32 {v(vR)}, {v(vR1)}, {v(vTB)}
    """)
    gelu_consts(a, vR, vC1, vC2, vONE)
    a.label("K1_NOR2")
    a(f"""
    s_cmp_lg_u32 {s(sHB)}, 24
    s_cbranch_scc1 K1_NOST
    s_lshl_b32 {s(sT)}, {s(sT2)}, 8
    s_add_u32 {s(sT)}, {s(sT)}, 0x{ST1:x}
    v_lshlrev_b32 {v(vTA)}, 3, {v(vI)}
    v_mov_b32 {v(PK)}, {v(vMEAN)}
    v_mov_b32 {v(PK+1)}, {v(vR1)}
    buffer_store_dwordx2 {v(PK,2)}, {v(vTA)}, {s(sWS,4)}, {s(sT)} offen {K1F}
    """)
    a.label("K1_NOST")
    a(f"""
    v_sub_f32 {v(vMEAN)}, 0, {v(vMEAN)}
    v_mov_b32 {v(vR+1)}, {v(vR)}
    v_mov_b32 {v(vMEAN+1)}, {v(vMEAN)}
    s_waitcnt lgkmcnt(0)
    """)
    for j in range(0, 32, 2): a(f"v_pk_fma_f32 {v(ACC(0)+j,2)}, {v(CSV+j,2)}, {v(vMEAN,2)}, {v(ACC(0)+j,2)}")
    a(f"""
    v_lshlrev_b32 {v(vT3)}, 4, {v(vL)}
    s_and_b32 {s(sT)}, {s(sHB)}, 7
    s_cmp_eq_u32 {s(sTY)}, 3
    s_cbranch_scc1 K1_H
    """)
    for j in range(0, 32, 2): a(f"v_pk_mul_f32 {v(ACC(0)+j,2)}, {v(ACC(0)+j,2)}, {v(vR,2)}")
    for j in range(16): a(f"v_cvt_pk_bf16_f32 {v(PK+j)}, {v(ACC(0)+2*j)}, {v(ACC(0)+2*j+1)}")
    a(f"""
    s_cmp_eq_u32 {s(sTY)}, 0
    s_cbranch_scc1 K1_Q
    s_mov_b32 {s(sBS)}, 0x20000
    s_lshl_b32 {s(sBO)}, {s(sT)}, 19
    s_lshl_b32 {s(sT)}, {s(sT2)}, 11
    s_add_u32 {s(sBO)}, {s(sBO)}, {s(sT)}
    s_add_u32 {s(sBO)}, {s(sBO)}, 0x{KVF:x}
    s_cmp_eq_u32 {s(sTY)}, 2
    s_cbranch_scc1 K1_V
    v_and_b32 {v(vOFF)}, 0x33, {v(vL)}
    v_bfe_u32 {v(vTA)}, {v(vL)}, 2, 1
    v_lshl_add_u32 {v(vOFF)}, {v(vTA)}, 3, {v(vOFF)}
    v_bfe_u32 {v(vTA)}, {v(vL)}, 3, 1
    v_lshl_add_u32 {v(vOFF)}, {v(vTA)}, 2, {v(vOFF)}
    v_lshlrev_b32 {v(vOFF)}, 4, {v(vOFF)}
    s_branch K1_STORE
    """)
    a.label("K1_V")
    a(f"""
    s_add_u32 {s(sBO)}, {s(sBO)}, 1024
    s_lshl_b32 {s(sT)}, {s(sW_)}, 12
    s_add_u32 {s(sT)}, {s(sT)}, 0x10000
    v_lshlrev_b32 {v(vTA)}, 5, {v(vI)}
    v_lshl_add_u32 {v(vTA)}, {v(vHI)}, 4, {v(vTA)}
    v_add_u32 {v(vTA)}, {s(sT)}, {v(vTA)}
    """)
    for b in range(4): a(f"ds_write_b128 {v(vTA)}, {v(PK+4*b,4)} offset:{1024*b}")
    a(f"""
    v_bfe_u32 {v(vTB)}, {v(vL)}, 4, 1
    v_lshlrev_b32 {v(vOFF)}, 9, {v(vTB)}
    v_lshl_add_u32 {v(vTA)}, {v(vHI)}, 7, {v(vOFF)}
    v_and_b32 {v(vTB)}, 15, {v(vL)}
    v_lshl_add_u32 {v(vTA)}, {v(vTB)}, 3, {v(vTA)}
    v_add_u32 {v(vTA)}, {s(sT)}, {v(vTA)}
    v_lshl_add_u32 {v(vOFF)}, {v(vHI)}, 8, {v(vOFF)}
    v_lshl_add_u32 {v(vOFF)}, {v(vTB)}, 4, {v(vOFF)}
    s_waitcnt lgkmcnt(0)
    """)
    for b in range(4):
        a(f"ds_read_b64_tr_b16 {v(PK+4*b,2)}, {v(vTA)} offset:{1024*b}")
        a(f"ds_read_b64_tr_b16 {v(PK+4*b+2,2)}, {v(vTA)} offset:{1024*b+256}")
    a("s_waitcnt lgkmcnt(0)")
    a("s_branch K1_STORE")
    a.label("K1_Q")
    a(f"""
    s_mov_b32 {s(sBS)}, 0x10000
    s_lshl_b32 {s(sBO)}, {s(sT)}, 18
    s_lshl_b32 {s(sT)}, {s(sT2)}, 10
    s_add_u32 {s(sBO)}, {s(sBO)}, {s(sT)}
    v_mov_b32 {v(vOFF)}, {v(vT3)}
    """)
    a.label("K1_STORE")
    for b in range(4):
        a(f"buffer_store_dwordx4 {v(PK+4*b,4)}, {v(vOFF)}, {s(sWS,4)}, {s(sBO)} offen {K1F}")
        if b < 3: a(f"s_add_u32 {s(sBO)}, {s(sBO)}, {s(sBS)}")
    a("s_branch K1_PACK")
    a.label("K1_H")
    a(f"""
    s_lshl_b32 {s(sBO)}, {s(sT)}, 12
    s_lshl_b32 {s(sT)}, {s(sT2)}, 15
    s_add_u32 {s(sBO)}, {s(sBO)}, {s(sT)}
    s_add_u32 {s(sBO)}, {s(sBO)}, 0x{HF:x}
    """)
    for g in range(4):
        gelu_scaled(a, [ACC(0)+8*g+j for j in range(8)], [TMP+j for j in range(8)], vC1, vC2, vONE)
        for j in range(4): a(f"v_cvt_pk_bf16_f32 {v(PK+4*g+j)}, {v(ACC(0)+8*g+2*j)}, {v(ACC(0)+8*g+2*j+1)}")
        a(f"buffer_store_dwordx4 {v(PK+4*g,4)}, {v(vT3)}, {s(sWS,4)}, {s(sBO)} offen offset:{1024*g} {K1F}")
    a.label("K1_PACK")
    stamp(a, 12)
    a(f"""
    s_lshl_b32 {s(sT)}, {s(sW_)}, 11
    s_add_u32 {s(sT)}, {s(sT)}, 0x{SC_3:x}
    v_add_u32 {v(vT0)}, {s(sT)}, {v(vT3)}
    s_waitcnt vmcnt(4)
    ds_write_b128 {v(vT0)}, {v(W3V,4)}
    ds_write_b128 {v(vT0)}, {v(W3V+4,4)} offset:1024
    s_lshr_b32 {s(sT)}, 1024, {s(sNAT)}
    v_add_u32 {v(vT0)}, {s(sT)}, {v(vPT)}
    v_xor_b32 {v(vT1)}, 64, {v(vPT)}
    v_xor_b32 {v(vT2)}, 64, {v(vT0)}
    s_waitcnt lgkmcnt(0)
    ds_read_b64_tr_b16 {v(W3V,2)}, {v(vPT)}
    ds_read_b64_tr_b16 {v(W3V+2,2)}, {v(vT0)}
    ds_read_b64_tr_b16 {v(W3V+4,2)}, {v(vT1)}
    ds_read_b64_tr_b16 {v(W3V+6,2)}, {v(vT2)}
    s_waitcnt lgkmcnt(0)
    buffer_store_dwordx4 {v(W3V,4)}, {v(vT3)}, {s(sWS,4)}, {s(sPD)} offen {K1F}
    buffer_store_dwordx4 {v(W3V+4,4)}, {v(vT3)}, {s(sWS,4)}, {s(sPD)} offen offset:1024 {K1F}
    """)
    if MERGE:
        a(f"""
        s_cmp_lg_u32 {s(sRDY)}, 0
        s_cbranch_scc1 K1_RDY
        """)
        srd(a, sDB, pDBG, 0, 256)
        a(f"s_mov_b32 {s(sT)}, 400000")
        a("s_mov_b64 exec, 1")
        a.label("K1_RDYL")
        a(f"""
        v_mov_b32 {v(TMP)}, 0
        v_mov_b32 {v(TMP+1)}, 0
        buffer_atomic_add {v(TMP)}, {v(TMP+1)}, {s(sDB,4)}, 0 offen sc0 sc1
        s_sub_u32 {s(sT)}, {s(sT)}, 1
        s_cmp_eq_u32 {s(sT)}, 0
        s_cbranch_scc1 K1_RDY
        s_waitcnt vmcnt(0)
        v_cmp_eq_u32 vcc, 0, {v(TMP)}
        s_cbranch_vccz K1_RDY
        s_sleep 8
        s_branch K1_RDYL
        """)
        a.label("K1_RDY")
        a(f"""
        s_mov_b64 exec, 1
        s_add_u32 {s(sT)}, {s(sHB)}, {C_HB}
        s_add_u32 {s(sT2)}, {s(sRB)}, {C_HR}
        s_cmp_eq_u32 {s(sTY)}, 3
        s_cselect_b32 {s(sT)}, {s(sT2)}, {s(sT)}
        s_lshl_b32 {s(sT)}, {s(sT)}, {FSH}
        s_add_u32 {s(sT)}, {s(sT)}, 0x{FLG:x}
        s_lshl_b32 {s(sT2)}, {s(sFH)}, 2
        s_add_u32 {s(sT2)}, {s(sT2)}, 0x{SC_N:x}
        v_mov_b32 {v(vT0)}, {s(sT2)}
        v_mov_b32 {v(vT1)}, 1
        v_mov_b32 {v(vTA)}, 0
        s_waitcnt vmcnt(2)
        ds_add_rtn_u32 {v(vT2)}, {v(vT0)}, {v(vT1)}
        s_waitcnt lgkmcnt(0)
        v_cmp_ne_u32 vcc, 3, {v(vT2)}
        s_cbranch_vccnz K1_NOSIG
        buffer_atomic_add {v(vT1)}, {v(vTA)}, {s(sWS,4)}, {s(sT)} offen sc1
        """)
        a.label("K1_NOSIG")
        a("s_mov_b64 exec, -1")
    a(f"""
    s_cmp_ge_u32 {s(sU)}, 88
    s_cbranch_scc1 K1_NOCS3
    v_mfma_f32_16x16x32_bf16 {v(TMP,4)}, {v(SEL,4)}, {v(W3V,4)}, 0
    v_mfma_f32_16x16x32_bf16 {v(TMP+4,4)}, {v(SEL,4)}, {v(W3V+4,4)}, 0
    s_lshl_b32 {s(sT)}, {s(sW_)}, 8
    s_add_u32 {s(sT)}, {s(sT)}, 0x{SC_3P:x}
    v_lshl_add_u32 {v(vT0)}, {v(vL)}, 2, {s(sT)}
    s_mov_b64 exec, 0xffff
    ds_write_b32 {v(vT0)}, {v(TMP)}
    ds_write_b32 {v(vT0)}, {v(TMP+1)} offset:64
    ds_write_b32 {v(vT0)}, {v(TMP+4)} offset:128
    ds_write_b32 {v(vT0)}, {v(TMP+5)} offset:192
    s_mov_b64 exec, -1
    """)
    a.label("K1_NOCS3")
    a(f"""
    v_mov_b32 {v(vT0)}, 0x{SC_N+8:x}
    v_mov_b32 {v(vT1)}, 1
    s_mov_b64 exec, 1
    s_waitcnt vmcnt(0) lgkmcnt(0)
    ds_add_rtn_u32 {v(vT2)}, {v(vT0)}, {v(vT1)}
    s_waitcnt lgkmcnt(0)
    v_cmp_ne_u32 vcc, 7, {v(vT2)}
    s_mov_b64 exec, -1
    s_cbranch_vccnz K1_FIN
    s_cmp_ge_u32 {s(sU)}, 88
    s_cbranch_scc1 K1_JSIG
    v_lshlrev_b32 {v(vT0)}, 2, {v(vL)}
    v_add_u32 {v(vT2)}, 0x{SC_3P:x}, {v(vT0)}
    """)
    for w in range(8): a(f"ds_read_b32 {v(TMP+w)}, {v(vT2)} offset:{256*w}")
    a(f"""
    s_mul_i32 {s(sT)}, {s(sKP)}, 6144
    s_lshl_b32 {s(sT2)}, {s(sCI)}, 8
    s_add_u32 {s(sT)}, {s(sT)}, {s(sT2)}
    s_add_u32 {s(sT)}, {s(sT)}, 0x{CS3P:x}
    s_waitcnt lgkmcnt(0)
    """)
    for w in range(1, 8): a(f"v_add_f32 {v(TMP)}, {v(TMP)}, {v(TMP+w)}")
    a(f"buffer_store_dword {v(TMP)}, {v(vT0)}, {s(sWS,4)}, {s(sT)} offen {K1F}")
    a("s_waitcnt vmcnt(0)")
    a.label("K1_JSIG")
    if MERGE:
        a(f"""
        v_mov_b32 {v(vT0)}, 0x{SC_N+8:x}
        v_mov_b32 {v(vT2)}, 9
        ds_write_b32 {v(vT0)}, {v(vT2)}
        s_cmp_ge_u32 {s(sU)}, 240
        s_cbranch_scc1 K1_FIN
        s_add_u32 {s(sT)}, {s(sJC)}, {s(sCI)}
        s_lshl_b32 {s(sT)}, {s(sT)}, {FSH}
        s_add_u32 {s(sT)}, {s(sT)}, 0x{FLG:x}
        v_mov_b32 {v(vT0)}, 0
        s_mov_b64 exec, 1
        buffer_atomic_add {v(vT1)}, {v(vT0)}, {s(sWS,4)}, {s(sT)} offen sc1
        s_mov_b64 exec, -1
        """)
    else:
        a(f"""
        s_cmp_lg_u32 s2, 0
        s_cbranch_scc1 K1_FIN
        v_mov_b32 {v(TMP)}, 0
        v_lshlrev_b32 {v(vT0)}, {FSH}, {v(vL)}
        s_mov_b32 {s(sT)}, 0x{FLG:x}
        buffer_store_dword {v(TMP)}, {v(vT0)}, {s(sWS,4)}, {s(sT)} offen
        """)
    a.label("K1_FIN")
    if PROF and not MERGE: a("s_waitcnt vmcnt(0)")
    stamp(a, 13)
    stamp_flush(a, 0, sW_, pWS)
    if not own: return
    a.label("K1_END")
    a("s_endpgm")
    lines, added = a.done()
    return kernel_text("k1_proj_kernel", lines, 256 if PROF else 204, 102)
```

```python
from common import *

TB = 2080
PROG_A = 16*TB
PROG_B = PROG_A + 1024
CNT_B = PROG_B + 1024
GO_A = CNT_B + 8
CS3L = CNT_B + 64
BR = 36*1024
DUMP = BR + 72*1024
K2_LDS = BR + 120*1024
SPIN = 400000
P1F = 'sc1' if MERGE else ''
POLL = os.environ.get('POLL', 'atomic')
EARLY = int(os.environ.get('EARLY', 2))
POS = eval(os.environ.get('POS', '(2,6,11)'))
LDF = os.environ.get('LDF', 'sc1')
STF = os.environ.get('STF', 'sc1')
PSL = int(os.environ.get('PSL', 4))
ONEPOLL = int(os.environ.get('ONEPOLL', 1))
OUTF = os.environ.get('OUTF', '')

def attention(a):
    sKV, sQO = 8, 12
    sW, sHD, sQB, sT, sT2, sKO, sM, sNEED, sIT, sEX = 28, 29, 30, 31, 32, 33, 34, 35, 36, 38
    vL, vIDX, vKA, vV0, vV1, vPW, vPR, vPROG, vC, vT0, vT1, vOO = 1, 2, 3, 4, 5, 6, 7, 8, 9, 10, 11, 12
    Sa, Sb, Oa, Ob, Ma, Mb, Qa, Qb = 16, 32, 48, 64, 80, 96, 112, 116
    K = [120, 124]; V = [128, 136]
    pWS = 26
    a(f"""
    s_and_b32 {s(sT)}, s2, 7
    s_xor_b32 {s(sT)}, {s(sT)}, {os.environ.get('HSW', 1)}
    s_lshl_b32 {s(sHD)}, {s(sT)}, 2
    s_bfe_u32 {s(sT)}, s2, 0x20003
    s_add_u32 {s(sHD)}, {s(sHD)}, {s(sT)}
    s_lshr_b32 {s(sQB)}, s2, 5
    v_lshlrev_b32 {v(vKA)}, 4, {v(vL)}
    s_lshl_b32 {s(sT)}, {s(sHD)}, 17
    s_add_u32 {s(sT)}, {s(sT)}, 0x{KVF:x}
    s_lshl_b32 {s(sKO)}, {s(sW)}, 11
    s_lshl_b32 {s(sT2)}, {s(sQB)}, 14
    s_add_u32 {s(sKO)}, {s(sKO)}, {s(sT2)}
    s_mul_i32 {s(sM)}, {s(sW)}, {TB}
    s_waitcnt lgkmcnt(0)
    s_add_u32 {s(sKV)}, {s(pWS)}, {s(sT)}
    s_addc_u32 {s(sKV+1)}, {s(pWS+1)}, 0
    s_mov_b32 {s(sKV+2)}, 0x20000
    s_mov_b32 {s(sKV+3)}, 0x20000
    """)
    def dma(slot):
        return [f"s_add_u32 m0, {s(sM)}, {slot*4*TB}",
                f"s_nop 0",
                f"buffer_load_dwordx4 {v(vKA)}, {s(sKV,4)}, {s(sKO)} offen {P1F} lds",
                f"buffer_load_dwordx4 {v(vKA)}, {s(sKV,4)}, {s(sKO)} offen offset:1024 {P1F} lds",
                f"s_add_u32 {s(sKO)}, {s(sKO)}, 8192",
                f"s_and_b32 {s(sKO)}, {s(sKO)}, 0x1ffff"]
    def first_loads():
        for l in dma(0): a(l)
        a(f"""
        s_lshl_b32 {s(sT)}, {s(sHD)}, 16
        s_lshl_b32 {s(sT2)}, {s(sQB)}, 13
        s_add_u32 {s(sT)}, {s(sT)}, {s(sT2)}
        s_lshl_b32 {s(sT2)}, {s(sW)}, 11
        s_add_u32 {s(sT)}, {s(sT)}, {s(sT2)}
        buffer_load_dwordx4 {v(Qa,4)}, {v(vKA)}, {s(sQO,4)}, {s(sT)} offen {P1F}
        buffer_load_dwordx4 {v(Qb,4)}, {v(vKA)}, {s(sQO,4)}, {s(sT)} offen offset:1024 {P1F}
        """)
        for l in dma(1) + dma(2): a(l)
    srd(a, sQO, pWS, 0, WS_USED)
    if not MERGE: first_loads()
    a(f"""
    v_mov_b32 {v(vIDX)}, 0xdddddddd
    v_and_b32 {v(vT0)}, 15, {v(vL)}
    v_lshrrev_b32 {v(vT1)}, 5, {v(vL)}
    v_lshlrev_b32 {v(vV0)}, 4, {v(vT0)}
    v_lshl_add_u32 {v(vV0)}, {v(vT1)}, 8, {v(vV0)}
    v_add_u32 {v(vV0)}, 1024, {v(vV0)}
    v_add_u32 {v(vV1)}, 512, {v(vV0)}
    v_and_b32 {v(vPR)}, 11, {v(vL)}
    v_cmp_eq_u32 vcc, 0, {v(vPR)}
    v_mov_b32 {v(vPW)}, 2048
    v_mov_b32 {v(vC)}, {2048 if os.environ.get("ALLONES") else 2064}
    v_cndmask_b32 {v(vC)}, {v(vC)}, {v(vPW)}, vcc
    v_and_b32 {v(vPR)}, 16, {v(vL)}
    v_cmp_ne_u32 vcc, 0, {v(vPR)}
    v_mov_b32 {v(V[1]+4)}, 0
    v_mov_b32 {v(V[1]+5)}, 0
    v_cndmask_b32 {v(vV0)}, {v(vV0)}, {v(vC)}, vcc
    v_cndmask_b32 {v(vV1)}, {v(vV1)}, {v(vC)}, vcc
    v_mov_b32 {v(V[1]+6)}, 0
    v_mov_b32 {v(V[1]+7)}, 0
    v_mul_u32_u24 {v(vT0)}, {TB}, {v(vT0)}
    v_mov_b32 {v(V[0])}, 0x{ONES:x}
    v_mov_b32 {v(V[0]+1)}, 0x{ONES:x}
    v_mov_b32 {v(V[0]+2)}, 0x{ONES:x}
    v_mov_b32 {v(V[0]+3)}, 0x{ONES:x}
    ds_write_b128 {v(vT0)}, {v(V[0],4)} offset:2048
    ds_write_b128 {v(vT0)}, {v(V[1]+4,4)} offset:2064
    s_lshl_b32 {s(sT)}, {s(sW)}, 8
    v_lshl_add_u32 {v(vPW)}, {v(vL)}, 2, {s(sT)}
    v_and_b32 {v(vPR)}, 3, {v(vL)}
    v_lshlrev_b32 {v(vPR)}, 8, {v(vPR)}
    v_lshl_add_u32 {v(vPR)}, {v(vL)}, 2, {v(vPR)}
    """)
    if not MERGE: a(f"""
    v_mov_b32 {v(vPROG)}, 0
    ds_write_b32 {v(vPW)}, {v(vPROG)} offset:{PROG_A}
    s_waitcnt lgkmcnt(0)
    s_barrier
    """)
    a(f"v_mov_b32 {v(vPROG)}, 1")
    for j in range(9):
        a(f"v_mov_b32 {v(Oa+j)}, 0"); a(f"v_mov_b32 {v(Ob+j)}, 0")
    if MERGE:
        a(f"""
        s_lshr_b32 {s(sT)}, {s(sHD)}, 2
        s_add_u32 {s(sT)}, {s(sT)}, {C_HB}
        v_lshl_add_u32 {v(vT0)}, {v(vL)}, 3, {s(sT)}
        v_lshlrev_b32 {v(vT0)}, {FSH}, {v(vT0)}
        s_mov_b32 {s(sT2)}, 0x{FLG:x}
        s_mov_b32 {s(sT)}, {SPIN}
        s_cmp_lg_u32 {s(sW)}, 0
        s_cbranch_scc1 AT_GOW
        s_mov_b64 exec, 7
        """)
        a.label("AT_P")
        a(f"""
        v_mov_b32 {v(vC)}, 0
        buffer_atomic_add {v(vC)}, {v(vT0)}, {s(sQO,4)}, {s(sT2)} offen sc0 sc1
        s_sub_u32 {s(sT)}, {s(sT)}, 1
        s_cmp_eq_u32 {s(sT)}, 0
        s_cbranch_scc1 AT_PX
        s_waitcnt vmcnt(0)
        v_cmp_gt_u32 vcc, 16, {v(vC)}
        s_cbranch_vccz AT_PX
        s_sleep {PSL}
        s_branch AT_P
        """)
        a.label("AT_PX")
        a(f"""
        s_mov_b64 exec, -1
        s_waitcnt vmcnt(0)
        v_mov_b32 {v(vT1)}, 0
        ds_write_b32 {v(vT1)}, {v(vPROG)} offset:{GO_A}
        s_branch AT_GO
        """)
        a.label("AT_GOW")
        a(f"""
        v_mov_b32 {v(vT1)}, 0
        ds_read_b32 {v(vC)}, {v(vT1)} offset:{GO_A}
        s_sub_u32 {s(sT)}, {s(sT)}, 1
        s_cmp_eq_u32 {s(sT)}, 0
        s_cbranch_scc1 AT_GO
        s_waitcnt lgkmcnt(0)
        v_cmp_eq_u32 vcc, 0, {v(vC)}
        s_cbranch_vccnz AT_GOW
        """)
        a.label("AT_GO")
        stamp(a, 9)
        first_loads()
    a(f"""
    s_mov_b32 {s(sNEED)}, 2
    s_mov_b32 {s(sIT)}, 4
    s_mov_b32 {s(sT)}, {SPIN}
    s_waitcnt vmcnt(4)
    ds_write_b32 {v(vPW)}, {v(vPROG)} offset:{PROG_A}
    """)
    a.label("AT_W0")
    a(f"""
    ds_read_b32 {v(vC)}, {v(vPR)} offset:{PROG_A}
    s_sub_u32 {s(sT)}, {s(sT)}, 1
    s_cmp_eq_u32 {s(sT)}, 0
    s_cbranch_scc1 AT_X0
    s_waitcnt lgkmcnt(0)
    v_cmp_gt_u32 vcc, 1, {v(vC)}
    s_cbranch_vccnz AT_W0
    """)
    a.label("AT_X0")
    stamp(a, 1)
    if os.environ.get("NOATT"): a("s_endpgm")
    a(f"""
    ds_read_b128 {v(K[0],4)}, {v(vKA)}
    ds_read_b128 {v(V[0],4)}, {v(vV0)}
    ds_read_b128 {v(V[0]+4,4)}, {v(vV1)}
    s_waitcnt lgkmcnt(2)
    v_mfma_f32_32x32x16_bf16 {v(Sa,16)}, {v(K[0],4)}, {v(Qa,4)}, 0
    v_mfma_f32_32x32x16_bf16 {v(Sb,16)}, {v(K[0],4)}, {v(Qb,4)}, 0
    """)
    def rowmax(S, dst, first=True):
        if first: a(f"v_max3_f32 {v(dst)}, {v(S)}, {v(S+1)}, {v(S+2)}")
        else: a(f"v_max3_f32 {v(dst)}, {v(dst)}, {v(S)}, {v(S+1)}"); a(f"v_max_f32 {v(dst)}, {v(dst)}, {v(S+2)}")
        for j in range(3, 15, 2): a(f"v_max3_f32 {v(dst)}, {v(dst)}, {v(S+j)}, {v(S+j+1)}")
        a(f"v_max_f32 {v(dst)}, {v(dst)}, {v(S+15)}")
    def spread(M, t):
        a(f"v_mov_b32 {v(t)}, {v(M)}")
        a(f"v_permlane32_swap_b32 {v(M)}, {v(t)}")
        a(f"v_max_f32 {v(t)}, {v(M)}, {v(t)}")
        for j in range(16): a(f"v_sub_f32 {v(M+j)}, 0, {v(t)}")
    rowmax(Sa, Ma); spread(Ma, vT0)
    a(f"v_mfma_f32_32x32x16_bf16 {v(Sa,16)}, {v(K[0],4)}, {v(Qa,4)}, {v(Ma,16)}")
    rowmax(Sb, Mb); spread(Mb, vT1)
    for j in range(8): a(f"v_mov_b32 {v(Sb+8+j)}, 0")
    pv = lambda O, Vr, S: "s_nop 0" if os.environ.get("NOPV") else f"v_smfmac_f32_32x32x32_bf16 {v(O,16)}, {v(Vr,4)}, {v(S,8)}, {v(vIDX)}"
    qk = lambda S, Kr, Q, M: f"v_mfma_f32_32x32x16_bf16 {v(S,16)}, {v(Kr,4)}, {v(Q,4)}, {'0' if os.environ.get('CZERO') else v(M,16)}"
    stamp(a, 2)
    if os.environ.get("DIAG"):
        for r_ in range(40, 52): a(f"s_mov_b32 s{r_}, 0")
    a(".p2align 6")
    a.label("AT_LOOP")
    for t in range(16):
        p = t & 1; q = p ^ 1; j = t & 3; nx = ((t+1) % 16)*TB
        A = {2: [pv(Ob, V[q]+4, Sb+8), "s_waitcnt lgkmcnt(0)"], 6: [qk(Sb, K[p], Qb, Mb), f"ds_read_b128 {v(V[q],4)}, {v(vV0)} offset:{nx}"],
             11: [pv(Oa, V[p], Sa), f"ds_read_b128 {v(V[q]+4,4)}, {v(vV1)} offset:{nx}"]}
        B = {2: [pv(Oa, V[p]+4, Sa+8), "s_waitcnt lgkmcnt(2)"], 6: [qk(Sa, K[q], Qa, Ma)], 11: [pv(Ob, V[p], Sb)]}
        if POS[0] < 2:
            A[2] = A[2][::-1]; B[2] = B[2][::-1]
        if j == 3:
            A[2] += [f"v_cmp_gt_u32 vcc, {s(sNEED)}, {v(vC)}", f"s_cbranch_vccnz AT_SPIN{t}", f"AT_BACK{t}:"]
            d = dma(((t >> 2) + 3) & 3)
            B[6] += [d[0], f"s_add_u32 {s(sNEED)}, {s(sNEED)}, 1", d[2]]
            B[11] += [d[3], d[4], d[5]]
        A[2] += [f"ds_read_b128 {v(K[q],4)}, {v(vKA)} offset:{nx}"]
        if j == 0:
            B[6] += [f"v_add_u32 {v(vPROG)}, 1, {v(vPROG)}"]
            B[11] += ["s_waitcnt vmcnt(2)", f"ds_write_b32 {v(vPW)}, {v(vPROG)} offset:{PROG_A}"]
        if t == 5:
            B[6] += [f"s_cmp_eq_u32 {s(sIT)}, 1", f"s_cselect_b32 {s(sKV+2)}, 0, {s(sKV+2)}"]
        if j == 2:
            B[11] += [f"ds_read_b32 {v(vC)}, {v(vPR)} offset:{PROG_A}"]
        if os.environ.get("DIAG"):
            if j == 3:
                B[6] = [B[6][0], "s_memtime s[40:41]"] + B[6][1:] + ["s_memtime s[42:43]"]
                B[11] = [B[11][0], "s_memtime s[44:45]"] + B[11][1:] + ["s_memtime s[46:47]"]
            if j == 0:
                A[2] = A[2][:2] + ["s_sub_u32 s42, s42, s40", "s_add_u32 s74, s74, s42", "s_sub_u32 s46, s46, s44", "s_add_u32 s76, s76, s46"] + A[2][2:]
                B[11] = [B[11][0], "s_memtime s[48:49]", B[11][1], "s_memtime s[50:51]"] + B[11][2:]
            if j == 1:
                A[2] = A[2][:2] + ["s_sub_u32 s50, s50, s48", "s_add_u32 s78, s78, s50"] + A[2][2:]
        if t == 15:
            B[14] = [f"s_sub_u32 {s(sIT)}, {s(sIT)}, 1", f"s_cmp_lg_u32 {s(sIT)}, 0"]
        for S, ins in ((Sa, A), (Sb, B)):
            ins = {{2: POS[0], 6: POS[1], 11: POS[2]}.get(k_, k_): v_ for k_, v_ in ins.items()}
            for i in range(16):
                for l in ins.get(i, []): a(l)
                a(f"{os.environ.get('EXPOP', 'v_exp_f32')} {v(S+i)}, {v(S+i)}")
    a("s_cbranch_scc1 AT_LOOP")
    a("s_nop 0")
    a(pv(Ob, V[1]+4, Sb+8))
    stamp(a, 3)
    a.label("AT_FIN")
    a("s_nop 7")
    for O, t in ((Oa, vT0), (Ob, vT1)):
        a(f"v_max3_f32 {v(t)}, abs({v(O)}), abs({v(O+1)}), {v(O+8)}")
        for j in range(2, 8, 2): a(f"v_max3_f32 {v(t)}, abs({v(O+j)}), abs({v(O+j+1)}), {v(t)}")
    a(f"""
    v_max_f32 {v(vT0)}, {v(vT0)}, {v(vT1)}
    v_cmp_nlt_f32 vcc, {v(vT0)}, {v(vBIG)}
    s_cmp_eq_u32 {s(sIT)}, 0
    s_cselect_b64 vcc, vcc, 0
    s_cbranch_vccnz AT_SLOW
    v_rcp_f32 {v(vT0)}, {v(Oa+8)}
    v_rcp_f32 {v(vT1)}, {v(Ob+8)}
    s_lshl_b32 {s(sT)}, {s(sHD)}, 10
    s_lshl_b32 {s(sT2)}, {s(sQB)}, 18
    s_add_u32 {s(sT)}, {s(sT)}, {s(sT2)}
    s_lshl_b32 {s(sT2)}, {s(sW)}, 16
    s_add_u32 {s(sT)}, {s(sT)}, {s(sT2)}
    s_add_u32 {s(sT)}, {s(sT)}, 0x{OF:x}
    s_add_u32 {s(sT2)}, {s(sT)}, 0x8000
    """)
    for O, t, o in ((Oa, vT0, sT), (Ob, vT1, sT2)):
        for j in range(8): a(f"v_mul_f32 {v(O+j)}, {v(O+j)}, {v(t)}")
        for j in range(4): a(f"v_cvt_pk_bf16_f32 {v(O+j)}, {v(O+2*j)}, {v(O+2*j+1)}")
        a(f"buffer_store_dwordx4 {v(O,4)}, {v(vKA)}, {s(sQO,4)}, {s(o)} offen sc1")
    a(f"""
    s_lshl_b32 {s(sT)}, {s(sQB)}, 2
    s_add_u32 {s(sT)}, {s(sT)}, {s(sW)}
    s_lshl_b32 {s(sT)}, {s(sT)}, {FSH}
    s_add_u32 {s(sT)}, {s(sT)}, 0x{cnt(C_S3):x}
    v_mov_b32 {v(vT0)}, 1
    v_mov_b32 {v(vT1)}, 0
    s_mov_b64 exec, 1
    s_waitcnt vmcnt(0)
    buffer_atomic_add {v(vT0)}, {v(vT1)}, {s(sQO,4)}, {s(sT)} offen sc1
    """)
    stamp(a, 4)
    stamp_flush(a, 1, sW, pWS)
    a("s_endpgm")
    for t in (3, 7, 11, 15):
        a.label(f"AT_SPIN{t}")
        a(f"s_mov_b32 {s(sT)}, {SPIN}")
        a.label(f"AT_SPINL{t}")
        if os.environ.get("DIAG"): a("s_add_u32 s80, s80, 1")
        a(f"""
        ds_read_b32 {v(vC)}, {v(vPR)} offset:{PROG_A}
        s_sub_u32 {s(sT)}, {s(sT)}, 1
        s_cmp_eq_u32 {s(sT)}, 0
        s_cbranch_scc1 AT_BACK{t}
        s_waitcnt lgkmcnt(0)
        v_cmp_gt_u32 vcc, {s(sNEED)}, {v(vC)}
        s_cbranch_vccnz AT_SPINL{t}
        s_branch AT_BACK{t}
        """)
    a.label("AT_SLOW")
    a(f"""
    s_mov_b32 {s(sIT)}, 1
    s_mov_b32 {s(sKV+2)}, 0x20000
    s_mov_b32 {s(sKO)}, 0
    v_mov_b32 {v(Ma)}, 0xff800000
    v_mov_b32 {v(Mb)}, 0xff800000
    s_waitcnt vmcnt(0) lgkmcnt(0)
    """)
    a.label("AT_SLOW1")
    a(f"""
    buffer_load_dwordx4 {v(K[0],4)}, {v(vKA)}, {s(sKV,4)}, {s(sKO)} offen
    s_add_u32 {s(sKO)}, {s(sKO)}, 2048
    s_waitcnt vmcnt(0)
    v_mfma_f32_32x32x16_bf16 {v(Sa,16)}, {v(K[0],4)}, {v(Qa,4)}, 0
    v_mfma_f32_32x32x16_bf16 {v(Sb,16)}, {v(K[0],4)}, {v(Qb,4)}, 0
    """)
    rowmax(Sa, Ma, False); rowmax(Sb, Mb, False)
    a(f"""
    s_cmp_lt_u32 {s(sKO)}, 0x20000
    s_cbranch_scc1 AT_SLOW1
    """)
    spread(Ma, vT0); spread(Mb, vT1)
    for j in range(9):
        a(f"v_mov_b32 {v(Oa+j)}, 0"); a(f"v_mov_b32 {v(Ob+j)}, 0")
    for j in range(8): a(f"v_mov_b32 {v(V[0]+j)}, 0x{ONES:x}")
    a(f"""
    s_mov_b32 {s(sKO)}, 0
    s_mov_b32 {s(sEX)}, 0xffff
    s_mov_b32 {s(sEX+1)}, 0xffff
    """)
    a.label("AT_SLOW2")
    a(f"""
    buffer_load_dwordx4 {v(K[0],4)}, {v(vKA)}, {s(sKV,4)}, {s(sKO)} offen
    s_mov_b64 exec, {s(sEX,2)}
    buffer_load_dwordx4 {v(V[0],4)}, {v(vV0)}, {s(sKV,4)}, {s(sKO)} offen
    buffer_load_dwordx4 {v(V[0]+4,4)}, {v(vV1)}, {s(sKV,4)}, {s(sKO)} offen
    s_mov_b64 exec, -1
    s_add_u32 {s(sKO)}, {s(sKO)}, 2048
    s_waitcnt vmcnt(0)
    """)
    a(qk(Sa, K[0], Qa, Ma)); a(qk(Sb, K[0], Qb, Mb))
    for S in (Sa, Sb):
        for i in range(16): a(f"v_exp_f32 {v(S+i)}, {v(S+i)}")
    a(pv(Oa, V[0], Sa)); a(pv(Oa, V[0]+4, Sa+8)); a(pv(Ob, V[0], Sb)); a(pv(Ob, V[0]+4, Sb+8))
    a(f"""
    s_cmp_lt_u32 {s(sKO)}, 0x20000
    s_cbranch_scc1 AT_SLOW2
    s_nop 3
    s_branch AT_FIN
    """)
vBIG = 13

def chain(a, pfx="CH"):
    vm = VM(a)
    PRIO = os.environ.get("PRIO", 2)
    sH, sX, sWS, sOUT = 8, 12, 40, 44
    pX, pOUT, pWS = 16, 18, 26
    sW, sC, sTG, sM16, sT64, sJ, sT, sT2, sT3, sSO, sFL, sNB, sFT, sTH = 28, 29, 30, 31, 32, 33, 34, 35, 36, 37, 38, 39, 48, 49
    sR1, sR2, sB1, sB2, sTT, sWB, sROT = 50, 51, 52, 53, 54, 55, 56
    vL, vI, vHI, vT0, vT1, vT2, vT3 = 1, 2, 3, 4, 5, 6, 7
    vPW, vPR, vPROG, vC, vDUMP, vTOK = 9, 10, 11, 12, 14, 15
    vWA = [16, 17]; vRA = [18, 19, 20]; vH = [21, 22]; vXO, vSTO, vZ = 23, 24, 25
    v3A = [26, 27]; vL16 = 28; vPK = 29
    ACC = 32
    WF = lambda p, f: 96 + 12*p + 4*f
    BIG = 120
    XR, STv = 248, 252
    lo = lambda: a("s_setprio 0")
    hi = lambda: a(f"s_setprio {PRIO}")
    a(f"""
    s_sub_u32 {s(sC)}, {s(sW)}, 4
    s_lshl_b32 {s(sT)}, {s(sC)}, 8
    v_lshl_add_u32 {v(vPW)}, {v(vL)}, 2, {s(sT)}
    v_mov_b32 {v(vPROG)}, 0
    v_mov_b32 {v(vZ)}, 0
    """)
    if not MERGE: a(f"""
    ds_write_b32 {v(vPW)}, {v(vPROG)} offset:{PROG_B}
    ds_write_b32 {v(vZ)}, {v(vZ)} offset:{CNT_B}
    ds_write_b32 {v(vZ)}, {v(vZ)} offset:{CNT_B+4}
    """)
    a(f"""
    s_and_b32 {s(sT)}, s2, 7
    s_lshl_b32 {s(sTG)}, {s(sT)}, 1
    s_bfe_u32 {s(sT2)}, s2, 0x10003
    s_add_u32 {s(sTG)}, {s(sTG)}, {s(sT2)}
    s_lshr_b32 {s(sM16)}, s2, 4
    s_and_b32 {s(sT)}, {s(sM16)}, 1
    s_lshl_b32 {s(sT64)}, {s(sTG)}, 1
    s_add_u32 {s(sT64)}, {s(sT64)}, {s(sT)}
    s_lshr_b32 {s(sJ)}, {s(sM16)}, 1
    s_and_b32 {s(sFT)}, {s(sC)}, 1
    s_lshr_b32 {s(sTH)}, {s(sC)}, 1
    s_lshl_b32 {s(sTT)}, {s(sT64)}, 1
    s_add_u32 {s(sTT)}, {s(sTT)}, {s(sTH)}
    v_and_b32 {v(vI)}, 31, {v(vL)}
    v_lshrrev_b32 {v(vHI)}, 5, {v(vL)}
    v_lshlrev_b32 {v(vL16)}, 4, {v(vL)}
    s_lshl_b32 {s(sT)}, {s(sJ)}, 1
    s_add_u32 {s(sT)}, {s(sT)}, {s(sFT)}
    s_lshl_b32 {s(sT)}, {s(sT)}, 10
    v_add_u32 {v(vWA[0])}, {s(sT)}, {v(vL16)}
    v_xor_b32 {v(vWA[1])}, 1024, {v(vWA[0])}
    s_add_u32 {s(sT)}, {s(sTH)}, 1
    s_sub_u32 {s(sT2)}, 0, {s(sT)}
    s_cmp_eq_u32 {s(sFT)}, 0
    s_cselect_b32 {s(sT)}, {s(sT2)}, {s(sT)}
    s_lshl_b32 {s(sT3)}, {s(sTT)}, 5
    v_add_u32 {v(vTOK)}, {s(sT3)}, {v(vI)}
    v_mov_b32 {v(vT3)}, 0x40000000
    """)
    for b in (0, 1):
        a(f"""
        v_xor_b32 {v(vT0)}, {32*b}, {v(vTOK)}
        v_add_u32 {v(vT0)}, {s(sT)}, {v(vT0)}
        v_cmp_gt_u32 vcc, 0x800, {v(vT0)}
        v_lshrrev_b32 {v(vT1)}, 5, {v(vT0)}
        v_and_b32 {v(vT0)}, 31, {v(vT0)}
        v_lshlrev_b32 {v(vT0)}, 4, {v(vT0)}
        v_lshl_add_u32 {v(vT0)}, {v(vT1)}, 15, {v(vT0)}
        v_lshl_add_u32 {v(vT0)}, {v(vHI)}, 9, {v(vT0)}
        v_cndmask_b32 {v(vH[b])}, {v(vT3)}, {v(vT0)}, vcc
        """)
    a(f"""
    s_and_b32 {s(sT)}, {s(sT64)}, 3
    s_lshl_b32 {s(sROT)}, {s(sT)}, 1
    s_add_u32 {s(sROT)}, {s(sROT)}, {s(sJ)}
    s_mov_b32 {s(sR1)}, {s(sROT)}
    s_lshl_b32 {s(sB1)}, {s(sC)}, 3
    s_waitcnt lgkmcnt(0)
    """)
    srd(a, sWS, pWS, 0, WS_USED)
    srd(a, sH, pWS, HF, 0x200000)
    if not MERGE: a("s_barrier")
    def rot8(r):
        a(f"""
        s_and_b32 {s(r)}, {s(r)}, 7
        s_add_u32 {s(sT)}, {s(r)}, {s(sB1)}
        s_add_u32 {s(r)}, {s(r)}, 1
        """)
    def wload(dst, base, tag):
        a(f"s_lshl_b32 {s(sSO)}, {s(sT)}, 14")
        a(f"s_add_u32 {s(sSO)}, {s(sSO)}, 0x{base:x}")
        for f in (0, 1): vm.op(f"buffer_load_dwordx4 {v(dst+4*f,4)}, {v(vWA[f])}, {s(sWS,4)}, {s(sSO)} offen {P1F}", tag)
    def load1(st):
        rot8(sR1)
        a(f"s_lshl_b32 {s(sT2)}, {s(sT)}, 10")
        wload(BIG+16*st, W2F, f"a{st}")
        for b in (0, 1): vm.op(f"buffer_load_dwordx4 {v(BIG+16*st+8+4*b,4)}, {v(vH[b])}, {s(sH,4)}, {s(sT2)} offen {P1F}", f"a{st}")
    LA1 = int(os.environ.get('LA1', 4))
    if not MERGE:
        for st in range(LA1): load1(st)
    srd(a, sX, pX, 0, 0x200000)
    srd(a, sOUT, pOUT, 0, 0x200000)
    a(f"""
    v_lshlrev_b32 {v(vXO)}, 10, {v(vTOK)}
    v_lshl_add_u32 {v(vXO)}, {v(vHI)}, 4, {v(vXO)}
    s_lshl_b32 {s(sT)}, {s(sJ)}, 7
    s_lshl_b32 {s(sT2)}, {s(sFT)}, 6
    s_add_u32 {s(sT)}, {s(sT)}, {s(sT2)}
    v_add_u32 {v(vXO)}, {s(sT)}, {v(vXO)}
    v_lshlrev_b32 {v(vSTO)}, 3, {v(vTOK)}
    v_add_u32 {v(v3A[0])}, {BR}, {v(vL16)}
    v_add_u32 {v(v3A[1])}, {BR+49152}, {v(vL16)}
    s_mul_i32 {s(sT)}, {s(sC)}, 12288
    s_add_u32 {s(sT)}, {s(sT)}, {DUMP}
    v_add_u32 {v(vDUMP)}, {s(sT)}, {v(vL16)}
    """)
    for u in (1, 2, 3):
        a(f"""
        s_xor_b32 {s(sT)}, {s(sC)}, {u}
        s_mul_i32 {s(sT)}, {s(sT)}, 12288
        s_add_u32 {s(sT)}, {s(sT)}, {DUMP + (u-1)*4096}
        v_add_u32 {v(vRA[u-1])}, {s(sT)}, {v(vL16)}
        """)
    a(f"""
    v_and_b32 {v(vPR)}, 3, {v(vL)}
    v_lshlrev_b32 {v(vPR)}, 8, {v(vPR)}
    v_lshl_add_u32 {v(vPR)}, {v(vL)}, 2, {v(vPR)}
    s_lshl_b32 {s(sFL)}, {s(sTG)}, {FSH}
    s_add_u32 {s(sFL)}, {s(sFL)}, 0x{FLG:x}
    s_mov_b32 {s(sNB)}, 0
    s_and_b32 {s(sT)}, {s(sTG)}, 1
    s_lshl_b32 {s(sT)}, {s(sT)}, 2
    s_lshl_b32 {s(sR2)}, {s(sM16)}, 1
    s_add_u32 {s(sR2)}, {s(sR2)}, {s(sT)}
    s_mul_i32 {s(sWB)}, {s(sM16)}, 3072
    s_add_u32 {s(sWB)}, {s(sWB)}, 0x{W3F:x}
    """)
    nlab = [0]
    def arrive():
        a(f"""
        v_add_u32 {v(vPROG)}, 1, {v(vPROG)}
        s_add_u32 {s(sNB)}, {s(sNB)}, 1
        s_waitcnt lgkmcnt(0)
        ds_write_b32 {v(vPW)}, {v(vPROG)} offset:{PROG_B}
        """)
    def await_(prog=PROG_B, need=None, sleep=0, addr=None):
        n = nlab[0]; nlab[0] += 1
        a(f"s_mov_b32 {s(sT)}, {SPIN}")
        a.label(f"{pfx}_W{n}")
        if sleep: a(f"s_sleep {sleep}")
        a(f"""
        ds_read_b32 {v(vC)}, {v(vPR if addr is None else addr)} offset:{prog}
        s_sub_u32 {s(sT)}, {s(sT)}, 1
        s_cmp_eq_u32 {s(sT)}, 0
        s_cbranch_scc1 {pfx}_X{n}
        s_waitcnt lgkmcnt(0)
        v_cmp_gt_u32 vcc, {s(sNB) if need is None else need}, {v(vC)}
        s_cbranch_vccnz {pfx}_W{n}
        """)
        a.label(f"{pfx}_X{n}")
        a("s_waitcnt lgkmcnt(0)")
    def signal(k):
        n = nlab[0]; nlab[0] += 1
        a(f"""
        s_mov_b64 exec, 1
        v_mov_b32 {v(vT0)}, 1
        ds_add_rtn_u32 {v(vT1)}, {v(vZ)}, {v(vT0)} offset:{CNT_B+4*k}
        s_add_u32 {s(sT2)}, {s(sFL)}, {(16 << FSH)*k}
        s_waitcnt lgkmcnt(0)
        v_cmp_ne_u32 vcc, 3, {v(vT1)}
        s_cbranch_vccnz {pfx}_S{n}
        buffer_atomic_add {v(vT0)}, {v(vZ)}, {s(sWS,4)}, {s(sT2)} offen sc1
        """)
        a.label(f"{pfx}_S{n}")
        a("s_mov_b64 exec, -1")
    def poll(count, addr=None, lanes=1, everyone=False):
        n = nlab[0]; nlab[0] += 1
        if not everyone:
            a(f"s_cmp_lg_u32 {s(sC)}, 0")
            a(f"s_cbranch_scc1 {pfx}_Q{n}")
        a(f"s_mov_b32 {s(sT)}, {SPIN}")
        a(f"s_mov_b64 exec, {(1 << lanes) - 1}")
        a.label(f"{pfx}_P{n}")
        a(f"""
        v_mov_b32 {v(vC)}, 0
        buffer_atomic_add {v(vC)}, {v(vZ if addr is None else addr)}, {s(sWS,4)}, {s(sT2)} offen sc0 sc1
        s_sub_u32 {s(sT)}, {s(sT)}, 1
        s_cmp_eq_u32 {s(sT)}, 0
        s_cbranch_scc1 {pfx}_Q{n}
        s_waitcnt vmcnt(0)
        v_cmp_gt_u32 vcc, {count}, {v(vC)}
        s_cbranch_vccz {pfx}_Q{n}
        s_sleep {PSL}
        s_branch {pfx}_P{n}
        """)
        a.label(f"{pfx}_Q{n}")
        a("s_mov_b64 exec, -1")
        a("s_waitcnt vmcnt(0)")
        vm.q = []
        if not everyone:
            arrive(); await_()
    def mm4(wreg, breg, first, keep0):
        for u in (1, 2, 3, 0):
            c = "0" if (first and not (keep0 and u == 0)) else v(ACC+16*u, 16)
            a(f"v_mfma_f32_32x32x16_bf16 {v(ACC+16*u,16)}, {v(wreg+4*(u&1),4)}, {v(breg+4*(u>>1),4)}, {c}")
    def reduce4(between=None):
        lo()
        for u in (1, 2, 3):
            for q in range(4): a(f"ds_write_b128 {v(vDUMP)}, {v(ACC+16*u+4*q,4)} offset:{(u-1)*4096+q*1024}")
        hi()
        arrive()
        if between: between()
        await_()
        for u in (1, 2, 3):
            for q in range(4): a(f"ds_read_b128 {v(ACC+16*u+4*q,4)}, {v(vRA[u-1])} offset:{q*1024}")
        for u in (1, 2, 3):
            a(f"s_waitcnt lgkmcnt({4*(3-u)})")
            for j in range(0, 16, 2): a(f"v_pk_add_f32 {v(ACC+j,2)}, {v(ACC+j,2)}, {v(ACC+16*u+j,2)}")
    def w3dma(slot0, per, i):
        a(f"""
        s_mul_i32 {s(sT)}, {s(sC)}, {per}
        s_add_u32 {s(sT)}, {s(sT)}, {slot0+i}
        s_add_u32 {s(sT2)}, {s(sT)}, {s(sR2)}
        s_and_b32 {s(sT2)}, {s(sT2)}, 31
        s_mul_i32 {s(sT)}, {s(sT)}, 3072
        s_add_u32 m0, {s(sT)}, {BR}
        s_mul_i32 {s(sT2)}, {s(sT2)}, {44*1024}
        s_add_u32 {s(sT2)}, {s(sT2)}, {s(sWB)}
        """)
        for f in range(3): vm.op(f"buffer_load_dwordx4 {v(vL16)}, {s(sWS,4)}, {s(sT2)} offen offset:{1024*f} {P1F} lds", "w3")
    if os.environ.get("NOCHAIN"): a("s_endpgm")
    if MERGE:
        a(f"""
        s_lshl_b32 {s(sT)}, {s(sT64)}, 6
        s_add_u32 {s(sT2)}, {s(sT)}, 65
        s_min_u32 {s(sT2)}, {s(sT2)}, 2047
        s_max_u32 {s(sT)}, {s(sT)}, 2
        s_sub_u32 {s(sT)}, {s(sT)}, 2
        s_lshr_b32 {s(sT)}, {s(sT)}, 7
        s_lshr_b32 {s(sT2)}, {s(sT2)}, 7
        s_add_u32 {s(sT)}, {s(sT)}, {C_HR}
        s_add_u32 {s(sT2)}, {s(sT2)}, {C_HR}
        s_add_u32 {s(sT3)}, {s(sJ)}, {C_W2}
        v_mov_b32 {v(vT2)}, {s(sT)}
        v_mov_b32 {v(vT3)}, 8
        v_writelane_b32 {v(vT2)}, {s(sT2)}, 1
        v_writelane_b32 {v(vT3)}, 4, 2
        v_writelane_b32 {v(vT2)}, {s(sT3)}, 2
        s_mov_b32 {s(sT2)}, 0x{FLG:x}
        v_lshlrev_b32 {v(vT2)}, {FSH}, {v(vT2)}
        """)
        poll(v(vT3), vT2, 3)
        for st in range(LA1): load1(st)
    stamp(a, 1)
    XA, XB, C3 = WF(0, 0), WF(0, 1), BIG+120
    for st in range(8):
        if st+LA1 < 8: load1(st+LA1)
        if st == 8-LA1:
            a(f"""
            s_mov_b32 {s(sT2)}, 0x{ST1:x}
            """)
            vm.op(f"buffer_load_dwordx4 {v(XA,4)}, {v(vXO)}, {s(sX,4)}, 0 offen", "x")
            vm.op(f"buffer_load_dwordx4 {v(XB,4)}, {v(vXO)}, {s(sX,4)}, 0 offen offset:32", "x")
            vm.op(f"buffer_load_dwordx2 {v(STv,2)}, {v(vSTO)}, {s(sWS,4)}, {s(sT2)} offen {P1F}", "x")
        if st == 7 and MERGE:
            a(f"""
            s_mul_i32 {s(sT)}, {s(sM16)}, 3
            s_add_u32 {s(sT2)}, {s(sT)}, 2
            s_lshr_b32 {s(sT)}, {s(sT)}, 1
            s_lshr_b32 {s(sT2)}, {s(sT2)}, 1
            s_min_u32 {s(sT)}, {s(sT)}, 21
            s_min_u32 {s(sT2)}, {s(sT2)}, 21
            s_add_u32 {s(sT)}, {s(sT)}, {C_W3}
            s_add_u32 {s(sT2)}, {s(sT2)}, {C_W3}
            v_mov_b32 {v(vT2)}, {s(sT)}
            v_mov_b32 {v(vT3)}, 4
            v_writelane_b32 {v(vT2)}, {s(sT2)}, 1
            s_add_u32 {s(sT)}, {s(sJ)}, {C_WO}
            s_add_u32 {s(sT2)}, {s(sJ)}, {C_W4}
            v_writelane_b32 {v(vT3)}, 11, 3
            v_writelane_b32 {v(vT2)}, {s(sT)}, 2
            v_mov_b32 {v(vPK)}, 0
            v_writelane_b32 {v(vT2)}, {s(sT2)}, 3
            s_mov_b32 {s(sT2)}, 0x{FLG:x}
            v_lshlrev_b32 {v(vT2)}, {FSH}, {v(vT2)}
            s_cmp_eq_u32 {s(sC)}, 0
            s_cselect_b32 {s(sT2)}, {s(sT2)}, 0x40000000
            s_mov_b64 exec, 15
            """)
            vm.op(f"buffer_atomic_add {v(vPK)}, {v(vT2)}, {s(sWS,4)}, {s(sT2)} offen sc0 sc1", "x")
            a("s_mov_b64 exec, -1")
        vm.wait(f"a{st}")
        mm4(BIG+16*st, BIG+16*st+8, st == 0, False)
    hi()
    if MERGE:
        a(f"v_mov_b32 {v(vT0)}, 0x{SC_N+8:x}")
        await_(0, 9, addr=vT0)
    stamp(a, 2)
    XF = BIG
    def resid():
        vm.wait("x")
        if MERGE:
            a(f"""
            s_cmp_lg_u32 {s(sC)}, 0
            s_cbranch_scc1 CH_PKOK
            s_mov_b64 exec, 15
            v_cmp_gt_u32 vcc, {v(vT3)}, {v(vPK)}
            s_mov_b64 exec, -1
            s_cbranch_vccz CH_PKOK
            s_mov_b32 {s(sT2)}, 0x{FLG:x}
            """)
            poll(v(vT3), vT2, 4, True)
            a.label("CH_PKOK")
        a(f"""
        v_permlane32_swap_b32 {v(XA)}, {v(XA+2)}
        v_permlane32_swap_b32 {v(XA+1)}, {v(XA+3)}
        v_permlane32_swap_b32 {v(XB)}, {v(XB+2)}
        v_permlane32_swap_b32 {v(XB+1)}, {v(XB+3)}
        v_mul_f32 {v(STv)}, {v(STv)}, {v(STv+1)}
        v_sub_f32 {v(STv+2)}, 0, {v(STv)}
        v_sub_f32 {v(STv+3)}, 0, {v(STv)}
        v_mov_b32 {v(STv)}, {v(STv+1)}
        """)
        for j in range(8):
            a(f"v_lshlrev_b32 {v(XF+2*j)}, 16, {v(XA+j)}")
            a(f"v_and_b32 {v(XF+2*j+1)}, 0xffff0000, {v(XA+j)}")
        for j in range(0, 16, 2): a(f"v_pk_fma_f32 {v(XF+16+j,2)}, {v(XF+j,2)}, {v(STv,2)}, {v(STv+2,2)}")
        for j in range(0, 16, 2): a(f"v_pk_add_f32 {v(ACC+j,2)}, {v(ACC+j,2)}, {v(XF+16+j,2)}")
    reduce4(resid)
    stamp(a, 3)
    arrive()
    for j in range(8): a(f"v_cvt_pk_bf16_f32 {v(XF+16+j)}, {v(ACC+2*j)}, {v(ACC+2*j+1)}")
    a(f"""
    s_lshl_b32 {s(sT3)}, {s(sJ)}, 1
    s_add_u32 {s(sT3)}, {s(sT3)}, {s(sFT)}
    s_lshl_b32 {s(sT)}, {s(sT3)}, 11
    s_lshl_b32 {s(sT2)}, {s(sTT)}, 15
    s_add_u32 {s(sT)}, {s(sT)}, {s(sT2)}
    s_add_u32 {s(sT)}, {s(sT)}, 0x{X1F:x}
    """)
    vm.op(f"buffer_store_dwordx4 {v(XF+16,4)}, {v(vL16)}, {s(sWS,4)}, {s(sT)} offen {STF}", "st")
    vm.op(f"buffer_store_dwordx4 {v(XF+20,4)}, {v(vL16)}, {s(sWS,4)}, {s(sT)} offen offset:1024 {STF}", "st")
    a(f"v_pk_add_f32 {v(XR,2)}, {v(ACC,2)}, {v(ACC+2,2)}")
    a(f"v_pk_mul_f32 {v(XR+2,2)}, {v(ACC,2)}, {v(ACC,2)}")
    a(f"v_pk_fma_f32 {v(XR+2,2)}, {v(ACC+2,2)}, {v(ACC+2,2)}, {v(XR+2,2)}")
    for j in range(4, 16, 2):
        a(f"v_pk_add_f32 {v(XR,2)}, {v(XR,2)}, {v(ACC+j,2)}")
        a(f"v_pk_fma_f32 {v(XR+2,2)}, {v(ACC+j,2)}, {v(ACC+j,2)}, {v(XR+2,2)}")
    a(f"v_add_f32 {v(XR)}, {v(XR)}, {v(XR+1)}")
    a(f"v_add_f32 {v(XR+1)}, {v(XR+2)}, {v(XR+3)}")
    halves_sum(a, XR, vT0); halves_sum(a, XR+1, vT1)
    a(f"""
    s_lshl_b32 {s(sT)}, {s(sT3)}, 14
    s_add_u32 {s(sT)}, {s(sT)}, 0x{ST2:x}
    """)
    vm.op(f"buffer_store_dwordx2 {v(XR,2)}, {v(vSTO)}, {s(sWS,4)}, {s(sT)} offen {STF}", "st")
    for j in range(0, 16, 2): a(f"v_pk_add_f32 {v(ACC+j,2)}, {v(ACC+j,2)}, {v(XF+j,2)}")
    await_()
    stamp(a, 4)
    vm.wait("st")
    stamp(a, 5)
    signal(0)
    lo()
    a(f"""
    s_mul_i32 {s(sT)}, {s(sM16)}, 384
    s_add_u32 {s(sT)}, {s(sT)}, 0x{CS3P:x}
    v_lshlrev_b32 {v(vT2)}, 3, {v(vL)}
    """)
    for kp in range(4):
        vm.op(f"buffer_load_dwordx2 {v(C3+2*kp,2)}, {v(vT2)}, {s(sWS,4)}, {s(sT)} offen {P1F}", "c3")
        if kp < 3: a(f"s_add_u32 {s(sT)}, {s(sT)}, 6144")
    for i in range(8): w3dma(0, 8, i)
    a(f"""
    s_lshl_b32 {s(sT)}, {s(sTG)}, 7
    s_lshl_b32 {s(sT2)}, {s(sC)}, 5
    s_add_u32 {s(sT)}, {s(sT)}, {s(sT2)}
    v_add_u32 {v(vT3)}, {s(sT)}, {v(vI)}
    v_lshlrev_b32 {v(vT3)}, 3, {v(vT3)}
    v_lshl_add_u32 {v(vT3)}, {v(vHI)}, 17, {v(vT3)}
    s_lshl_b32 {s(sB2)}, {s(sT)}, 10
    s_add_u32 {s(sB2)}, {s(sB2)}, 0x{X1F:x}
    s_mov_b32 {s(sT2)}, {s(sFL)}
    """)
    stamp(a, 6)
    poll(16)
    stamp(a, 7)
    A3 = ACC+16; S2 = WF(1, 0) - 4
    def xload(kb):
        a(f"""
        s_and_b32 {s(sR2)}, {s(sR2)}, 31
        s_lshl_b32 {s(sT)}, {s(sR2)}, 10
        s_add_u32 {s(sT)}, {s(sT)}, {s(sB2)}
        s_add_u32 {s(sR2)}, {s(sR2)}, 1
        """)
        vm.op(f"buffer_load_dwordx4 {v(BIG+4*kb,4)}, {v(vL16)}, {s(sWS,4)}, {s(sT)} offen {LDF}", f"x{kb}")
    LA = 8
    a(f"s_mov_b32 {s(sT2)}, 0x{ST2:x}")
    for t in range(8):
        vm.op(f"buffer_load_dwordx2 {v(S2+2*t,2)}, {v(vT3)}, {s(sWS,4)}, {s(sT2)} offen {LDF}", "s2")
        a(f"s_add_u32 {s(sT2)}, {s(sT2)}, 0x4000")
    for kb in range(LA): xload(kb)
    hi()
    a(f"""
    v_pk_add_f32 {v(C3,2)}, {v(C3,2)}, {v(C3+2,2)}
    v_pk_add_f32 {v(C3+4,2)}, {v(C3+4,2)}, {v(C3+6,2)}
    v_pk_add_f32 {v(C3,2)}, {v(C3,2)}, {v(C3+4,2)}
    ds_write_b64 {v(vT2)}, {v(C3,2)} offset:{CS3L}
    """)
    vm.wait("s2")
    for t in range(1, 8): a(f"v_pk_add_f32 {v(S2,2)}, {v(S2,2)}, {v(S2+2*t,2)}")
    a(f"v_mov_b32 {v(XR)}, {v(S2)}")
    a(f"v_mov_b32 {v(XR+2)}, {v(S2+1)}")
    def t3(kb):
        for f in range(3): a(f"ds_read_b128 {v(WF(kb&1,f),4)}, {v(v3A[kb>>4])} offset:{(kb&15)*3072+1024*f}")
    t3(0)
    halves_sum(a, XR, vT0); halves_sum(a, XR+2, vT1)
    a(f"""
    v_mul_f32 {v(XR)}, {fl(-1/512)}, {v(XR)}
    v_mul_f32 {v(vT0)}, {v(XR)}, {v(XR)}
    v_mov_b32 {v(vT1)}, {fl(1/512)}
    v_fma_f32 {v(vT0)}, {v(XR+2)}, {v(vT1)}, -{v(vT0)}
    v_max_f32 {v(vT0)}, 0, {v(vT0)}
    v_add_f32 {v(vT0)}, {fl(EPS)}, {v(vT0)}
    v_rsq_f32 {v(XR+2)}, {v(vT0)}
    v_mov_b32 {v(XR+1)}, {v(XR)}
    """)
    gelu_consts(a, XR+2, STv, STv+2, 30)
    lo()
    for kb in range(32):
        if kb < 31: t3(kb+1)
        if kb+LA < 32: xload(kb+LA)
        vm.wait(f"x{kb}")
        a(f"s_waitcnt lgkmcnt({3 if kb < 31 else 0})")
        for f in range(3):
            a(f"v_mfma_f32_32x32x16_bf16 {v(A3+16*f,16)}, {v(WF(kb&1,f),4)}, {v(BIG+4*kb,4)}, {'0' if kb == 0 else v(A3+16*f,16)}")
    hi()
    stamp(a, 8)
    NW, NG = 10, 5
    WR = lambda st: 96 + 8*(st % NW)
    GR = lambda st: 176 + 8*(st % NG)
    CSV = 176; PK = 216; TMP = 240; vC1, vC2, vONE = STv, STv+2, 8
    a(f"""
    s_and_b32 {s(sT)}, {s(sT64)}, 3
    s_mul_i32 {s(sT)}, {s(sT)}, 5
    s_mul_i32 {s(sR1)}, {s(sJ)}, 3
    s_add_u32 {s(sR1)}, {s(sR1)}, {s(sT)}
    s_sub_u32 {s(sT)}, {s(sR1)}, 22
    s_cmp_ge_u32 {s(sR1)}, 22
    s_cselect_b32 {s(sR1)}, {s(sT)}, {s(sR1)}
    s_mov_b32 {s(sR2)}, {s(sR1)}
    s_mul_i32 {s(sB2)}, {s(sC)}, 22
    v_lshlrev_b32 {v(vT0)}, 4, {v(vHI)}
    s_lshl_b32 {s(sT)}, {s(sTG)}, 2
    s_add_u32 {s(sT)}, {s(sT)}, {s(sC)}
    s_mul_i32 {s(sT3)}, {s(sT)}, {96*1024}
    s_mul_i32 {s(sT)}, {s(sM16)}, 6144
    s_add_u32 {s(sT3)}, {s(sT3)}, {s(sT)}
    s_add_u32 {s(sT3)}, {s(sT3)}, 0x{GF:x}
    s_add_u32 {s(sWB)}, {s(sT3)}, 4096
    """)
    vONE = 30
    def rot22(r):
        a(f"""
        s_add_u32 {s(sT)}, {s(r)}, {s(sB2)}
        s_add_u32 {s(r)}, {s(r)}, 1
        s_cmp_eq_u32 {s(r)}, 22
        s_cselect_b32 {s(r)}, 0, {s(r)}
        """)
    def w4load(st): rot22(sR1); wload(WR(st), W4F, f"w{st}")
    def gload(st):
        rot22(sR2)
        a(f"s_lshl_b32 {s(sT2)}, {s(sT)}, 10")
        for b in (0, 1): vm.op(f"buffer_load_dwordx4 {v(GR(st)+4*b,4)}, {v(vH[b])}, {s(sWS,4)}, {s(sT2)} offen {LDF}", f"g{st}")
    def csread(g):
        for q in (0, 1): a(f"ds_read_b128 {v(CSV+8*(g&1)+4*q,4)}, {v(vT0)} offset:{CS3L+64*g+32*q}")
    csread(0)
    for g in range(6):
        xs = [A3+8*g+j for j in range(8)]
        if g < 5: csread(g+1)
        a(f"s_waitcnt lgkmcnt({2 if g < 5 else 0})")
        for j in range(0, 8, 2): a(f"v_pk_fma_f32 {v(xs[j],2)}, {v(CSV+8*(g&1)+j,2)}, {v(XR,2)}, {v(xs[j],2)}")
        gelu_scaled(a, xs, [TMP+j for j in range(8)], vC1, vC2, vONE)
        for j in range(4): a(f"v_cvt_pk_bf16_f32 {v(PK+4*g+j)}, {v(xs[2*j])}, {v(xs[2*j+1])}")
        vm.op(f"buffer_store_dwordx4 {v(PK+4*g,4)}, {v(vL16)}, {s(sWS,4)}, {s(sT3 if g < 4 else sWB)} offen offset:{1024*(g&3)} {STF}", "st")
        if g < 4: w4load(g)
    stamp(a, 9)
    a(f"""
    s_mul_i32 {s(sT)}, {s(sTT)}, {96*1024}
    s_add_u32 {s(sT)}, {s(sT)}, 0x{GF:x}
    s_xor_b32 {s(sT2)}, {s(sTT)}, 1
    s_mul_i32 {s(sT2)}, {s(sT2)}, {96*1024}
    s_add_u32 {s(sT2)}, {s(sT2)}, 0x{GF:x}
    v_add_u32 {v(vH[0])}, {s(sT)}, {v(vL16)}
    v_add_u32 {v(vH[1])}, {s(sT2)}, {v(vL16)}
    """)
    vm.wait("st")
    stamp(a, 10)
    signal(1)
    lo()
    for st in range(4, NW): w4load(st)
    a(f"s_add_u32 {s(sT2)}, {s(sFL)}, {16 << FSH}")
    poll(16)
    stamp(a, 11)
    for st in range(NG-1): gload(st)
    for st in range(22):
        if st+NG-1 < 22: gload(st+NG-1)
        vm.wait(f"w{st}", f"g{st}")
        mm4(WR(st), GR(st), st == 0, True)
        if st+NW < 22: w4load(st+NW)
    stamp(a, 12)
    a(f"s_mov_b32 {s(sR1)}, {s(sROT)}")
    WO = lambda st: 96 + 8*st
    OO = lambda st: 176 + 8*st
    for st in range(8): rot8(sR1); wload(WO(st), WOF, "wo")
    a(f"""
    s_lshl_b32 {s(sT)}, {s(sTT)}, 15
    s_add_u32 {s(sT)}, {s(sT)}, 0x{OF:x}
    v_add_u32 {v(vH[0])}, {s(sT)}, {v(vL16)}
    v_xor_b32 {v(vH[1])}, 0x8000, {v(vH[0])}
    s_mov_b32 {s(sR1)}, {s(sROT)}
    """)
    if not os.environ.get("NOATT"):
        await_(PROG_A, 17, 8)
        a(f"s_lshl_b32 {s(sT2)}, {s(sT64)}, {FSH}")
        a(f"s_add_u32 {s(sT2)}, {s(sT2)}, 0x{cnt(C_S3):x}")
        poll(32)
    stamp(a, 13)
    hi()
    for st in range(8):
        rot8(sR1)
        a(f"s_lshl_b32 {s(sT2)}, {s(sT)}, 10")
        for b in (0, 1): vm.op(f"buffer_load_dwordx4 {v(OO(st)+4*b,4)}, {v(vH[b])}, {s(sWS,4)}, {s(sT2)} offen {LDF}", f"o{st}")
    for st in range(8):
        vm.wait(f"o{st}", "wo")
        mm4(WO(st), OO(st), False, True)
    reduce4()
    Y = BIG
    for j in range(8): a(f"v_cvt_pk_bf16_f32 {v(Y+j)}, {v(ACC+2*j)}, {v(ACC+2*j+1)}")
    for b in (0, 1):
        a(f"v_permlane32_swap_b32 {v(Y+4*b)}, {v(Y+4*b+2)}")
        a(f"v_permlane32_swap_b32 {v(Y+4*b+1)}, {v(Y+4*b+3)}")
    for b in (0, 1): a(f"buffer_store_dwordx4 {v(Y+4*b,4)}, {v(vXO)}, {s(sOUT,4)}, 0 offen offset:{32*b} {OUTF}")
    if PROF:
        a("s_waitcnt vmcnt(0)")
        stamp(a, 1)
    stamp_flush(a, 1, sW, pWS)
    a("s_endpgm")

def gen_k2(a=None):
    own = a is None
    if own:
        a = Asm()
        a("s_cmp_ge_u32 s2, 256")
        a("s_cbranch_scc1 K2_END")
    stamp_init(a); stamp(a, 0)
    a(f"""
    s_load_dwordx2 s[26:27], s[0:1], {P_WS}
    s_load_dwordx2 s[16:17], s[0:1], {A_X}
    s_load_dwordx2 s[18:19], s[0:1], {P_OUT}
    v_lshrrev_b32 v2, 6, v0
    v_and_b32 v1, 63, v0
    v_readfirstlane_b32 s28, v2
    v_mov_b32 {v(vBIG)}, {fl(2.0**126)}
    s_cmp_ge_u32 s28, 4
    s_cbranch_scc1 K2_CHAIN
    """)
    attention(a)
    a(".p2align 6")
    a.label("K2_CHAIN")
    chain(a)
    a.label("K2_END" if own else "K1_END")
    a("s_endpgm")
    lines, added = a.done()
    return kernel_text("k2_mix_kernel" if own else NAME, lines, 256, 102)

NAME = "parallel_sum__mha_block__mixer_s_mlp__prompt_kernel"
def gen_merged():
    import k1
    a = Asm()
    k1.gen_k1(a)
    return gen_k2(a)
```

```python
from common import *

SC_3, SC_S, SC_C, SC_3P = 0x20000, 0x24000, 0x24800, 0x24c00

K1F = os.environ.get('K1F', 'sc1')

PFC = int(os.environ.get('PFC', 1))
PFT = int(os.environ.get('PFT', 0))
PFN = int(os.environ.get('PFN', 1))
STATS = os.environ.get('STATS', 'dots')

def gen_k1(a=None):
    own = a is None
    if own: a = Asm()
    sX, sW, sWS = 8, 12, 16
    pX, pQKV, pW1, pWS = 20, 22, 24, 26
    sW_, sTQ, sFH, sRB, sCB, sHB, sTY, sSTR, sCOL = 28, 29, 30, 31, 32, 33, 34, 35, 36
    sXO, sWO, sM0, sT, sT2, sCH, sSC, sBS, sBO, s8S, s64S = 37, 38, 39, 40, 41, 42, 43, 44, 45, 46, 47
    sP, pA, sKP, sCI, sXB, sPS, sPD, sPR, sNAT = 48, 52, 60, 61, 62, 63, 3, 4, 5
    pWO, pDBG, sRDY, sU, sDB, sJC = 6, 98, 100, 101, 92, 54
    vL, vT0, vT1, vT2, vT3 = 1, 2, 3, 4, 5
    vX0, vX1, vWD = 6, 7, 8
    vI, vHI, vPA, vPT = 9, 10, 11, 12
    XA = lambda st, k: 16 + st*4 + k
    WA = lambda st, ft: 24 + st*3 + ft
    SEL = 32
    XF = lambda p: 36 + 16*p
    WF = lambda p, ft: 40 + 16*p + 4*ft
    ACC = lambda ft: 84 + 16*ft
    GR = 116
    CSV = 124; PK = 156; TMP = 172
    vMEAN, vR, vR1, vOFF, vTA, vTB, vSUM, vSQ = 180, 182, 184, 185, 186, 187, 188, 189
    vC1, vC2, vONE, W3V, vPF = 190, 192, 194, 196, 204
    a(f"""
    s_cmp_ge_u32 s2, 256
    s_cbranch_scc1 K1_END
    """)
    stamp_init(a); stamp(a, 0)
    a(f"""
    s_load_dwordx4 {s(pX,4)}, s[0:1], {A_X}
    s_load_dwordx2 {s(pW1,2)}, s[0:1], {B_W1}
    s_load_dwordx2 {s(pWS,2)}, s[0:1], {P_WS}
    s_load_dwordx2 {s(pWO,2)}, s[0:1], {A_WO}
    s_load_dwordx2 {s(pA,2)}, s[0:1], {B_W2}
    s_load_dwordx4 {s(pA+4,4)}, s[0:1], {B_W3}
    s_load_dwordx2 {s(pDBG,2)}, s[0:1], {P_DBG}
    v_lshrrev_b32 {v(vT0)}, 6, v0
    v_and_b32 {v(vL)}, 63, v0
    v_readfirstlane_b32 {s(sW_)}, {v(vT0)}
    s_and_b32 {s(sT)}, s2, 3
    s_lshl_b32 {s(sRB)}, {s(sT)}, 2
    s_bfe_u32 {s(sT)}, s2, 0x20003
    s_add_u32 {s(sRB)}, {s(sRB)}, {s(sT)}
    s_lshl_b32 {s(sCH)}, {s(sT)}, 1
    s_bfe_u32 {s(sT)}, s2, 0x10002
    s_lshl_b32 {s(sCB)}, {s(sT)}, 3
    s_lshr_b32 {s(sT2)}, s2, 5
    s_add_u32 {s(sCB)}, {s(sCB)}, {s(sT2)}
    s_add_u32 {s(sCH)}, {s(sCH)}, {s(sT2)}
    s_and_b32 {s(sCH)}, {s(sCH)}, 7
    s_and_b32 {s(sTQ)}, {s(sW_)}, 3
    s_lshr_b32 {s(sFH)}, {s(sW_)}, 2
    s_mul_i32 {s(sT)}, {s(sFH)}, 24
    s_add_u32 {s(sHB)}, {s(sT)}, {s(sCB)}
    s_lshl_b32 {s(sT)}, {s(sCB)}, 1
    s_add_u32 {s(sT)}, {s(sT)}, {s(sFH)}
    s_sub_u32 {s(sT)}, {s(sT)}, 8
    s_cmp_lt_u32 {s(sCB)}, 8
    s_cselect_b32 {s(sHB)}, {s(sHB)}, {s(sT)}
    s_lshr_b32 {s(sTY)}, {s(sHB)}, 3
    s_lshl_b32 {s(sCOL)}, {s(sHB)}, 7
    s_sub_u32 {s(sT)}, {s(sCOL)}, 3072
    s_cmp_eq_u32 {s(sTY)}, 3
    s_cselect_b32 {s(sCOL)}, {s(sT)}, {s(sCOL)}
    s_mov_b32 {s(sSTR)}, 3072
    s_cmov_b32 {s(sSTR)}, 1024
    s_lshl_b32 {s(s8S)}, {s(sSTR)}, 3
    s_lshl_b32 {s(s64S)}, {s(sSTR)}, 6
    v_lshrrev_b32 {v(vT0)}, 3, {v(vL)}
    v_lshrrev_b32 {v(vT1)}, 4, {v(vL)}
    v_and_b32 {v(vT2)}, 7, {v(vL)}
    v_xor_b32 {v(vT3)}, {v(vT2)}, {v(vT1)}
    v_lshlrev_b32 {v(vT3)}, 4, {v(vT3)}
    s_lshl_b32 {s(sT)}, {s(sW_)}, 4
    v_add_u32 {v(vX0)}, {s(sT)}, {v(vT0)}
    v_lshl_add_u32 {v(vX0)}, {v(vX0)}, 10, {v(vT3)}
    v_xor_b32 {v(vX1)}, 64, {v(vX0)}
    v_add_u32 {v(vX1)}, 0x2000, {v(vX1)}
    v_and_b32 {v(vT1)}, 1, {v(vT1)}
    v_lshlrev_b32 {v(vT1)}, 2, {v(vT1)}
    v_xor_b32 {v(vT1)}, {v(vT1)}, {v(vT2)}
    v_lshlrev_b32 {v(vT1)}, 4, {v(vT1)}
    s_lshl_b32 {s(sT)}, {s(sTQ)}, 4
    v_add_u32 {v(vT3)}, {s(sT)}, {v(vT0)}
    v_mul_lo_u32 {v(vWD)}, {v(vT3)}, {s(sSTR)}
    v_add3_u32 {v(vWD)}, {v(vWD)}, {v(vT1)}, {s(sCOL)}
    s_lshl_b32 {s(sXB)}, {s(sRB)}, 17
    s_lshl_b32 {s(sM0)}, {s(sW_)}, 11
    s_waitcnt lgkmcnt(0)
    """)
    srd(a, sX, pX, 0, 0x200000)
    a(f"""
    s_cmp_eq_u32 {s(sTY)}, 3
    s_cselect_b32 {s(sW)}, {s(pW1)}, {s(pQKV)}
    s_cselect_b32 {s(sW+1)}, {s(pW1+1)}, {s(pQKV+1)}
    s_lshl_b32 {s(sW+2)}, {s(sSTR)}, 9
    s_mov_b32 {s(sW+3)}, 0x20000
    """)
    def dma(vm, c, i):
        sl = (c % 4)*32768
        if i == 0:
            a(f"""
            s_lshl_b32 {s(sXO)}, {s(sCH)}, 7
            s_add_u32 m0, {s(sM0)}, {sl}
            s_add_u32 {s(sXO)}, {s(sXO)}, {s(sXB)}
            """)
            vm.op(f"buffer_load_dwordx4 {v(vX0)}, {s(sX,4)}, {s(sXO)} offen lds", c)
        elif i == 1:
            a(f"s_add_u32 m0, {s(sM0)}, {sl+16384}")
            a(f"s_mul_i32 {s(sWO)}, {s(sCH)}, {s(s64S)}")
            vm.op(f"buffer_load_dwordx4 {v(vWD)}, {s(sW,4)}, {s(sWO)} offen lds", c)
        elif i == 2:
            a(f"s_add_u32 m0, {s(sM0)}, {sl+1024}")
            a(f"s_add_u32 {s(sCH)}, {s(sCH)}, 1")
            vm.op(f"buffer_load_dwordx4 {v(vX1)}, {s(sX,4)}, {s(sXO)} offen lds", c)
        else:
            a(f"s_add_u32 m0, {s(sM0)}, {sl+17408}")
            a(f"s_add_u32 {s(sWO)}, {s(sWO)}, {s(s8S)}")
            vm.op(f"buffer_load_dwordx4 {v(vWD)}, {s(sW,4)}, {s(sWO)} offen lds", c)
            a(f"s_and_b32 {s(sCH)}, {s(sCH)}, 7")
    vm0 = VM(a)
    stamp(a, 1)
    for i in range(4): dma(vm0, 0, i)
    srd(a, sWS, pWS, 0, WS_USED)
    a(f"""
    s_lshr_b32 {s(sT)}, s2, 3
    s_lshl_b32 {s(sT)}, {s(sT)}, 2
    s_and_b32 {s(sT2)}, s2, 3
    s_add_u32 {s(sT)}, {s(sT)}, {s(sT2)}
    s_add_u32 {s(sU)}, {s(sT)}, 128
    s_cmp_lt_u32 {s(sT)}, 88
    s_cselect_b32 {s(sU)}, {s(sT)}, {s(sU)}
    s_add_u32 {s(sT)}, {s(sT)}, 88
    s_cmp_ge_u32 {s(sCB)}, 8
    s_cselect_b32 {s(sU)}, {s(sT)}, {s(sU)}
    s_mul_i32 {s(sKP)}, {s(sU)}, 2979
    s_lshr_b32 {s(sKP)}, {s(sKP)}, 16
    s_mul_i32 {s(sT)}, {s(sKP)}, 22
    s_sub_u32 {s(sCI)}, {s(sU)}, {s(sT)}
    s_mov_b64 {s(sP,2)}, {s(pA+4,2)}
    s_mov_b32 {s(sP+2)}, {512*2752}
    s_mov_b32 {s(sP+3)}, 0x20000
    s_mov_b32 {s(sPR)}, 2752
    s_mov_b32 {s(sPD)}, 0x{W3F:x}
    s_mov_b32 {s(sJC)}, {C_W3}
    s_mov_b32 {s(sT2)}, 44
    s_mov_b32 {s(sNAT)}, 0
    s_cmp_lt_u32 {s(sU)}, 88
    s_cbranch_scc1 K1_JOB
    s_and_b32 {s(sCI)}, {s(sU)}, 7
    s_mov_b32 {s(sPR)}, 1024
    s_mov_b32 {s(sT2)}, 16
    s_mov_b32 {s(sP+2)}, 0x80000
    s_sub_u32 {s(sKP)}, {s(sU)}, 88
    s_mov_b64 {s(sP,2)}, {s(pA,2)}
    s_mov_b32 {s(sPD)}, 0x{W2F:x}
    s_mov_b32 {s(sJC)}, {C_W2}
    s_cmp_lt_u32 {s(sU)}, 120
    s_cbranch_scc1 K1_JOBS
    s_sub_u32 {s(sKP)}, {s(sU)}, 120
    s_mov_b64 {s(sP,2)}, {s(pWO,2)}
    s_mov_b32 {s(sPD)}, 0x{WOF:x}
    s_mov_b32 {s(sJC)}, {C_WO}
    s_mov_b32 {s(sNAT)}, 1
    s_cmp_lt_u32 {s(sU)}, 152
    s_cbranch_scc1 K1_JOBS
    s_sub_u32 {s(sKP)}, {s(sU)}, 152
    s_mov_b64 {s(sP,2)}, {s(pA+6,2)}
    s_mov_b32 {s(sP+2)}, {1376*1024}
    s_mov_b32 {s(sPD)}, 0x{W4F:x}
    s_mov_b32 {s(sJC)}, {C_W4}
    s_mov_b32 {s(sNAT)}, 0
    s_cmp_lt_u32 {s(sU)}, 240
    s_cbranch_scc1 K1_JOBS
    s_mov_b32 {s(sPD)}, 0x40000000
    """)
    a.label("K1_JOBS")
    a(f"s_lshr_b32 {s(sKP)}, {s(sKP)}, 3")
    a.label("K1_JOB")
    a(f"""
    s_lshl_b32 {s(sT)}, {s(sKP)}, 3
    s_add_u32 {s(sT)}, {s(sT)}, {s(sW_)}
    s_mul_i32 {s(sT2)}, {s(sT2)}, {s(sT)}
    s_lshl_b32 {s(sPS)}, {s(sCI)}, 1
    s_add_u32 {s(sT2)}, {s(sT2)}, {s(sPS)}
    s_lshl_b32 {s(sT2)}, {s(sT2)}, 10
    s_add_u32 {s(sPD)}, {s(sPD)}, {s(sT2)}
    s_mul_i32 {s(sT)}, {s(sT)}, {s(sPR)}
    s_lshl_b32 {s(sT)}, {s(sT)}, 4
    s_lshl_b32 {s(sPS)}, {s(sCI)}, 7
    s_add_u32 {s(sPS)}, {s(sPS)}, {s(sT)}
    v_mul_lo_u32 {v(vPA)}, {v(vT0)}, {s(sPR)}
    v_add_u32 {v(vPA)}, {v(vPA)}, {v(vT1)}
    s_lshl_b32 {s(sPR)}, {s(sPR)}, 3
    s_add_u32 {s(sPR)}, {s(sPR)}, {s(sPS)}
    """)
    a(f"""
    v_mov_b32 {v(TMP)}, 0
    v_mov_b32 {v(TMP+1)}, 0
    v_mov_b32 {v(vTA)}, 0x{SC_N:x}
    ds_write_b64 {v(vTA)}, {v(TMP,2)}
    ds_write_b32 {v(vTA)}, {v(TMP)} offset:8
    """)
    if MERGE:
        a(f"""
        s_cmp_lg_u32 s2, 0
        s_cbranch_scc1 K1_NOINIT
        s_cmp_lg_u32 {s(sW_)}, 7
        s_cbranch_scc1 K1_NOINIT
        v_lshlrev_b32 {v(vTA)}, {FSH}, {v(vL)}
        s_mov_b32 {s(sT)}, 0x{cnt(0):x}
        s_mov_b32 {s(sT2)}, 0x{cnt(64):x}
        buffer_store_dword {v(TMP)}, {v(vTA)}, {s(sWS,4)}, {s(sT)} offen sc1
        buffer_store_dword {v(TMP)}, {v(vTA)}, {s(sWS,4)}, {s(sT2)} offen sc1
        s_mov_b32 {s(sT)}, 0x{cnt(128):x}
        buffer_store_dword {v(TMP)}, {v(vTA)}, {s(sWS,4)}, {s(sT)} offen sc1
        """)
        a.label("K1_NOINIT")
        a("s_waitcnt lgkmcnt(0)")
    a("s_barrier")
    for i in range(4): dma(vm0, 1, i)
    a(f"""
    v_and_b32 {v(vI)}, 31, {v(vL)}
    v_lshrrev_b32 {v(vHI)}, 5, {v(vL)}
    s_lshl_b32 {s(sT)}, {s(sTQ)}, 5
    v_add_u32 {v(vT0)}, {s(sT)}, {v(vI)}
    v_lshlrev_b32 {v(vT0)}, 7, {v(vT0)}
    v_bfe_u32 {v(vT1)}, {v(vI)}, 1, 3
    v_xor_b32 {v(vT1)}, {v(vT1)}, {v(vHI)}
    v_bfe_u32 {v(vT2)}, {v(vL)}, 2, 2
    v_lshlrev_b32 {v(vT3)}, 7, {v(vT2)}
    v_lshrrev_b32 {v(vT2)}, 1, {v(vT2)}
    v_lshl_add_u32 {v(vT3)}, {v(vT2)}, 6, {v(vT3)}
    v_bfe_u32 {v(vT2)}, {v(vL)}, 4, 1
    v_lshl_add_u32 {v(vT3)}, {v(vT2)}, 5, {v(vT3)}
    v_and_b32 {v(vTB)}, 15, {v(vL)}
    v_cmp_eq_u32 vcc, {v(vTB)}, {v(vT2)}
    v_and_b32 {v(vT2)}, 3, {v(vL)}
    v_lshl_add_u32 {v(vT3)}, {v(vT2)}, 3, {v(vT3)}
    v_lshl_add_u32 {v(vTB)}, {v(vHI)}, 10, {v(vT3)}
    v_mov_b32 {v(vT2)}, 0x{ONES:x}
    v_cndmask_b32 {v(SEL)}, 0, {v(vT2)}, vcc
    s_add_u32 {s(sT)}, {s(sNAT)}, 9
    v_lshlrev_b32 {v(vPT)}, {s(sT)}, {v(vHI)}
    s_lshl_b32 {s(sT)}, {s(sW_)}, 11
    s_add_u32 {s(sT)}, {s(sT)}, 0x{SC_3:x}
    v_add3_u32 {v(vPT)}, {v(vPT)}, {v(vT3)}, {s(sT)}
    s_lshl_b32 {s(sT)}, {s(sFH)}, 13
    s_add_u32 {s(sT)}, {s(sT)}, 16384
    v_add_u32 {v(WA(0,0))}, {s(sT)}, {v(vTB)}
    v_xor_b32 {v(WA(0,1))}, 64, {v(WA(0,0))}
    s_and_b32 {s(sT)}, {s(sTQ)}, 1
    s_lshl_b32 {s(sT)}, {s(sT)}, 13
    s_add_u32 {s(sT)}, {s(sT)}, 16384
    s_lshr_b32 {s(sT2)}, {s(sTQ)}, 1
    s_lshl_b32 {s(sT2)}, {s(sT2)}, 6
    v_xor_b32 {v(WA(0,2))}, {s(sT2)}, {v(vTB)}
    v_add_u32 {v(WA(0,2))}, {s(sT)}, {v(WA(0,2))}
    v_mov_b32 {v(SEL+1)}, {v(SEL)}
    v_mov_b32 {v(SEL+2)}, {v(SEL)}
    v_mov_b32 {v(SEL+3)}, {v(SEL)}
    v_mov_b32 {v(GR)}, 0
    v_mov_b32 {v(GR+1)}, 0
    v_mov_b32 {v(GR+2)}, 0
    v_mov_b32 {v(GR+3)}, 0
    v_mov_b32 {v(vONE)}, 0x{ONES:x}
    """)
    for k in range(4):
        a(f"v_xor_b32 {v(vT2)}, {2*k}, {v(vT1)}")
        a(f"v_lshl_add_u32 {v(XA(0,k))}, {v(vT2)}, 4, {v(vT0)}")
    for k in range(4): a(f"v_add_u32 {v(XA(1,k))}, 65536, {v(XA(0,k))}")
    for ft in range(3): a(f"v_add_u32 {v(WA(1,ft))}, 65536, {v(WA(0,ft))}")
    stamp(a, 2)
    def warm(vm):
        a(f"""
        s_lshr_b32 {s(sT)}, s2, 3
        s_cmp_lg_u32 {s(sW_)}, 4
        s_cbranch_scc1 K1_WARM1
        """)
        if PFC: a(f"""
        s_getpc_b64 {s(sDB,2)}
        s_and_b32 {s(sDB)}, {s(sDB)}, 0xffffff80
        s_lshl_b32 {s(sT)}, {s(sT)}, 10
        v_lshl_add_u32 {v(vT0)}, {v(vL)}, 4, {s(sT)}
        v_min_u32 {v(vT0)}, K1_END-K1_B1-1024, {v(vT0)}
        global_load_dword {v(vPF)}, {v(vT0)}, {s(sDB,2)}
        """)
        a("s_branch K1_WARM2")
        a.label("K1_WARM1")
        if PFT:
            a(f"""
            s_cmp_lg_u32 {s(sW_)}, 5
            s_cbranch_scc1 K1_WARM2
            """)
            if PFT == 1: a(f"""
            v_lshl_add_u32 {v(vT0)}, {v(vL)}, 5, {s(sT)}
            v_lshlrev_b32 {v(vT0)}, 16, {v(vT0)}
            s_mov_b64 exec, 0x3fff
            """)
            else: a(f"""
            v_lshlrev_b32 {v(vT0)}, 21, {v(vL)}
            s_mov_b64 exec, 0x3fff
            """)
            a(f"""
            buffer_load_dword {v(vPF)}, {v(vT0)}, {s(sWS,4)}, 0 offen
            s_mov_b64 exec, -1
            """)
        a.label("K1_WARM2")
    def body(fh):
        vm = VM(a); vm.q = list(vm0.q)
        nr = 5 + 2*fh
        def reads(n):
            c, k = divmod(n, 4); sl = c % 4; st = sl >> 1; o = (sl & 1)*32768; p = n % 3
            a(f"ds_read_b128 {v(XF(p),4)}, {v(XA(st,k))} offset:{o}")
            for ft in range(2+fh):
                a(f"ds_read_b64_tr_b16 {v(WF(p,ft),2)}, {v(WA(st,ft))} offset:{o+k*2048}")
                a(f"ds_read_b64_tr_b16 {v(WF(p,ft)+2,2)}, {v(WA(st,ft))} offset:{o+k*2048+512}")
        def compute(n):
            p = n % 3
            z = lambda r, w: "0" if n == 0 else v(r, w)
            mine = {"valu": fh == 0, "valu2": (n & 1) == fh, "valu31": (n % 4 == 3) == (fh == 1)}.get(STATS, False)
            if STATS == "dots" and fh == 0:
                for j in range(4):
                    a(f"v_dot2_f32_bf16 {v(GR+2)}, {v(XF(p)+j)}, {v(XF(p)+j)}, {v(GR+2)}")
                    a(f"v_dot2_f32_bf16 {v(GR)}, {v(XF(p)+j)}, {v(vONE)}, {v(GR)}")
            for ft in (0, 1):
                a(f"v_mfma_f32_32x32x16_bf16 {v(ACC(ft),16)}, {v(WF(p,ft),4)}, {v(XF(p),4)}, {z(ACC(ft),16)}")
                if mine:
                    for j in (2*ft, 2*ft+1):
                        a(f"v_lshlrev_b32 {v(TMP+2*j)}, 16, {v(XF(p)+j)}")
                        a(f"v_and_b32 {v(TMP+2*j+1)}, 0xffff0000, {v(XF(p)+j)}")
                    for j in range(4*ft, 4*ft+4):
                        a(f"v_add_f32 {v(GR+(j&1))}, {v(GR+(j&1))}, {v(TMP+j)}")
                        a(f"v_fmac_f32 {v(GR+2+(j&1))}, {v(TMP+j)}, {v(TMP+j)}")
            if fh == 1 and STATS != "none":
                a(f"v_mfma_f32_16x16x32_bf16 {v(GR+4,4)}, {v(SEL,4)}, {v(WF(p,2),4)}, {z(GR+4,4)}")
        sched = {0: [(2, 0), (2, 1)], 1: [(2, 2), (2, 3)]}
        for c in range(5):
            for i in range(4): sched[4*c+2+i] = [(c+3, i)]
        vm.wait(0)
        a("s_barrier")
        if MERGE and fh == 1:
            a(f"""
            s_xor_b32 {s(sT)}, {s(sW_)}, 7
            s_or_b32 {s(sT)}, {s(sT)}, s2
            s_cbranch_scc1 K1_NOFLAG
            """)
            srd(a, sDB, pDBG, 0, 256)
            a(f"""
            v_mov_b32 {v(TMP+1)}, 1
            s_mov_b64 exec, 1
            buffer_store_dword {v(TMP+1)}, {v(TMP)}, {s(sDB,4)}, 0 offen sc1
            s_mov_b64 exec, -1
            """)
            a.label("K1_NOFLAG")
        stamp(a, 3)
        reads(0); reads(1)
        extra = 0
        for n in range(32):
            c, k = divmod(n, 4)
            if k == 2 and c < 7:
                vm.wait(c+1)
                a("s_barrier")
                stamp(a, 4+c)
            if n < 30: reads(n+2)
            a(f"s_waitcnt lgkmcnt({min(15, nr*min(2, 31-n))})")
            compute(n)
            for cc, i in sched.get(n, []): dma(vm, cc, i)
            if n == PFN and fh == 1 and (PFC or PFT): warm(vm)
            if n == 24 and MERGE: a(f"s_load_dword {s(sRDY)}, {s(pDBG,2)}, 0")
            if n == 27 and MERGE:
                a(f"""
                v_lshlrev_b32 {v(vT0)}, 2, v0
                v_mov_b32 {v(vT1)}, 0
                ds_write_b32 {v(vT0)}, {v(vT1)} offset:{16*2080}
                ds_write_b32 {v(vT0)}, {v(vT1)} offset:{16*2080+256}
                """)
            if n == 26:
                vm.op(f"buffer_load_dwordx4 {v(W3V,4)}, {v(vPA)}, {s(sP,4)}, {s(sPS)} offen", "p")
                vm.op(f"buffer_load_dwordx4 {v(W3V+4,4)}, {v(vPA)}, {s(sP,4)}, {s(sPR)} offen", "p")
        stamp(a, 11)
        a(f"v_add_f32 {v(GR)}, {v(GR)}, {v(GR+1)}")
        a(f"v_add_f32 {v(GR+1)}, {v(GR+2)}, {v(GR+3)}")
        halves_sum(a, GR, vT1); halves_sum(a, GR+1, vT2)
        a(f"""
        s_lshl_b32 {s(sT)}, {s(sTQ)}, 9
        s_add_u32 {s(sT)}, {s(sT)}, 0x{SC_S+8*fh:x}
        v_lshl_add_u32 {v(vT0)}, {v(vI)}, 4, {s(sT)}
        ds_write_b64 {v(vT0)}, {v(GR,2)}
        """)
        if fh == 0: pass
        else:
            a(f"""
            s_and_b32 {s(sT)}, {s(sTQ)}, 1
            s_lshl_b32 {s(sT)}, {s(sT)}, 8
            s_lshr_b32 {s(sT2)}, {s(sTQ)}, 1
            s_lshl_b32 {s(sT2)}, {s(sT2)}, 7
            s_add_u32 {s(sT)}, {s(sT)}, {s(sT2)}
            s_add_u32 {s(sT)}, {s(sT)}, 0x{SC_C:x}
            v_lshl_add_u32 {v(vT1)}, {v(vL)}, 2, {s(sT)}
            s_mov_b64 exec, 0xffff
            ds_write_b32 {v(vT1)}, {v(GR+4)}
            ds_write_b32 {v(vT1)}, {v(GR+5)} offset:64
            s_mov_b64 exec, -1
            """)
    a(f"""
    s_cmp_eq_u32 {s(sFH)}, 1
    s_cbranch_scc1 K1_B1
    """)
    body(0)
    a("s_branch K1_JOIN")
    a.label("K1_B1")
    body(1)
    a.label("K1_JOIN")
    a(f"""
    s_lshl_b32 {s(sT)}, {s(sTQ)}, 9
    s_add_u32 {s(sT)}, {s(sT)}, 0x{SC_S:x}
    v_lshl_add_u32 {v(vT1)}, {v(vI)}, 4, {s(sT)}
    s_lshl_b32 {s(sT)}, {s(sFH)}, 8
    s_add_u32 {s(sT)}, {s(sT)}, 0x{SC_C:x}
    v_lshl_add_u32 {v(vT2)}, {v(vHI)}, 4, {s(sT)}
    s_waitcnt lgkmcnt(0)
    s_barrier
    ds_read_b128 {v(TMP,4)}, {v(vT1)}
    """)
    for ft in (0, 1):
        for q in range(4): a(f"ds_read_b128 {v(CSV+16*ft+4*q,4)}, {v(vT2)} offset:{128*ft+32*q}")
    a(f"""
    s_cmp_eq_u32 {s(sTY)}, 0
    s_cselect_b32 {s(sSC)}, {fl(0.25*LOG2E)}, 1.0
    s_lshl_b32 {s(sT2)}, {s(sRB)}, 2
    s_add_u32 {s(sT2)}, {s(sT2)}, {s(sTQ)}
    v_mov_b32 {v(vTB)}, {fl(1/512)}
    s_waitcnt lgkmcnt(8)
    v_add_f32 {v(vSUM)}, {v(TMP)}, {v(TMP+2)}
    v_add_f32 {v(vSQ)}, {v(TMP+1)}, {v(TMP+3)}
    v_mul_f32 {v(vMEAN)}, {v(vTB)}, {v(vSUM)}
    v_mul_f32 {v(vTA)}, {v(vMEAN)}, {v(vMEAN)}
    v_fma_f32 {v(vTA)}, {v(vSQ)}, {v(vTB)}, -{v(vTA)}
    v_max_f32 {v(vTA)}, 0, {v(vTA)}
    v_add_f32 {v(vTB)}, {fl(EPS)}, {v(vTA)}
    v_rsq_f32 {v(vR1)}, {v(vTB)}
    s_cmp_lg_u32 {s(sTY)}, 3
    v_mul_f32 {v(vR)}, {s(sSC)}, {v(vR1)}
    s_cbranch_scc1 K1_NOR2
    v_mul_f32 {v(vTB)}, {v(vR1)}, {v(vR1)}
    v_fmaak_f32 {v(vTB)}, {v(vTB)}, {v(vTA)}, {fl(EPS)}
    v_rsq_f32 {v(vTB)}, {v(vTB)}
    s_nop 0
    v_mul_f32 {v(vR)}, {v(vR1)}, {v(vTB)}
    """)
    gelu_consts(a, vR, vC1, vC2, vONE)
    a.label("K1_NOR2")
    a(f"""
    s_cmp_lg_u32 {s(sHB)}, 24
    s_cbranch_scc1 K1_NOST
    s_lshl_b32 {s(sT)}, {s(sT2)}, 8
    s_add_u32 {s(sT)}, {s(sT)}, 0x{ST1:x}
    v_lshlrev_b32 {v(vTA)}, 3, {v(vI)}
    v_mov_b32 {v(PK)}, {v(vMEAN)}
    v_mov_b32 {v(PK+1)}, {v(vR1)}
    buffer_store_dwordx2 {v(PK,2)}, {v(vTA)}, {s(sWS,4)}, {s(sT)} offen {K1F}
    """)
    a.label("K1_NOST")
    a(f"""
    v_sub_f32 {v(vMEAN)}, 0, {v(vMEAN)}
    v_mov_b32 {v(vR+1)}, {v(vR)}
    v_mov_b32 {v(vMEAN+1)}, {v(vMEAN)}
    s_waitcnt lgkmcnt(0)
    """)
    for j in range(0, 32, 2): a(f"v_pk_fma_f32 {v(ACC(0)+j,2)}, {v(CSV+j,2)}, {v(vMEAN,2)}, {v(ACC(0)+j,2)}")
    a(f"""
    v_lshlrev_b32 {v(vT3)}, 4, {v(vL)}
    s_and_b32 {s(sT)}, {s(sHB)}, 7
    s_cmp_eq_u32 {s(sTY)}, 3
    s_cbranch_scc1 K1_H
    """)
    for j in range(0, 32, 2): a(f"v_pk_mul_f32 {v(ACC(0)+j,2)}, {v(ACC(0)+j,2)}, {v(vR,2)}")
    for j in range(16): a(f"v_cvt_pk_bf16_f32 {v(PK+j)}, {v(ACC(0)+2*j)}, {v(ACC(0)+2*j+1)}")
    a(f"""
    s_cmp_eq_u32 {s(sTY)}, 0
    s_cbranch_scc1 K1_Q
    s_mov_b32 {s(sBS)}, 0x20000
    s_lshl_b32 {s(sBO)}, {s(sT)}, 19
    s_lshl_b32 {s(sT)}, {s(sT2)}, 11
    s_add_u32 {s(sBO)}, {s(sBO)}, {s(sT)}
    s_add_u32 {s(sBO)}, {s(sBO)}, 0x{KVF:x}
    s_cmp_eq_u32 {s(sTY)}, 2
    s_cbranch_scc1 K1_V
    v_and_b32 {v(vOFF)}, 0x33, {v(vL)}
    v_bfe_u32 {v(vTA)}, {v(vL)}, 2, 1
    v_lshl_add_u32 {v(vOFF)}, {v(vTA)}, 3, {v(vOFF)}
    v_bfe_u32 {v(vTA)}, {v(vL)}, 3, 1
    v_lshl_add_u32 {v(vOFF)}, {v(vTA)}, 2, {v(vOFF)}
    v_lshlrev_b32 {v(vOFF)}, 4, {v(vOFF)}
    s_branch K1_STORE
    """)
    a.label("K1_V")
    a(f"""
    s_add_u32 {s(sBO)}, {s(sBO)}, 1024
    s_lshl_b32 {s(sT)}, {s(sW_)}, 12
    s_add_u32 {s(sT)}, {s(sT)}, 0x10000
    v_lshlrev_b32 {v(vTA)}, 5, {v(vI)}
    v_lshl_add_u32 {v(vTA)}, {v(vHI)}, 4, {v(vTA)}
    v_add_u32 {v(vTA)}, {s(sT)}, {v(vTA)}
    """)
    for b in range(4): a(f"ds_write_b128 {v(vTA)}, {v(PK+4*b,4)} offset:{1024*b}")
    a(f"""
    v_bfe_u32 {v(vTB)}, {v(vL)}, 4, 1
    v_lshlrev_b32 {v(vOFF)}, 9, {v(vTB)}
    v_lshl_add_u32 {v(vTA)}, {v(vHI)}, 7, {v(vOFF)}
    v_and_b32 {v(vTB)}, 15, {v(vL)}
    v_lshl_add_u32 {v(vTA)}, {v(vTB)}, 3, {v(vTA)}
    v_add_u32 {v(vTA)}, {s(sT)}, {v(vTA)}
    v_lshl_add_u32 {v(vOFF)}, {v(vHI)}, 8, {v(vOFF)}
    v_lshl_add_u32 {v(vOFF)}, {v(vTB)}, 4, {v(vOFF)}
    s_waitcnt lgkmcnt(0)
    """)
    for b in range(4):
        a(f"ds_read_b64_tr_b16 {v(PK+4*b,2)}, {v(vTA)} offset:{1024*b}")
        a(f"ds_read_b64_tr_b16 {v(PK+4*b+2,2)}, {v(vTA)} offset:{1024*b+256}")
    a("s_waitcnt lgkmcnt(0)")
    a("s_branch K1_STORE")
    a.label("K1_Q")
    a(f"""
    s_mov_b32 {s(sBS)}, 0x10000
    s_lshl_b32 {s(sBO)}, {s(sT)}, 18
    s_lshl_b32 {s(sT)}, {s(sT2)}, 10
    s_add_u32 {s(sBO)}, {s(sBO)}, {s(sT)}
    v_mov_b32 {v(vOFF)}, {v(vT3)}
    """)
    a.label("K1_STORE")
    for b in range(4):
        a(f"buffer_store_dwordx4 {v(PK+4*b,4)}, {v(vOFF)}, {s(sWS,4)}, {s(sBO)} offen {K1F}")
        if b < 3: a(f"s_add_u32 {s(sBO)}, {s(sBO)}, {s(sBS)}")
    a("s_branch K1_PACK")
    a.label("K1_H")
    a(f"""
    s_lshl_b32 {s(sBO)}, {s(sT)}, 12
    s_lshl_b32 {s(sT)}, {s(sT2)}, 15
    s_add_u32 {s(sBO)}, {s(sBO)}, {s(sT)}
    s_add_u32 {s(sBO)}, {s(sBO)}, 0x{HF:x}
    """)
    for g in range(4):
        gelu_scaled(a, [ACC(0)+8*g+j for j in range(8)], [TMP+j for j in range(8)], vC1, vC2, vONE)
        for j in range(4): a(f"v_cvt_pk_bf16_f32 {v(PK+4*g+j)}, {v(ACC(0)+8*g+2*j)}, {v(ACC(0)+8*g+2*j+1)}")
        a(f"buffer_store_dwordx4 {v(PK+4*g,4)}, {v(vT3)}, {s(sWS,4)}, {s(sBO)} offen offset:{1024*g} {K1F}")
    a.label("K1_PACK")
    stamp(a, 12)
    a(f"""
    s_lshl_b32 {s(sT)}, {s(sW_)}, 11
    s_add_u32 {s(sT)}, {s(sT)}, 0x{SC_3:x}
    v_add_u32 {v(vT0)}, {s(sT)}, {v(vT3)}
    s_waitcnt vmcnt(4)
    ds_write_b128 {v(vT0)}, {v(W3V,4)}
    ds_write_b128 {v(vT0)}, {v(W3V+4,4)} offset:1024
    s_lshr_b32 {s(sT)}, 1024, {s(sNAT)}
    v_add_u32 {v(vT0)}, {s(sT)}, {v(vPT)}
    v_xor_b32 {v(vT1)}, 64, {v(vPT)}
    v_xor_b32 {v(vT2)}, 64, {v(vT0)}
    s_waitcnt lgkmcnt(0)
    ds_read_b64_tr_b16 {v(W3V,2)}, {v(vPT)}
    ds_read_b64_tr_b16 {v(W3V+2,2)}, {v(vT0)}
    ds_read_b64_tr_b16 {v(W3V+4,2)}, {v(vT1)}
    ds_read_b64_tr_b16 {v(W3V+6,2)}, {v(vT2)}
    s_waitcnt lgkmcnt(0)
    buffer_store_dwordx4 {v(W3V,4)}, {v(vT3)}, {s(sWS,4)}, {s(sPD)} offen {K1F}
    buffer_store_dwordx4 {v(W3V+4,4)}, {v(vT3)}, {s(sWS,4)}, {s(sPD)} offen offset:1024 {K1F}
    """)
    if MERGE:
        a(f"""
        s_cmp_lg_u32 {s(sRDY)}, 0
        s_cbranch_scc1 K1_RDY
        """)
        srd(a, sDB, pDBG, 0, 256)
        a(f"s_mov_b32 {s(sT)}, 400000")
        a("s_mov_b64 exec, 1")
        a.label("K1_RDYL")
        a(f"""
        v_mov_b32 {v(TMP)}, 0
        v_mov_b32 {v(TMP+1)}, 0
        buffer_atomic_add {v(TMP)}, {v(TMP+1)}, {s(sDB,4)}, 0 offen sc0 sc1
        s_sub_u32 {s(sT)}, {s(sT)}, 1
        s_cmp_eq_u32 {s(sT)}, 0
        s_cbranch_scc1 K1_RDY
        s_waitcnt vmcnt(0)
        v_cmp_eq_u32 vcc, 0, {v(TMP)}
        s_cbranch_vccz K1_RDY
        s_sleep 8
        s_branch K1_RDYL
        """)
        a.label("K1_RDY")
        a(f"""
        s_mov_b64 exec, 1
        s_add_u32 {s(sT)}, {s(sHB)}, {C_HB}
        s_add_u32 {s(sT2)}, {s(sRB)}, {C_HR}
        s_cmp_eq_u32 {s(sTY)}, 3
        s_cselect_b32 {s(sT)}, {s(sT2)}, {s(sT)}
        s_lshl_b32 {s(sT)}, {s(sT)}, {FSH}
        s_add_u32 {s(sT)}, {s(sT)}, 0x{FLG:x}
        s_lshl_b32 {s(sT2)}, {s(sFH)}, 2
        s_add_u32 {s(sT2)}, {s(sT2)}, 0x{SC_N:x}
        v_mov_b32 {v(vT0)}, {s(sT2)}
        v_mov_b32 {v(vT1)}, 1
        v_mov_b32 {v(vTA)}, 0
        s_waitcnt vmcnt(2)
        ds_add_rtn_u32 {v(vT2)}, {v(vT0)}, {v(vT1)}
        s_waitcnt lgkmcnt(0)
        v_cmp_ne_u32 vcc, 3, {v(vT2)}
        s_cbranch_vccnz K1_NOSIG
        buffer_atomic_add {v(vT1)}, {v(vTA)}, {s(sWS,4)}, {s(sT)} offen sc1
        """)
        a.label("K1_NOSIG")
        a("s_mov_b64 exec, -1")
    a(f"""
    s_cmp_ge_u32 {s(sU)}, 88
    s_cbranch_scc1 K1_NOCS3
    v_mfma_f32_16x16x32_bf16 {v(TMP,4)}, {v(SEL,4)}, {v(W3V,4)}, 0
    v_mfma_f32_16x16x32_bf16 {v(TMP+4,4)}, {v(SEL,4)}, {v(W3V+4,4)}, 0
    s_lshl_b32 {s(sT)}, {s(sW_)}, 8
    s_add_u32 {s(sT)}, {s(sT)}, 0x{SC_3P:x}
    v_lshl_add_u32 {v(vT0)}, {v(vL)}, 2, {s(sT)}
    s_mov_b64 exec, 0xffff
    ds_write_b32 {v(vT0)}, {v(TMP)}
    ds_write_b32 {v(vT0)}, {v(TMP+1)} offset:64
    ds_write_b32 {v(vT0)}, {v(TMP+4)} offset:128
    ds_write_b32 {v(vT0)}, {v(TMP+5)} offset:192
    s_mov_b64 exec, -1
    """)
    a.label("K1_NOCS3")
    a(f"""
    v_mov_b32 {v(vT0)}, 0x{SC_N+8:x}
    v_mov_b32 {v(vT1)}, 1
    s_mov_b64 exec, 1
    s_waitcnt vmcnt(0) lgkmcnt(0)
    ds_add_rtn_u32 {v(vT2)}, {v(vT0)}, {v(vT1)}
    s_waitcnt lgkmcnt(0)
    v_cmp_ne_u32 vcc, 7, {v(vT2)}
    s_mov_b64 exec, -1
    s_cbranch_vccnz K1_FIN
    s_cmp_ge_u32 {s(sU)}, 88
    s_cbranch_scc1 K1_JSIG
    v_lshlrev_b32 {v(vT0)}, 2, {v(vL)}
    v_add_u32 {v(vT2)}, 0x{SC_3P:x}, {v(vT0)}
    """)
    for w in range(8): a(f"ds_read_b32 {v(TMP+w)}, {v(vT2)} offset:{256*w}")
    a(f"""
    s_mul_i32 {s(sT)}, {s(sKP)}, 6144
    s_lshl_b32 {s(sT2)}, {s(sCI)}, 8
    s_add_u32 {s(sT)}, {s(sT)}, {s(sT2)}
    s_add_u32 {s(sT)}, {s(sT)}, 0x{CS3P:x}
    s_waitcnt lgkmcnt(0)
    """)
    for w in range(1, 8): a(f"v_add_f32 {v(TMP)}, {v(TMP)}, {v(TMP+w)}")
    a(f"buffer_store_dword {v(TMP)}, {v(vT0)}, {s(sWS,4)}, {s(sT)} offen {K1F}")
    a("s_waitcnt vmcnt(0)")
    a.label("K1_JSIG")
    if MERGE:
        a(f"""
        v_mov_b32 {v(vT0)}, 0x{SC_N+8:x}
        v_mov_b32 {v(vT2)}, 9
        ds_write_b32 {v(vT0)}, {v(vT2)}
        s_cmp_ge_u32 {s(sU)}, 240
        s_cbranch_scc1 K1_FIN
        s_add_u32 {s(sT)}, {s(sJC)}, {s(sCI)}
        s_lshl_b32 {s(sT)}, {s(sT)}, {FSH}
        s_add_u32 {s(sT)}, {s(sT)}, 0x{FLG:x}
        v_mov_b32 {v(vT0)}, 0
        s_mov_b64 exec, 1
        buffer_atomic_add {v(vT1)}, {v(vT0)}, {s(sWS,4)}, {s(sT)} offen sc1
        s_mov_b64 exec, -1
        """)
    else:
        a(f"""
        s_cmp_lg_u32 s2, 0
        s_cbranch_scc1 K1_FIN
        v_mov_b32 {v(TMP)}, 0
        v_lshlrev_b32 {v(vT0)}, {FSH}, {v(vL)}
        s_mov_b32 {s(sT)}, 0x{FLG:x}
        buffer_store_dword {v(TMP)}, {v(vT0)}, {s(sWS,4)}, {s(sT)} offen
        """)
    a.label("K1_FIN")
    if PROF and not MERGE: a("s_waitcnt vmcnt(0)")
    stamp(a, 13)
    stamp_flush(a, 0, sW_, pWS)
    if not own: return
    a.label("K1_END")
    a("s_endpgm")
    lines, added = a.done()
    return kernel_text("k1_proj_kernel", lines, 256 if PROF else 204, 102)
```

```python
from common import *

SC_3, SC_S, SC_C, SC_3P = 0x20000, 0x24000, 0x24800, 0x24c00

K1F = os.environ.get('K1F', 'sc1')

PFC = int(os.environ.get('PFC', 0))
PFT = int(os.environ.get('PFT', 0))
PFN = int(os.environ.get('PFN', 1))
PFE = int(os.environ.get('PFE', 1))
NAME = 'parallel_sum__mha_block__mixer_s_mlp__prompt_kernel' if MERGE else 'k1_proj_kernel'
STATS = os.environ.get('STATS', 'dots')

def gen_k1(a=None):
    own = a is None
    if own: a = Asm()
    sX, sW, sWS = 8, 12, 16
    pX, pQKV, pW1, pWS = 20, 22, 24, 26
    sW_, sTQ, sFH, sRB, sCB, sHB, sTY, sSTR, sCOL = 28, 29, 30, 31, 32, 33, 34, 35, 36
    sXO, sWO, sM0, sT, sT2, sCH, sSC, sBS, sBO, s8S, s64S = 37, 38, 39, 40, 41, 42, 43, 44, 45, 46, 47
    sP, pA, sKP, sCI, sXB, sPS, sPD, sPR, sNAT = 48, 52, 60, 61, 62, 63, 3, 4, 5
    pWO, pDBG, sRDY, sU, sDB, sJC = 6, 98, 100, 101, 92, 54
    vL, vT0, vT1, vT2, vT3 = 1, 2, 3, 4, 5
    vX0, vX1, vWD = 6, 7, 8
    vI, vHI, vPA, vPT = 9, 10, 11, 12
    XA = lambda st, k: 16 + st*4 + k
    WA = lambda st, ft: 24 + st*3 + ft
    SEL = 32
    XF = lambda p: 36 + 16*p
    WF = lambda p, ft: 40 + 16*p + 4*ft
    ACC = lambda ft: 84 + 16*ft
    GR = 116
    CSV = 124; PK = 156; TMP = 172
    vMEAN, vR, vR1, vOFF, vTA, vTB, vSUM, vSQ = 180, 182, 184, 185, 186, 187, 188, 189
    vC1, vC2, vONE, W3V, vPF = 190, 192, 194, 196, 204
    a(f"""
    s_cmp_ge_u32 s2, 256
    s_cbranch_scc1 K1_END
    """)
    stamp_init(a); stamp(a, 0)
    if PFE: a(f"""
    s_getpc_b64 {s(sDB,2)}
    s_and_b32 {s(sT)}, s2, 0xf8
    v_lshrrev_b32 {v(vT0)}, 6, v0
    v_add_u32 {v(vT0)}, {s(sT)}, {v(vT0)}
    v_lshlrev_b32 {v(vT0)}, 7, {v(vT0)}
    v_min_u32 {v(vT0)}, K1_END-{NAME}-256, {v(vT0)}
    s_mov_b64 exec, 1
    global_load_dword {v(vPF)}, {v(vT0)}, {s(sDB,2)}
    s_mov_b64 exec, -1
    """)
    a(f"""
    s_load_dwordx4 {s(pX,4)}, s[0:1], {A_X}
    s_load_dwordx2 {s(pW1,2)}, s[0:1], {B_W1}
    s_load_dwordx2 {s(pWS,2)}, s[0:1], {P_WS}
    s_load_dwordx2 {s(pWO,2)}, s[0:1], {A_WO}
    s_load_dwordx2 {s(pA,2)}, s[0:1], {B_W2}
    s_load_dwordx4 {s(pA+4,4)}, s[0:1], {B_W3}
    s_load_dwordx2 {s(pDBG,2)}, s[0:1], {P_DBG}
    v_lshrrev_b32 {v(vT0)}, 6, v0
    v_and_b32 {v(vL)}, 63, v0
    v_readfirstlane_b32 {s(sW_)}, {v(vT0)}
    s_and_b32 {s(sT)}, s2, 3
    s_lshl_b32 {s(sRB)}, {s(sT)}, 2
    s_bfe_u32 {s(sT)}, s2, 0x20003
    s_add_u32 {s(sRB)}, {s(sRB)}, {s(sT)}
    s_lshl_b32 {s(sCH)}, {s(sT)}, 1
    s_bfe_u32 {s(sT)}, s2, 0x10002
    s_lshl_b32 {s(sCB)}, {s(sT)}, 3
    s_lshr_b32 {s(sT2)}, s2, 5
    s_add_u32 {s(sCB)}, {s(sCB)}, {s(sT2)}
    s_add_u32 {s(sCH)}, {s(sCH)}, {s(sT2)}
    s_and_b32 {s(sCH)}, {s(sCH)}, 7
    s_and_b32 {s(sTQ)}, {s(sW_)}, 3
    s_lshr_b32 {s(sFH)}, {s(sW_)}, 2
    s_mul_i32 {s(sT)}, {s(sFH)}, 24
    s_add_u32 {s(sHB)}, {s(sT)}, {s(sCB)}
    s_lshl_b32 {s(sT)}, {s(sCB)}, 1
    s_add_u32 {s(sT)}, {s(sT)}, {s(sFH)}
    s_sub_u32 {s(sT)}, {s(sT)}, 8
    s_cmp_lt_u32 {s(sCB)}, 8
    s_cselect_b32 {s(sHB)}, {s(sHB)}, {s(sT)}
    s_lshr_b32 {s(sTY)}, {s(sHB)}, 3
    s_lshl_b32 {s(sCOL)}, {s(sHB)}, 7
    s_sub_u32 {s(sT)}, {s(sCOL)}, 3072
    s_cmp_eq_u32 {s(sTY)}, 3
    s_cselect_b32 {s(sCOL)}, {s(sT)}, {s(sCOL)}
    s_mov_b32 {s(sSTR)}, 3072
    s_cmov_b32 {s(sSTR)}, 1024
    s_lshl_b32 {s(s8S)}, {s(sSTR)}, 3
    s_lshl_b32 {s(s64S)}, {s(sSTR)}, 6
    v_lshrrev_b32 {v(vT0)}, 3, {v(vL)}
    v_lshrrev_b32 {v(vT1)}, 4, {v(vL)}
    v_and_b32 {v(vT2)}, 7, {v(vL)}
    v_xor_b32 {v(vT3)}, {v(vT2)}, {v(vT1)}
    v_lshlrev_b32 {v(vT3)}, 4, {v(vT3)}
    s_lshl_b32 {s(sT)}, {s(sW_)}, 4
    v_add_u32 {v(vX0)}, {s(sT)}, {v(vT0)}
    v_lshl_add_u32 {v(vX0)}, {v(vX0)}, 10, {v(vT3)}
    v_xor_b32 {v(vX1)}, 64, {v(vX0)}
    v_add_u32 {v(vX1)}, 0x2000, {v(vX1)}
    v_and_b32 {v(vT1)}, 1, {v(vT1)}
    v_lshlrev_b32 {v(vT1)}, 2, {v(vT1)}
    v_xor_b32 {v(vT1)}, {v(vT1)}, {v(vT2)}
    v_lshlrev_b32 {v(vT1)}, 4, {v(vT1)}
    s_lshl_b32 {s(sT)}, {s(sTQ)}, 4
    v_add_u32 {v(vT3)}, {s(sT)}, {v(vT0)}
    v_mul_lo_u32 {v(vWD)}, {v(vT3)}, {s(sSTR)}
    v_add3_u32 {v(vWD)}, {v(vWD)}, {v(vT1)}, {s(sCOL)}
    s_lshl_b32 {s(sXB)}, {s(sRB)}, 17
    s_lshl_b32 {s(sM0)}, {s(sW_)}, 11
    s_waitcnt lgkmcnt(0)
    """)
    srd(a, sX, pX, 0, 0x200000)
    a(f"""
    s_cmp_eq_u32 {s(sTY)}, 3
    s_cselect_b32 {s(sW)}, {s(pW1)}, {s(pQKV)}
    s_cselect_b32 {s(sW+1)}, {s(pW1+1)}, {s(pQKV+1)}
    s_lshl_b32 {s(sW+2)}, {s(sSTR)}, 9
    s_mov_b32 {s(sW+3)}, 0x20000
    """)
    def dma(vm, c, i):
        sl = (c % 4)*32768
        if i == 0:
            a(f"""
            s_lshl_b32 {s(sXO)}, {s(sCH)}, 7
            s_add_u32 m0, {s(sM0)}, {sl}
            s_add_u32 {s(sXO)}, {s(sXO)}, {s(sXB)}
            """)
            vm.op(f"buffer_load_dwordx4 {v(vX0)}, {s(sX,4)}, {s(sXO)} offen lds", c)
        elif i == 1:
            a(f"s_add_u32 m0, {s(sM0)}, {sl+16384}")
            a(f"s_mul_i32 {s(sWO)}, {s(sCH)}, {s(s64S)}")
            vm.op(f"buffer_load_dwordx4 {v(vWD)}, {s(sW,4)}, {s(sWO)} offen lds", c)
        elif i == 2:
            a(f"s_add_u32 m0, {s(sM0)}, {sl+1024}")
            a(f"s_add_u32 {s(sCH)}, {s(sCH)}, 1")
            vm.op(f"buffer_load_dwordx4 {v(vX1)}, {s(sX,4)}, {s(sXO)} offen lds", c)
        else:
            a(f"s_add_u32 m0, {s(sM0)}, {sl+17408}")
            a(f"s_add_u32 {s(sWO)}, {s(sWO)}, {s(s8S)}")
            vm.op(f"buffer_load_dwordx4 {v(vWD)}, {s(sW,4)}, {s(sWO)} offen lds", c)
            a(f"s_and_b32 {s(sCH)}, {s(sCH)}, 7")
    vm0 = VM(a)
    stamp(a, 1)
    for i in range(4): dma(vm0, 0, i)
    srd(a, sWS, pWS, 0, WS_USED)
    a(f"""
    s_lshr_b32 {s(sT)}, s2, 3
    s_lshl_b32 {s(sT)}, {s(sT)}, 2
    s_and_b32 {s(sT2)}, s2, 3
    s_add_u32 {s(sT)}, {s(sT)}, {s(sT2)}
    s_add_u32 {s(sU)}, {s(sT)}, 128
    s_cmp_lt_u32 {s(sT)}, 88
    s_cselect_b32 {s(sU)}, {s(sT)}, {s(sU)}
    s_add_u32 {s(sT)}, {s(sT)}, 88
    s_cmp_ge_u32 {s(sCB)}, 8
    s_cselect_b32 {s(sU)}, {s(sT)}, {s(sU)}
    s_mul_i32 {s(sKP)}, {s(sU)}, 2979
    s_lshr_b32 {s(sKP)}, {s(sKP)}, 16
    s_mul_i32 {s(sT)}, {s(sKP)}, 22
    s_sub_u32 {s(sCI)}, {s(sU)}, {s(sT)}
    s_mov_b64 {s(sP,2)}, {s(pA+4,2)}
    s_mov_b32 {s(sP+2)}, {512*2752}
    s_mov_b32 {s(sP+3)}, 0x20000
    s_mov_b32 {s(sPR)}, 2752
    s_mov_b32 {s(sPD)}, 0x{W3F:x}
    s_mov_b32 {s(sJC)}, {C_W3}
    s_mov_b32 {s(sT2)}, 44
    s_mov_b32 {s(sNAT)}, 0
    s_cmp_lt_u32 {s(sU)}, 88
    s_cbranch_scc1 K1_JOB
    s_and_b32 {s(sCI)}, {s(sU)}, 7
    s_mov_b32 {s(sPR)}, 1024
    s_mov_b32 {s(sT2)}, 16
    s_mov_b32 {s(sP+2)}, 0x80000
    s_sub_u32 {s(sKP)}, {s(sU)}, 88
    s_mov_b64 {s(sP,2)}, {s(pA,2)}
    s_mov_b32 {s(sPD)}, 0x{W2F:x}
    s_mov_b32 {s(sJC)}, {C_W2}
    s_cmp_lt_u32 {s(sU)}, 120
    s_cbranch_scc1 K1_JOBS
    s_sub_u32 {s(sKP)}, {s(sU)}, 120
    s_mov_b64 {s(sP,2)}, {s(pWO,2)}
    s_mov_b32 {s(sPD)}, 0x{WOF:x}
    s_mov_b32 {s(sJC)}, {C_WO}
    s_mov_b32 {s(sNAT)}, 1
    s_cmp_lt_u32 {s(sU)}, 152
    s_cbranch_scc1 K1_JOBS
    s_sub_u32 {s(sKP)}, {s(sU)}, 152
    s_mov_b64 {s(sP,2)}, {s(pA+6,2)}
    s_mov_b32 {s(sP+2)}, {1376*1024}
    s_mov_b32 {s(sPD)}, 0x{W4F:x}
    s_mov_b32 {s(sJC)}, {C_W4}
    s_mov_b32 {s(sNAT)}, 0
    s_cmp_lt_u32 {s(sU)}, 240
    s_cbranch_scc1 K1_JOBS
    s_mov_b32 {s(sPD)}, 0x40000000
    """)
    a.label("K1_JOBS")
    a(f"s_lshr_b32 {s(sKP)}, {s(sKP)}, 3")
    a.label("K1_JOB")
    a(f"""
    s_lshl_b32 {s(sT)}, {s(sKP)}, 3
    s_add_u32 {s(sT)}, {s(sT)}, {s(sW_)}
    s_mul_i32 {s(sT2)}, {s(sT2)}, {s(sT)}
    s_lshl_b32 {s(sPS)}, {s(sCI)}, 1
    s_add_u32 {s(sT2)}, {s(sT2)}, {s(sPS)}
    s_lshl_b32 {s(sT2)}, {s(sT2)}, 10
    s_add_u32 {s(sPD)}, {s(sPD)}, {s(sT2)}
    s_mul_i32 {s(sT)}, {s(sT)}, {s(sPR)}
    s_lshl_b32 {s(sT)}, {s(sT)}, 4
    s_lshl_b32 {s(sPS)}, {s(sCI)}, 7
    s_add_u32 {s(sPS)}, {s(sPS)}, {s(sT)}
    v_mul_lo_u32 {v(vPA)}, {v(vT0)}, {s(sPR)}
    v_add_u32 {v(vPA)}, {v(vPA)}, {v(vT1)}
    s_lshl_b32 {s(sPR)}, {s(sPR)}, 3
    s_add_u32 {s(sPR)}, {s(sPR)}, {s(sPS)}
    """)
    a(f"""
    v_mov_b32 {v(TMP)}, 0
    v_mov_b32 {v(TMP+1)}, 0
    v_mov_b32 {v(vTA)}, 0x{SC_N:x}
    ds_write_b64 {v(vTA)}, {v(TMP,2)}
    ds_write_b32 {v(vTA)}, {v(TMP)} offset:8
    """)
    if MERGE:
        a(f"""
        s_cmp_lg_u32 s2, 0
        s_cbranch_scc1 K1_NOINIT
        s_cmp_lg_u32 {s(sW_)}, 7
        s_cbranch_scc1 K1_NOINIT
        v_lshlrev_b32 {v(vTA)}, {FSH}, {v(vL)}
        s_mov_b32 {s(sT)}, 0x{cnt(0):x}
        s_mov_b32 {s(sT2)}, 0x{cnt(64):x}
        buffer_store_dword {v(TMP)}, {v(vTA)}, {s(sWS,4)}, {s(sT)} offen sc1
        buffer_store_dword {v(TMP)}, {v(vTA)}, {s(sWS,4)}, {s(sT2)} offen sc1
        s_mov_b32 {s(sT)}, 0x{cnt(128):x}
        s_mov_b32 {s(sT2)}, 0x{cnt(192):x}
        buffer_store_dword {v(TMP)}, {v(vTA)}, {s(sWS,4)}, {s(sT)} offen sc1
        buffer_store_dword {v(TMP)}, {v(vTA)}, {s(sWS,4)}, {s(sT2)} offen sc1
        """)
        a.label("K1_NOINIT")
        a("s_waitcnt lgkmcnt(0)")
    a("s_barrier")
    for i in range(4): dma(vm0, 1, i)
    a(f"""
    v_and_b32 {v(vI)}, 31, {v(vL)}
    v_lshrrev_b32 {v(vHI)}, 5, {v(vL)}
    s_lshl_b32 {s(sT)}, {s(sTQ)}, 5
    v_add_u32 {v(vT0)}, {s(sT)}, {v(vI)}
    v_lshlrev_b32 {v(vT0)}, 7, {v(vT0)}
    v_bfe_u32 {v(vT1)}, {v(vI)}, 1, 3
    v_xor_b32 {v(vT1)}, {v(vT1)}, {v(vHI)}
    v_bfe_u32 {v(vT2)}, {v(vL)}, 2, 2
    v_lshlrev_b32 {v(vT3)}, 7, {v(vT2)}
    v_lshrrev_b32 {v(vT2)}, 1, {v(vT2)}
    v_lshl_add_u32 {v(vT3)}, {v(vT2)}, 6, {v(vT3)}
    v_bfe_u32 {v(vT2)}, {v(vL)}, 4, 1
    v_lshl_add_u32 {v(vT3)}, {v(vT2)}, 5, {v(vT3)}
    v_and_b32 {v(vTB)}, 15, {v(vL)}
    v_cmp_eq_u32 vcc, {v(vTB)}, {v(vT2)}
    v_and_b32 {v(vT2)}, 3, {v(vL)}
    v_lshl_add_u32 {v(vT3)}, {v(vT2)}, 3, {v(vT3)}
    v_lshl_add_u32 {v(vTB)}, {v(vHI)}, 10, {v(vT3)}
    v_mov_b32 {v(vT2)}, 0x{ONES:x}
    v_cndmask_b32 {v(SEL)}, 0, {v(vT2)}, vcc
    s_add_u32 {s(sT)}, {s(sNAT)}, 9
    v_lshlrev_b32 {v(vPT)}, {s(sT)}, {v(vHI)}
    s_lshl_b32 {s(sT)}, {s(sW_)}, 11
    s_add_u32 {s(sT)}, {s(sT)}, 0x{SC_3:x}
    v_add3_u32 {v(vPT)}, {v(vPT)}, {v(vT3)}, {s(sT)}
    s_lshl_b32 {s(sT)}, {s(sFH)}, 13
    s_add_u32 {s(sT)}, {s(sT)}, 16384
    v_add_u32 {v(WA(0,0))}, {s(sT)}, {v(vTB)}
    v_xor_b32 {v(WA(0,1))}, 64, {v(WA(0,0))}
    s_and_b32 {s(sT)}, {s(sTQ)}, 1
    s_lshl_b32 {s(sT)}, {s(sT)}, 13
    s_add_u32 {s(sT)}, {s(sT)}, 16384
    s_lshr_b32 {s(sT2)}, {s(sTQ)}, 1
    s_lshl_b32 {s(sT2)}, {s(sT2)}, 6
    v_xor_b32 {v(WA(0,2))}, {s(sT2)}, {v(vTB)}
    v_add_u32 {v(WA(0,2))}, {s(sT)}, {v(WA(0,2))}
    v_mov_b32 {v(SEL+1)}, {v(SEL)}
    v_mov_b32 {v(SEL+2)}, {v(SEL)}
    v_mov_b32 {v(SEL+3)}, {v(SEL)}
    v_mov_b32 {v(GR)}, 0
    v_mov_b32 {v(GR+1)}, 0
    v_mov_b32 {v(GR+2)}, 0
    v_mov_b32 {v(GR+3)}, 0
    v_mov_b32 {v(vONE)}, 0x{ONES:x}
    """)
    for k in range(4):
        a(f"v_xor_b32 {v(vT2)}, {2*k}, {v(vT1)}")
        a(f"v_lshl_add_u32 {v(XA(0,k))}, {v(vT2)}, 4, {v(vT0)}")
    for k in range(4): a(f"v_add_u32 {v(XA(1,k))}, 65536, {v(XA(0,k))}")
    for ft in range(3): a(f"v_add_u32 {v(WA(1,ft))}, 65536, {v(WA(0,ft))}")
    stamp(a, 2)
    def warm(vm):
        a(f"""
        s_lshr_b32 {s(sT)}, s2, 3
        s_cmp_lg_u32 {s(sW_)}, 4
        s_cbranch_scc1 K1_WARM1
        """)
        if PFC: a(f"""
        s_getpc_b64 {s(sDB,2)}
        s_and_b32 {s(sDB)}, {s(sDB)}, 0xffffff80
        s_lshl_b32 {s(sT)}, {s(sT)}, 10
        v_lshl_add_u32 {v(vT0)}, {v(vL)}, 4, {s(sT)}
        v_min_u32 {v(vT0)}, K1_END-K1_B1-1024, {v(vT0)}
        global_load_dword {v(vPF)}, {v(vT0)}, {s(sDB,2)}
        """)
        a("s_branch K1_WARM2")
        a.label("K1_WARM1")
        if PFT:
            a(f"""
            s_cmp_lg_u32 {s(sW_)}, 5
            s_cbranch_scc1 K1_WARM2
            """)
            if PFT == 1: a(f"""
            v_lshl_add_u32 {v(vT0)}, {v(vL)}, 5, {s(sT)}
            v_lshlrev_b32 {v(vT0)}, 16, {v(vT0)}
            s_mov_b64 exec, 0x3fff
            """)
            else: a(f"""
            v_lshlrev_b32 {v(vT0)}, 21, {v(vL)}
            s_mov_b64 exec, 0x3fff
            """)
            a(f"""
            buffer_load_dword {v(vPF)}, {v(vT0)}, {s(sWS,4)}, 0 offen
            s_mov_b64 exec, -1
            """)
        a.label("K1_WARM2")
    def body(fh):
        vm = VM(a); vm.q = list(vm0.q)
        nr = 5 + 2*fh
        def reads(n):
            c, k = divmod(n, 4); sl = c % 4; st = sl >> 1; o = (sl & 1)*32768; p = n % 3
            a(f"ds_read_b128 {v(XF(p),4)}, {v(XA(st,k))} offset:{o}")
            for ft in range(2+fh):
                a(f"ds_read_b64_tr_b16 {v(WF(p,ft),2)}, {v(WA(st,ft))} offset:{o+k*2048}")
                a(f"ds_read_b64_tr_b16 {v(WF(p,ft)+2,2)}, {v(WA(st,ft))} offset:{o+k*2048+512}")
        def compute(n):
            p = n % 3
            z = lambda r, w: "0" if n == 0 else v(r, w)
            mine = {"valu": fh == 0, "valu2": (n & 1) == fh, "valu31": (n % 4 == 3) == (fh == 1)}.get(STATS, False)
            if STATS == "dots" and fh == 0:
                for j in range(4):
                    a(f"v_dot2_f32_bf16 {v(GR+2)}, {v(XF(p)+j)}, {v(XF(p)+j)}, {v(GR+2)}")
                    a(f"v_dot2_f32_bf16 {v(GR)}, {v(XF(p)+j)}, {v(vONE)}, {v(GR)}")
            for ft in (0, 1):
                a(f"v_mfma_f32_32x32x16_bf16 {v(ACC(ft),16)}, {v(WF(p,ft),4)}, {v(XF(p),4)}, {z(ACC(ft),16)}")
                if mine:
                    for j in (2*ft, 2*ft+1):
                        a(f"v_lshlrev_b32 {v(TMP+2*j)}, 16, {v(XF(p)+j)}")
                        a(f"v_and_b32 {v(TMP+2*j+1)}, 0xffff0000, {v(XF(p)+j)}")
                    for j in range(4*ft, 4*ft+4):
                        a(f"v_add_f32 {v(GR+(j&1))}, {v(GR+(j&1))}, {v(TMP+j)}")
                        a(f"v_fmac_f32 {v(GR+2+(j&1))}, {v(TMP+j)}, {v(TMP+j)}")
            if fh == 1 and STATS != "none":
                a(f"v_mfma_f32_16x16x32_bf16 {v(GR+4,4)}, {v(SEL,4)}, {v(WF(p,2),4)}, {z(GR+4,4)}")
        sched = {0: [(2, 0), (2, 1)], 1: [(2, 2), (2, 3)]}
        for c in range(5):
            for i in range(4): sched[4*c+2+i] = [(c+3, i)]
        vm.wait(0)
        a("s_barrier")
        if MERGE and fh == 1:
            a(f"""
            s_xor_b32 {s(sT)}, {s(sW_)}, 7
            s_or_b32 {s(sT)}, {s(sT)}, s2
            s_cbranch_scc1 K1_NOFLAG
            """)
            srd(a, sDB, pDBG, 0, 256)
            a(f"""
            v_mov_b32 {v(TMP+1)}, 1
            s_mov_b64 exec, 1
            buffer_store_dword {v(TMP+1)}, {v(TMP)}, {s(sDB,4)}, 0 offen sc1
            s_mov_b64 exec, -1
            """)
            a.label("K1_NOFLAG")
        stamp(a, 3)
        reads(0); reads(1)
        extra = 0
        for n in range(32):
            c, k = divmod(n, 4)
            if k == 2 and c < 7:
                vm.wait(c+1)
                a("s_barrier")
                stamp(a, 4+c)
            if n < 30: reads(n+2)
            a(f"s_waitcnt lgkmcnt({min(15, nr*min(2, 31-n))})")
            compute(n)
            for cc, i in sched.get(n, []): dma(vm, cc, i)
            if n == PFN and fh == 1 and (PFC or PFT): warm(vm)
            if n == 24 and MERGE: a(f"s_load_dword {s(sRDY)}, {s(pDBG,2)}, 0")
            if n == 27 and MERGE:
                a(f"""
                v_lshlrev_b32 {v(vT0)}, 2, v0
                v_mov_b32 {v(vT1)}, 0
                ds_write_b32 {v(vT0)}, {v(vT1)} offset:{16*2080}
                ds_write_b32 {v(vT0)}, {v(vT1)} offset:{16*2080+256}
                """)
            if n == 26:
                vm.op(f"buffer_load_dwordx4 {v(W3V,4)}, {v(vPA)}, {s(sP,4)}, {s(sPS)} offen", "p")
                vm.op(f"buffer_load_dwordx4 {v(W3V+4,4)}, {v(vPA)}, {s(sP,4)}, {s(sPR)} offen", "p")
        stamp(a, 11)
        a(f"v_add_f32 {v(GR)}, {v(GR)}, {v(GR+1)}")
        a(f"v_add_f32 {v(GR+1)}, {v(GR+2)}, {v(GR+3)}")
        halves_sum(a, GR, vT1); halves_sum(a, GR+1, vT2)
        a(f"""
        s_lshl_b32 {s(sT)}, {s(sTQ)}, 9
        s_add_u32 {s(sT)}, {s(sT)}, 0x{SC_S+8*fh:x}
        v_lshl_add_u32 {v(vT0)}, {v(vI)}, 4, {s(sT)}
        ds_write_b64 {v(vT0)}, {v(GR,2)}
        """)
        if fh == 0: pass
        else:
            a(f"""
            s_and_b32 {s(sT)}, {s(sTQ)}, 1
            s_lshl_b32 {s(sT)}, {s(sT)}, 8
            s_lshr_b32 {s(sT2)}, {s(sTQ)}, 1
            s_lshl_b32 {s(sT2)}, {s(sT2)}, 7
            s_add_u32 {s(sT)}, {s(sT)}, {s(sT2)}
            s_add_u32 {s(sT)}, {s(sT)}, 0x{SC_C:x}
            v_lshl_add_u32 {v(vT1)}, {v(vL)}, 2, {s(sT)}
            s_mov_b64 exec, 0xffff
            ds_write_b32 {v(vT1)}, {v(GR+4)}
            ds_write_b32 {v(vT1)}, {v(GR+5)} offset:64
            s_mov_b64 exec, -1
            """)
    a(f"""
    s_cmp_eq_u32 {s(sFH)}, 1
    s_cbranch_scc1 K1_B1
    """)
    body(0)
    a("s_branch K1_JOIN")
    a.label("K1_B1")
    body(1)
    a.label("K1_JOIN")
    a(f"""
    s_lshl_b32 {s(sT)}, {s(sTQ)}, 9
    s_add_u32 {s(sT)}, {s(sT)}, 0x{SC_S:x}
    v_lshl_add_u32 {v(vT1)}, {v(vI)}, 4, {s(sT)}
    s_lshl_b32 {s(sT)}, {s(sFH)}, 8
    s_add_u32 {s(sT)}, {s(sT)}, 0x{SC_C:x}
    v_lshl_add_u32 {v(vT2)}, {v(vHI)}, 4, {s(sT)}
    s_waitcnt lgkmcnt(0)
    s_barrier
    ds_read_b128 {v(TMP,4)}, {v(vT1)}
    """)
    for ft in (0, 1):
        for q in range(4): a(f"ds_read_b128 {v(CSV+16*ft+4*q,4)}, {v(vT2)} offset:{128*ft+32*q}")
    a(f"""
    s_cmp_eq_u32 {s(sTY)}, 0
    s_cselect_b32 {s(sSC)}, {fl(0.25*LOG2E)}, 1.0
    s_lshl_b32 {s(sT2)}, {s(sRB)}, 2
    s_add_u32 {s(sT2)}, {s(sT2)}, {s(sTQ)}
    v_mov_b32 {v(vTB)}, {fl(1/512)}
    s_waitcnt lgkmcnt(8)
    v_add_f32 {v(vSUM)}, {v(TMP)}, {v(TMP+2)}
    v_add_f32 {v(vSQ)}, {v(TMP+1)}, {v(TMP+3)}
    v_mul_f32 {v(vMEAN)}, {v(vTB)}, {v(vSUM)}
    v_mul_f32 {v(vTA)}, {v(vMEAN)}, {v(vMEAN)}
    v_fma_f32 {v(vTA)}, {v(vSQ)}, {v(vTB)}, -{v(vTA)}
    v_max_f32 {v(vTA)}, 0, {v(vTA)}
    v_add_f32 {v(vTB)}, {fl(EPS)}, {v(vTA)}
    v_rsq_f32 {v(vR1)}, {v(vTB)}
    s_cmp_lg_u32 {s(sTY)}, 3
    v_mul_f32 {v(vR)}, {s(sSC)}, {v(vR1)}
    s_cbranch_scc1 K1_NOR2
    v_mul_f32 {v(vTB)}, {v(vR1)}, {v(vR1)}
    v_fmaak_f32 {v(vTB)}, {v(vTB)}, {v(vTA)}, {fl(EPS)}
    v_rsq_f32 {v(vTB)}, {v(vTB)}
    s_nop 0
    v_mul_f32 {v(vR)}, {v(vR1)}, {v(vTB)}
    """)
    gelu_consts(a, vR, vC1, vC2, vONE)
    a.label("K1_NOR2")
    a(f"""
    s_cmp_lg_u32 {s(sHB)}, 24
    s_cbranch_scc1 K1_NOST
    s_lshl_b32 {s(sT)}, {s(sT2)}, 8
    s_add_u32 {s(sT)}, {s(sT)}, 0x{ST1:x}
    v_lshlrev_b32 {v(vTA)}, 3, {v(vI)}
    v_mov_b32 {v(PK)}, {v(vMEAN)}
    v_mov_b32 {v(PK+1)}, {v(vR1)}
    buffer_store_dwordx2 {v(PK,2)}, {v(vTA)}, {s(sWS,4)}, {s(sT)} offen {K1F}
    """)
    a.label("K1_NOST")
    a(f"""
    v_sub_f32 {v(vMEAN)}, 0, {v(vMEAN)}
    v_mov_b32 {v(vR+1)}, {v(vR)}
    v_mov_b32 {v(vMEAN+1)}, {v(vMEAN)}
    s_waitcnt lgkmcnt(0)
    """)
    for j in range(0, 32, 2): a(f"v_pk_fma_f32 {v(ACC(0)+j,2)}, {v(CSV+j,2)}, {v(vMEAN,2)}, {v(ACC(0)+j,2)}")
    a(f"""
    v_lshlrev_b32 {v(vT3)}, 4, {v(vL)}
    s_and_b32 {s(sT)}, {s(sHB)}, 7
    s_cmp_eq_u32 {s(sTY)}, 3
    s_cbranch_scc1 K1_H
    """)
    for j in range(0, 32, 2): a(f"v_pk_mul_f32 {v(ACC(0)+j,2)}, {v(ACC(0)+j,2)}, {v(vR,2)}")
    for j in range(16): a(f"v_cvt_pk_bf16_f32 {v(PK+j)}, {v(ACC(0)+2*j)}, {v(ACC(0)+2*j+1)}")
    a(f"""
    s_cmp_eq_u32 {s(sTY)}, 0
    s_cbranch_scc1 K1_Q
    s_mov_b32 {s(sBS)}, 0x20000
    s_lshl_b32 {s(sBO)}, {s(sT)}, 19
    s_lshl_b32 {s(sT)}, {s(sT2)}, 11
    s_add_u32 {s(sBO)}, {s(sBO)}, {s(sT)}
    s_add_u32 {s(sBO)}, {s(sBO)}, 0x{KVF:x}
    s_cmp_eq_u32 {s(sTY)}, 2
    s_cbranch_scc1 K1_V
    v_and_b32 {v(vOFF)}, 0x33, {v(vL)}
    v_bfe_u32 {v(vTA)}, {v(vL)}, 2, 1
    v_lshl_add_u32 {v(vOFF)}, {v(vTA)}, 3, {v(vOFF)}
    v_bfe_u32 {v(vTA)}, {v(vL)}, 3, 1
    v_lshl_add_u32 {v(vOFF)}, {v(vTA)}, 2, {v(vOFF)}
    v_lshlrev_b32 {v(vOFF)}, 4, {v(vOFF)}
    s_branch K1_STORE
    """)
    a.label("K1_V")
    a(f"""
    s_add_u32 {s(sBO)}, {s(sBO)}, 1024
    s_lshl_b32 {s(sT)}, {s(sW_)}, 12
    s_add_u32 {s(sT)}, {s(sT)}, 0x10000
    v_lshlrev_b32 {v(vTA)}, 5, {v(vI)}
    v_lshl_add_u32 {v(vTA)}, {v(vHI)}, 4, {v(vTA)}
    v_add_u32 {v(vTA)}, {s(sT)}, {v(vTA)}
    """)
    for b in range(4): a(f"ds_write_b128 {v(vTA)}, {v(PK+4*b,4)} offset:{1024*b}")
    a(f"""
    v_bfe_u32 {v(vTB)}, {v(vL)}, 4, 1
    v_lshlrev_b32 {v(vOFF)}, 9, {v(vTB)}
    v_lshl_add_u32 {v(vTA)}, {v(vHI)}, 7, {v(vOFF)}
    v_and_b32 {v(vTB)}, 15, {v(vL)}
    v_lshl_add_u32 {v(vTA)}, {v(vTB)}, 3, {v(vTA)}
    v_add_u32 {v(vTA)}, {s(sT)}, {v(vTA)}
    v_lshl_add_u32 {v(vOFF)}, {v(vHI)}, 8, {v(vOFF)}
    v_lshl_add_u32 {v(vOFF)}, {v(vTB)}, 4, {v(vOFF)}
    s_waitcnt lgkmcnt(0)
    """)
    for b in range(4):
        a(f"ds_read_b64_tr_b16 {v(PK+4*b,2)}, {v(vTA)} offset:{1024*b}")
        a(f"ds_read_b64_tr_b16 {v(PK+4*b+2,2)}, {v(vTA)} offset:{1024*b+256}")
    a("s_waitcnt lgkmcnt(0)")
    a("s_branch K1_STORE")
    a.label("K1_Q")
    a(f"""
    s_mov_b32 {s(sBS)}, 0x10000
    s_lshl_b32 {s(sBO)}, {s(sT)}, 18
    s_lshl_b32 {s(sT)}, {s(sT2)}, 10
    s_add_u32 {s(sBO)}, {s(sBO)}, {s(sT)}
    v_mov_b32 {v(vOFF)}, {v(vT3)}
    """)
    a.label("K1_STORE")
    for b in range(4):
        a(f"buffer_store_dwordx4 {v(PK+4*b,4)}, {v(vOFF)}, {s(sWS,4)}, {s(sBO)} offen {K1F}")
        if b < 3: a(f"s_add_u32 {s(sBO)}, {s(sBO)}, {s(sBS)}")
    a("s_branch K1_PACK")
    a.label("K1_H")
    a(f"""
    s_lshl_b32 {s(sBO)}, {s(sT)}, 12
    s_lshl_b32 {s(sT)}, {s(sT2)}, 15
    s_add_u32 {s(sBO)}, {s(sBO)}, {s(sT)}
    s_add_u32 {s(sBO)}, {s(sBO)}, 0x{HF:x}
    """)
    for g in range(4):
        gelu_scaled(a, [ACC(0)+8*g+j for j in range(8)], [TMP+j for j in range(8)], vC1, vC2, vONE)
        for j in range(4): a(f"v_cvt_pk_bf16_f32 {v(PK+4*g+j)}, {v(ACC(0)+8*g+2*j)}, {v(ACC(0)+8*g+2*j+1)}")
        a(f"buffer_store_dwordx4 {v(PK+4*g,4)}, {v(vT3)}, {s(sWS,4)}, {s(sBO)} offen offset:{1024*g} {K1F}")
    a.label("K1_PACK")
    stamp(a, 12)
    a(f"""
    s_lshl_b32 {s(sT)}, {s(sW_)}, 11
    s_add_u32 {s(sT)}, {s(sT)}, 0x{SC_3:x}
    v_add_u32 {v(vT0)}, {s(sT)}, {v(vT3)}
    s_waitcnt vmcnt(4)
    ds_write_b128 {v(vT0)}, {v(W3V,4)}
    ds_write_b128 {v(vT0)}, {v(W3V+4,4)} offset:1024
    s_lshr_b32 {s(sT)}, 1024, {s(sNAT)}
    v_add_u32 {v(vT0)}, {s(sT)}, {v(vPT)}
    v_xor_b32 {v(vT1)}, 64, {v(vPT)}
    v_xor_b32 {v(vT2)}, 64, {v(vT0)}
    s_waitcnt lgkmcnt(0)
    ds_read_b64_tr_b16 {v(W3V,2)}, {v(vPT)}
    ds_read_b64_tr_b16 {v(W3V+2,2)}, {v(vT0)}
    ds_read_b64_tr_b16 {v(W3V+4,2)}, {v(vT1)}
    ds_read_b64_tr_b16 {v(W3V+6,2)}, {v(vT2)}
    s_waitcnt lgkmcnt(0)
    buffer_store_dwordx4 {v(W3V,4)}, {v(vT3)}, {s(sWS,4)}, {s(sPD)} offen {K1F}
    buffer_store_dwordx4 {v(W3V+4,4)}, {v(vT3)}, {s(sWS,4)}, {s(sPD)} offen offset:1024 {K1F}
    """)
    if MERGE:
        a(f"""
        s_cmp_lg_u32 {s(sRDY)}, 0
        s_cbranch_scc1 K1_RDY
        """)
        srd(a, sDB, pDBG, 0, 256)
        a(f"s_mov_b32 {s(sT)}, 400000")
        a("s_mov_b64 exec, 1")
        a.label("K1_RDYL")
        a(f"""
        v_mov_b32 {v(TMP)}, 0
        v_mov_b32 {v(TMP+1)}, 0
        buffer_atomic_add {v(TMP)}, {v(TMP+1)}, {s(sDB,4)}, 0 offen sc0 sc1
        s_sub_u32 {s(sT)}, {s(sT)}, 1
        s_cmp_eq_u32 {s(sT)}, 0
        s_cbranch_scc1 K1_RDY
        s_waitcnt vmcnt(0)
        v_cmp_eq_u32 vcc, 0, {v(TMP)}
        s_cbranch_vccz K1_RDY
        s_sleep 8
        s_branch K1_RDYL
        """)
        a.label("K1_RDY")
        a(f"""
        s_mov_b64 exec, 1
        s_add_u32 {s(sT)}, {s(sHB)}, {C_HB}
        s_add_u32 {s(sT2)}, {s(sRB)}, {C_HR}
        s_cmp_eq_u32 {s(sTY)}, 3
        s_cselect_b32 {s(sT)}, {s(sT2)}, {s(sT)}
        s_lshl_b32 {s(sT)}, {s(sT)}, {FSH}
        s_add_u32 {s(sT)}, {s(sT)}, 0x{FLG:x}
        s_lshl_b32 {s(sT2)}, {s(sFH)}, 2
        s_add_u32 {s(sT2)}, {s(sT2)}, 0x{SC_N:x}
        v_mov_b32 {v(vT0)}, {s(sT2)}
        v_mov_b32 {v(vT1)}, 1
        v_mov_b32 {v(vTA)}, 0
        s_waitcnt vmcnt(2)
        ds_add_rtn_u32 {v(vT2)}, {v(vT0)}, {v(vT1)}
        s_waitcnt lgkmcnt(0)
        v_cmp_ne_u32 vcc, 3, {v(vT2)}
        s_cbranch_vccnz K1_NOSIG
        buffer_atomic_add {v(vT1)}, {v(vTA)}, {s(sWS,4)}, {s(sT)} offen sc1
        """)
        a.label("K1_NOSIG")
        a("s_mov_b64 exec, -1")
    a(f"""
    s_cmp_ge_u32 {s(sU)}, 88
    s_cbranch_scc1 K1_NOCS3
    v_mfma_f32_16x16x32_bf16 {v(TMP,4)}, {v(SEL,4)}, {v(W3V,4)}, 0
    v_mfma_f32_16x16x32_bf16 {v(TMP+4,4)}, {v(SEL,4)}, {v(W3V+4,4)}, 0
    s_lshl_b32 {s(sT)}, {s(sW_)}, 8
    s_add_u32 {s(sT)}, {s(sT)}, 0x{SC_3P:x}
    v_lshl_add_u32 {v(vT0)}, {v(vL)}, 2, {s(sT)}
    s_mov_b64 exec, 0xffff
    ds_write_b32 {v(vT0)}, {v(TMP)}
    ds_write_b32 {v(vT0)}, {v(TMP+1)} offset:64
    ds_write_b32 {v(vT0)}, {v(TMP+4)} offset:128
    ds_write_b32 {v(vT0)}, {v(TMP+5)} offset:192
    s_mov_b64 exec, -1
    """)
    a.label("K1_NOCS3")
    a(f"""
    v_mov_b32 {v(vT0)}, 0x{SC_N+8:x}
    v_mov_b32 {v(vT1)}, 1
    s_mov_b64 exec, 1
    s_waitcnt vmcnt(0) lgkmcnt(0)
    ds_add_rtn_u32 {v(vT2)}, {v(vT0)}, {v(vT1)}
    s_waitcnt lgkmcnt(0)
    v_cmp_ne_u32 vcc, 7, {v(vT2)}
    s_mov_b64 exec, -1
    s_cbranch_vccnz K1_FIN
    s_cmp_ge_u32 {s(sU)}, 88
    s_cbranch_scc1 K1_JSIG
    v_lshlrev_b32 {v(vT0)}, 2, {v(vL)}
    v_add_u32 {v(vT2)}, 0x{SC_3P:x}, {v(vT0)}
    """)
    for w in range(8): a(f"ds_read_b32 {v(TMP+w)}, {v(vT2)} offset:{256*w}")
    a(f"""
    s_mul_i32 {s(sT)}, {s(sKP)}, 6144
    s_lshl_b32 {s(sT2)}, {s(sCI)}, 8
    s_add_u32 {s(sT)}, {s(sT)}, {s(sT2)}
    s_add_u32 {s(sT)}, {s(sT)}, 0x{CS3P:x}
    s_waitcnt lgkmcnt(0)
    """)
    for w in range(1, 8): a(f"v_add_f32 {v(TMP)}, {v(TMP)}, {v(TMP+w)}")
    a(f"buffer_store_dword {v(TMP)}, {v(vT0)}, {s(sWS,4)}, {s(sT)} offen {K1F}")
    a("s_waitcnt vmcnt(0)")
    a.label("K1_JSIG")
    if MERGE:
        a(f"""
        v_mov_b32 {v(vT0)}, 0x{SC_N+8:x}
        v_mov_b32 {v(vT2)}, 9
        ds_write_b32 {v(vT0)}, {v(vT2)}
        s_cmp_ge_u32 {s(sU)}, 240
        s_cbranch_scc1 K1_FIN
        s_add_u32 {s(sT)}, {s(sJC)}, {s(sCI)}
        s_lshl_b32 {s(sT)}, {s(sT)}, {FSH}
        s_add_u32 {s(sT)}, {s(sT)}, 0x{FLG:x}
        v_mov_b32 {v(vT0)}, 0
        s_mov_b64 exec, 1
        buffer_atomic_add {v(vT1)}, {v(vT0)}, {s(sWS,4)}, {s(sT)} offen sc1
        s_mov_b64 exec, -1
        """)
    else:
        a(f"""
        s_cmp_lg_u32 s2, 0
        s_cbranch_scc1 K1_FIN
        v_mov_b32 {v(TMP)}, 0
        v_lshlrev_b32 {v(vT0)}, {FSH}, {v(vL)}
        s_mov_b32 {s(sT)}, 0x{FLG:x}
        buffer_store_dword {v(TMP)}, {v(vT0)}, {s(sWS,4)}, {s(sT)} offen
        """)
    a.label("K1_FIN")
    if PROF and not MERGE: a("s_waitcnt vmcnt(0)")
    stamp(a, 13)
    stamp_flush(a, 0, sW_, pWS)
    if not own: return
    a.label("K1_END")
    a("s_endpgm")
    lines, added = a.done()
    return kernel_text("k1_proj_kernel", lines, 256 if PROF else 204, 102)
```

```python
from common import *

TB = 2080
PROG_A = 16*TB
PROG_B = PROG_A + 1024
CNT_B = PROG_B + 1024
GO_A = CNT_B + 8
CS3L = CNT_B + 64
BR = 36*1024
DUMP = BR + 72*1024
K2_LDS = BR + 120*1024
SPIN = 400000
PD3 = int(os.environ.get('PD3', 3))
PD1 = int(os.environ.get('PD1', 1))
PST = int(os.environ.get('PST', 5))
CANARY = int(os.environ.get('CANARY', 1))
BDELAY = int(os.environ.get('BDELAY', 1))
P1F = 'sc1' if MERGE else ''
POLL = os.environ.get('POLL', 'atomic')
EARLY = int(os.environ.get('EARLY', 2))
POS = eval(os.environ.get('POS', '(2,6,11)'))
LDF = os.environ.get('LDF', 'sc1')
STF = os.environ.get('STF', 'sc1')
PSL = int(os.environ.get('PSL', 4))
ONEPOLL = int(os.environ.get('ONEPOLL', 1))
OUTF = os.environ.get('OUTF', '')

def attention(a):
    sKV, sQO = 8, 12
    sW, sHD, sQB, sT, sT2, sKO, sM, sNEED, sIT, sEX = 28, 29, 30, 31, 32, 33, 34, 35, 36, 38
    vL, vIDX, vKA, vV0, vV1, vPW, vPR, vPROG, vC, vT0, vT1, vOO = 1, 2, 3, 4, 5, 6, 7, 8, 9, 10, 11, 12
    Sa, Sb, Oa, Ob, Ma, Mb, Qa, Qb = 16, 32, 48, 64, 80, 96, 112, 116
    K = [120, 124]; V = [128, 136]
    pWS = 26
    sS1, sS3 = 52, 53
    vS1, vZA, vONEA = 12, 14, 15
    a(f"""
    s_and_b32 {s(sT)}, s2, 7
    s_xor_b32 {s(sT)}, {s(sT)}, {os.environ.get('HSW', 1)}
    s_lshl_b32 {s(sHD)}, {s(sT)}, 2
    s_bfe_u32 {s(sT)}, s2, 0x20003
    s_add_u32 {s(sHD)}, {s(sHD)}, {s(sT)}
    s_lshr_b32 {s(sQB)}, s2, 5
    v_lshlrev_b32 {v(vKA)}, 4, {v(vL)}
    s_lshl_b32 {s(sT)}, {s(sHD)}, 17
    s_add_u32 {s(sT)}, {s(sT)}, 0x{KVF:x}
    s_lshl_b32 {s(sKO)}, {s(sW)}, 11
    s_lshl_b32 {s(sT2)}, {s(sQB)}, 14
    s_add_u32 {s(sKO)}, {s(sKO)}, {s(sT2)}
    s_mul_i32 {s(sM)}, {s(sW)}, {TB}
    s_waitcnt lgkmcnt(0)
    s_add_u32 {s(sKV)}, {s(pWS)}, {s(sT)}
    s_addc_u32 {s(sKV+1)}, {s(pWS+1)}, 0
    s_mov_b32 {s(sKV+2)}, 0x20000
    s_mov_b32 {s(sKV+3)}, 0x20000
    """)
    def dma(slot):
        return [f"s_add_u32 m0, {s(sM)}, {slot*4*TB}",
                f"s_nop 0",
                f"buffer_load_dwordx4 {v(vKA)}, {s(sKV,4)}, {s(sKO)} offen {P1F} lds",
                f"buffer_load_dwordx4 {v(vKA)}, {s(sKV,4)}, {s(sKO)} offen offset:1024 {P1F} lds",
                f"s_add_u32 {s(sKO)}, {s(sKO)}, 8192",
                f"s_and_b32 {s(sKO)}, {s(sKO)}, 0x1ffff"]
    def first_loads():
        for l in dma(0): a(l)
        a(f"""
        s_lshl_b32 {s(sT)}, {s(sHD)}, 16
        s_lshl_b32 {s(sT2)}, {s(sQB)}, 13
        s_add_u32 {s(sT)}, {s(sT)}, {s(sT2)}
        s_lshl_b32 {s(sT2)}, {s(sW)}, 11
        s_add_u32 {s(sT)}, {s(sT)}, {s(sT2)}
        buffer_load_dwordx4 {v(Qa,4)}, {v(vKA)}, {s(sQO,4)}, {s(sT)} offen {P1F}
        buffer_load_dwordx4 {v(Qb,4)}, {v(vKA)}, {s(sQO,4)}, {s(sT)} offen offset:1024 {P1F}
        """)
        for l in dma(1) + dma(2): a(l)
    srd(a, sQO, pWS, 0, WS_USED)
    if not MERGE: first_loads()
    a(f"""
    v_mov_b32 {v(vIDX)}, 0xdddddddd
    v_and_b32 {v(vT0)}, 15, {v(vL)}
    v_lshrrev_b32 {v(vT1)}, 5, {v(vL)}
    v_lshlrev_b32 {v(vV0)}, 4, {v(vT0)}
    v_lshl_add_u32 {v(vV0)}, {v(vT1)}, 8, {v(vV0)}
    v_add_u32 {v(vV0)}, 1024, {v(vV0)}
    v_add_u32 {v(vV1)}, 512, {v(vV0)}
    v_and_b32 {v(vPR)}, 11, {v(vL)}
    v_cmp_eq_u32 vcc, 0, {v(vPR)}
    v_mov_b32 {v(vPW)}, 2048
    v_mov_b32 {v(vC)}, {2048 if os.environ.get("ALLONES") else 2064}
    v_cndmask_b32 {v(vC)}, {v(vC)}, {v(vPW)}, vcc
    v_and_b32 {v(vPR)}, 16, {v(vL)}
    v_cmp_ne_u32 vcc, 0, {v(vPR)}
    v_mov_b32 {v(V[1]+4)}, 0
    v_mov_b32 {v(V[1]+5)}, 0
    v_cndmask_b32 {v(vV0)}, {v(vV0)}, {v(vC)}, vcc
    v_cndmask_b32 {v(vV1)}, {v(vV1)}, {v(vC)}, vcc
    v_mov_b32 {v(V[1]+6)}, 0
    v_mov_b32 {v(V[1]+7)}, 0
    v_mul_u32_u24 {v(vT0)}, {TB}, {v(vT0)}
    v_mov_b32 {v(V[0])}, 0x{ONES:x}
    v_mov_b32 {v(V[0]+1)}, 0x{ONES:x}
    v_mov_b32 {v(V[0]+2)}, 0x{ONES:x}
    v_mov_b32 {v(V[0]+3)}, 0x{ONES:x}
    ds_write_b128 {v(vT0)}, {v(V[0],4)} offset:2048
    ds_write_b128 {v(vT0)}, {v(V[1]+4,4)} offset:2064
    s_lshl_b32 {s(sT)}, {s(sW)}, 8
    v_lshl_add_u32 {v(vPW)}, {v(vL)}, 2, {s(sT)}
    v_and_b32 {v(vPR)}, 3, {v(vL)}
    v_lshlrev_b32 {v(vPR)}, 8, {v(vPR)}
    v_lshl_add_u32 {v(vPR)}, {v(vL)}, 2, {v(vPR)}
    """)
    if not MERGE: a(f"""
    v_mov_b32 {v(vPROG)}, 0
    ds_write_b32 {v(vPW)}, {v(vPROG)} offset:{PROG_A}
    s_waitcnt lgkmcnt(0)
    s_barrier
    """)
    a(f"v_mov_b32 {v(vPROG)}, 1")
    for j in range(9):
        a(f"v_mov_b32 {v(Oa+j)}, 0"); a(f"v_mov_b32 {v(Ob+j)}, 0")
    if MERGE:
        a(f"""
        s_lshr_b32 {s(sT)}, {s(sHD)}, 2
        s_add_u32 {s(sT)}, {s(sT)}, {C_HB}
        v_lshl_add_u32 {v(vT0)}, {v(vL)}, 3, {s(sT)}
        v_lshlrev_b32 {v(vT0)}, {FSH}, {v(vT0)}
        s_mov_b32 {s(sT2)}, 0x{FLG:x}
        s_mov_b32 {s(sT)}, {SPIN}
        s_cmp_lg_u32 {s(sW)}, 0
        s_cbranch_scc1 AT_GOW
        s_mov_b64 exec, 7
        """)
        a.label("AT_P")
        a(f"""
        v_mov_b32 {v(vC)}, 0
        buffer_atomic_add {v(vC)}, {v(vT0)}, {s(sQO,4)}, {s(sT2)} offen sc0 sc1
        s_sub_u32 {s(sT)}, {s(sT)}, 1
        s_cmp_eq_u32 {s(sT)}, 0
        s_cbranch_scc1 AT_PX
        s_waitcnt vmcnt(0)
        v_cmp_gt_u32 vcc, 16, {v(vC)}
        s_cbranch_vccz AT_PX
        s_sleep {PSL}
        s_branch AT_P
        """)
        a.label("AT_PX")
        a(f"""
        s_mov_b64 exec, -1
        s_waitcnt vmcnt(0)
        v_mov_b32 {v(vT1)}, 0
        ds_write_b32 {v(vT1)}, {v(vPROG)} offset:{GO_A}
        s_branch AT_GO
        """)
        a.label("AT_GOW")
        a(f"""
        v_mov_b32 {v(vT1)}, 0
        ds_read_b32 {v(vC)}, {v(vT1)} offset:{GO_A}
        s_sub_u32 {s(sT)}, {s(sT)}, 1
        s_cmp_eq_u32 {s(sT)}, 0
        s_cbranch_scc1 AT_GO
        s_waitcnt lgkmcnt(0)
        v_cmp_eq_u32 vcc, 0, {v(vC)}
        s_cbranch_vccnz AT_GOW
        """)
        a.label("AT_GO")
        stamp(a, 9)
        first_loads()
    a(f"""
    s_lshl_b32 {s(sS3)}, {s(sQB)}, 2
    s_add_u32 {s(sS3)}, {s(sS3)}, {s(sW)}
    s_lshr_b32 {s(sS1)}, {s(sS3)}, 1
    s_lshl_b32 {s(sS1)}, {s(sS1)}, {FSH}
    s_add_u32 {s(sS1)}, {s(sS1)}, 0x{cnt(C_S1):x}
    s_lshl_b32 {s(sS3)}, {s(sS3)}, 2
    s_lshr_b32 {s(sT)}, {s(sHD)}, 3
    s_add_u32 {s(sS3)}, {s(sS3)}, {s(sT)}
    s_lshl_b32 {s(sS3)}, {s(sS3)}, {FSH}
    s_add_u32 {s(sS3)}, {s(sS3)}, 0x{cnt(C_S3):x}
    v_mov_b32 {v(vS1)}, 0
    v_mov_b32 {v(vZA)}, 0
    v_mov_b32 {v(vONEA)}, 1
    s_mov_b32 {s(sNEED)}, 2
    s_mov_b32 {s(sIT)}, 4
    s_mov_b32 {s(sT)}, {SPIN}
    s_waitcnt vmcnt(4)
    ds_write_b32 {v(vPW)}, {v(vPROG)} offset:{PROG_A}
    """)
    a.label("AT_W0")
    a(f"""
    ds_read_b32 {v(vC)}, {v(vPR)} offset:{PROG_A}
    s_sub_u32 {s(sT)}, {s(sT)}, 1
    s_cmp_eq_u32 {s(sT)}, 0
    s_cbranch_scc1 AT_X0
    s_waitcnt lgkmcnt(0)
    v_cmp_gt_u32 vcc, 1, {v(vC)}
    s_cbranch_vccnz AT_W0
    """)
    a.label("AT_X0")
    stamp(a, 1)
    if os.environ.get("NOATT"): a("s_endpgm")
    a(f"""
    ds_read_b128 {v(K[0],4)}, {v(vKA)}
    ds_read_b128 {v(V[0],4)}, {v(vV0)}
    ds_read_b128 {v(V[0]+4,4)}, {v(vV1)}
    s_waitcnt lgkmcnt(2)
    v_mfma_f32_32x32x16_bf16 {v(Sa,16)}, {v(K[0],4)}, {v(Qa,4)}, 0
    v_mfma_f32_32x32x16_bf16 {v(Sb,16)}, {v(K[0],4)}, {v(Qb,4)}, 0
    """)
    def rowmax(S, dst, first=True):
        if first: a(f"v_max3_f32 {v(dst)}, {v(S)}, {v(S+1)}, {v(S+2)}")
        else: a(f"v_max3_f32 {v(dst)}, {v(dst)}, {v(S)}, {v(S+1)}"); a(f"v_max_f32 {v(dst)}, {v(dst)}, {v(S+2)}")
        for j in range(3, 15, 2): a(f"v_max3_f32 {v(dst)}, {v(dst)}, {v(S+j)}, {v(S+j+1)}")
        a(f"v_max_f32 {v(dst)}, {v(dst)}, {v(S+15)}")
    def spread(M, t):
        a(f"v_mov_b32 {v(t)}, {v(M)}")
        a(f"v_permlane32_swap_b32 {v(M)}, {v(t)}")
        a(f"v_max_f32 {v(t)}, {v(M)}, {v(t)}")
        for j in range(16): a(f"v_sub_f32 {v(M+j)}, 0, {v(t)}")
    rowmax(Sa, Ma); spread(Ma, vT0)
    a(f"v_mfma_f32_32x32x16_bf16 {v(Sa,16)}, {v(K[0],4)}, {v(Qa,4)}, {v(Ma,16)}")
    rowmax(Sb, Mb); spread(Mb, vT1)
    for j in range(8): a(f"v_mov_b32 {v(Sb+8+j)}, 0")
    pv = lambda O, Vr, S: "s_nop 0" if os.environ.get("NOPV") else f"v_smfmac_f32_32x32x32_bf16 {v(O,16)}, {v(Vr,4)}, {v(S,8)}, {v(vIDX)}"
    qk = lambda S, Kr, Q, M: f"v_mfma_f32_32x32x16_bf16 {v(S,16)}, {v(Kr,4)}, {v(Q,4)}, {'0' if os.environ.get('CZERO') else v(M,16)}"
    stamp(a, 2)
    if os.environ.get("DIAG"):
        for r_ in range(40, 52): a(f"s_mov_b32 s{r_}, 0")
    a(".p2align 6")
    a.label("AT_LOOP")
    for t in range(16):
        p = t & 1; q = p ^ 1; j = t & 3; nx = ((t+1) % 16)*TB
        A = {2: [pv(Ob, V[q]+4, Sb+8), "s_waitcnt lgkmcnt(0)"], 6: [qk(Sb, K[p], Qb, Mb), f"ds_read_b128 {v(V[q],4)}, {v(vV0)} offset:{nx}"],
             11: [pv(Oa, V[p], Sa), f"ds_read_b128 {v(V[q]+4,4)}, {v(vV1)} offset:{nx}"]}
        B = {2: [pv(Oa, V[p]+4, Sa+8), "s_waitcnt lgkmcnt(2)"], 6: [qk(Sa, K[q], Qa, Ma)], 11: [pv(Ob, V[p], Sb)]}
        if POS[0] < 2:
            A[2] = A[2][::-1]; B[2] = B[2][::-1]
        if j == 3:
            A[2] += [f"v_cmp_gt_u32 vcc, {s(sNEED)}, {v(vC)}", f"s_cbranch_vccnz AT_SPIN{t}", f"AT_BACK{t}:"]
            d = dma(((t >> 2) + 3) & 3)
            B[6] += [d[0], f"s_add_u32 {s(sNEED)}, {s(sNEED)}, 1", d[2]]
            B[11] += [d[3], d[4], d[5]]
        A[2] += [f"ds_read_b128 {v(K[q],4)}, {v(vKA)} offset:{nx}"]
        if j == 0:
            B[6] += [f"v_add_u32 {v(vPROG)}, 1, {v(vPROG)}"]
            B[11] += ["s_waitcnt vmcnt(2)", f"ds_write_b32 {v(vPW)}, {v(vPROG)} offset:{PROG_A}"]
        if t == 5:
            B[6] += [f"s_cmp_eq_u32 {s(sIT)}, 1", f"s_cselect_b32 {s(sKV+2)}, 0, {s(sKV+2)}"]
        if t == 9 and CANARY:
            B[6] += ["s_mov_b64 exec, 1", f"buffer_atomic_umax {v(vS1)}, {v(vZA)}, {s(sQO,4)}, {s(sS1)} offen sc0 sc1", "s_mov_b64 exec, -1"]
        if j == 2:
            B[11] += [f"ds_read_b32 {v(vC)}, {v(vPR)} offset:{PROG_A}"]
        if os.environ.get("DIAG"):
            if j == 3:
                B[6] = [B[6][0], "s_memtime s[40:41]"] + B[6][1:] + ["s_memtime s[42:43]"]
                B[11] = [B[11][0], "s_memtime s[44:45]"] + B[11][1:] + ["s_memtime s[46:47]"]
            if j == 0:
                A[2] = A[2][:2] + ["s_sub_u32 s42, s42, s40", "s_add_u32 s74, s74, s42", "s_sub_u32 s46, s46, s44", "s_add_u32 s76, s76, s46"] + A[2][2:]
                B[11] = [B[11][0], "s_memtime s[48:49]", B[11][1], "s_memtime s[50:51]"] + B[11][2:]
            if j == 1:
                A[2] = A[2][:2] + ["s_sub_u32 s50, s50, s48", "s_add_u32 s78, s78, s50"] + A[2][2:]
        if t == 15:
            B[14] = [f"s_sub_u32 {s(sIT)}, {s(sIT)}, 1", f"s_cmp_lg_u32 {s(sIT)}, 0"]
        for S, ins in ((Sa, A), (Sb, B)):
            ins = {{2: POS[0], 6: POS[1], 11: POS[2]}.get(k_, k_): v_ for k_, v_ in ins.items()}
            for i in range(16):
                for l in ins.get(i, []): a(l)
                a(f"{os.environ.get('EXPOP', 'v_exp_f32')} {v(S+i)}, {v(S+i)}")
    a("s_cbranch_scc1 AT_LOOP")
    a("s_nop 0")
    a(pv(Ob, V[1]+4, Sb+8))
    stamp(a, 3)
    a.label("AT_FIN")
    a("s_nop 7")
    for O, t in ((Oa, vT0), (Ob, vT1)):
        a(f"v_max3_f32 {v(t)}, abs({v(O)}), abs({v(O+1)}), {v(O+8)}")
        for j in range(2, 8, 2): a(f"v_max3_f32 {v(t)}, abs({v(O+j)}), abs({v(O+j+1)}), {v(t)}")
    a(f"""
    v_max_f32 {v(vT0)}, {v(vT0)}, {v(vT1)}
    v_cmp_nlt_f32 vcc, {v(vT0)}, {v(vBIG)}
    s_cmp_eq_u32 {s(sIT)}, 0
    s_cselect_b64 vcc, vcc, 0
    s_cbranch_vccnz AT_SLOW
    """)
    if CANARY:
        a(f"""
        s_mov_b64 exec, 1
        v_cmp_gt_u32 vcc, 16, {v(vS1)}
        s_cbranch_vccnz AT_S1W
        """)
        a.label("AT_S1X")
        a(f"buffer_atomic_add {v(vONEA)}, {v(vZA)}, {s(sQO,4)}, {s(sS3)} offen sc1")
        a("s_mov_b64 exec, -1")
    a(f"""
    v_rcp_f32 {v(vT0)}, {v(Oa+8)}
    v_rcp_f32 {v(vT1)}, {v(Ob+8)}
    s_lshl_b32 {s(sT)}, {s(sHD)}, 10
    s_lshl_b32 {s(sT2)}, {s(sQB)}, 18
    s_add_u32 {s(sT)}, {s(sT)}, {s(sT2)}
    s_lshl_b32 {s(sT2)}, {s(sW)}, 16
    s_add_u32 {s(sT)}, {s(sT)}, {s(sT2)}
    s_add_u32 {s(sT)}, {s(sT)}, 0x{OF:x}
    s_add_u32 {s(sT2)}, {s(sT)}, 0x8000
    """)
    for O, t, o in ((Oa, vT0, sT), (Ob, vT1, sT2)):
        for j in range(8): a(f"v_mul_f32 {v(O+j)}, {v(O+j)}, {v(t)}")
        for j in range(4): a(f"v_cvt_pk_bf16_f32 {v(O+j)}, {v(O+2*j)}, {v(O+2*j+1)}")
        a(f"buffer_store_dwordx4 {v(O,4)}, {v(vKA)}, {s(sQO,4)}, {s(o)} offen sc1")
    if not CANARY: a(f"""
    s_mov_b64 exec, 1
    s_waitcnt vmcnt(0)
    buffer_atomic_add {v(vONEA)}, {v(vZA)}, {s(sQO,4)}, {s(sS3)} offen sc1
    """)
    stamp(a, 4)
    stamp_flush(a, 1, sW, pWS, "A")
    a("s_endpgm")
    for t in (3, 7, 11, 15):
        a.label(f"AT_SPIN{t}")
        a(f"s_mov_b32 {s(sT)}, {SPIN}")
        a.label(f"AT_SPINL{t}")
        if os.environ.get("DIAG"): a("s_add_u32 s80, s80, 1")
        a(f"""
        ds_read_b32 {v(vC)}, {v(vPR)} offset:{PROG_A}
        s_sub_u32 {s(sT)}, {s(sT)}, 1
        s_cmp_eq_u32 {s(sT)}, 0
        s_cbranch_scc1 AT_BACK{t}
        s_waitcnt lgkmcnt(0)
        v_cmp_gt_u32 vcc, {s(sNEED)}, {v(vC)}
        s_cbranch_vccnz AT_SPINL{t}
        s_branch AT_BACK{t}
        """)
    if CANARY:
        a.label("AT_S1W")
        a(f"s_mov_b32 {s(sT)}, {SPIN}")
        a.label("AT_S1L")
        a(f"""
        buffer_atomic_umax {v(vS1)}, {v(vZA)}, {s(sQO,4)}, {s(sS1)} offen sc0 sc1
        s_sub_u32 {s(sT)}, {s(sT)}, 1
        s_cmp_eq_u32 {s(sT)}, 0
        s_cbranch_scc1 AT_S1X
        s_waitcnt vmcnt(0)
        v_cmp_gt_u32 vcc, 16, {v(vS1)}
        s_cbranch_vccz AT_S1X
        s_sleep 8
        s_branch AT_S1L
        """)
    a.label("AT_SLOW")
    a(f"""
    s_mov_b32 {s(sIT)}, 1
    s_mov_b32 {s(sKV+2)}, 0x20000
    s_mov_b32 {s(sKO)}, 0
    v_mov_b32 {v(Ma)}, 0xff800000
    v_mov_b32 {v(Mb)}, 0xff800000
    s_waitcnt vmcnt(0) lgkmcnt(0)
    """)
    a.label("AT_SLOW1")
    a(f"""
    buffer_load_dwordx4 {v(K[0],4)}, {v(vKA)}, {s(sKV,4)}, {s(sKO)} offen {P1F}
    s_add_u32 {s(sKO)}, {s(sKO)}, 2048
    s_waitcnt vmcnt(0)
    v_mfma_f32_32x32x16_bf16 {v(Sa,16)}, {v(K[0],4)}, {v(Qa,4)}, 0
    v_mfma_f32_32x32x16_bf16 {v(Sb,16)}, {v(K[0],4)}, {v(Qb,4)}, 0
    """)
    rowmax(Sa, Ma, False); rowmax(Sb, Mb, False)
    a(f"""
    s_cmp_lt_u32 {s(sKO)}, 0x20000
    s_cbranch_scc1 AT_SLOW1
    """)
    spread(Ma, vT0); spread(Mb, vT1)
    for j in range(9):
        a(f"v_mov_b32 {v(Oa+j)}, 0"); a(f"v_mov_b32 {v(Ob+j)}, 0")
    for j in range(8): a(f"v_mov_b32 {v(V[0]+j)}, 0x{ONES:x}")
    a(f"""
    s_mov_b32 {s(sKO)}, 0
    s_mov_b32 {s(sEX)}, 0xffff
    s_mov_b32 {s(sEX+1)}, 0xffff
    """)
    a.label("AT_SLOW2")
    a(f"""
    buffer_load_dwordx4 {v(K[0],4)}, {v(vKA)}, {s(sKV,4)}, {s(sKO)} offen {P1F}
    s_mov_b64 exec, {s(sEX,2)}
    buffer_load_dwordx4 {v(V[0],4)}, {v(vV0)}, {s(sKV,4)}, {s(sKO)} offen {P1F}
    buffer_load_dwordx4 {v(V[0]+4,4)}, {v(vV1)}, {s(sKV,4)}, {s(sKO)} offen {P1F}
    s_mov_b64 exec, -1
    s_add_u32 {s(sKO)}, {s(sKO)}, 2048
    s_waitcnt vmcnt(0)
    """)
    a(qk(Sa, K[0], Qa, Ma)); a(qk(Sb, K[0], Qb, Mb))
    for S in (Sa, Sb):
        for i in range(16): a(f"v_exp_f32 {v(S+i)}, {v(S+i)}")
    a(pv(Oa, V[0], Sa)); a(pv(Oa, V[0]+4, Sa+8)); a(pv(Ob, V[0], Sb)); a(pv(Ob, V[0]+4, Sb+8))
    a(f"""
    s_cmp_lt_u32 {s(sKO)}, 0x20000
    s_cbranch_scc1 AT_SLOW2
    s_nop 3
    s_branch AT_FIN
    """)
vBIG = 13

def chain(a, pfx="CH"):
    vm = VM(a)
    PRIO = os.environ.get("PRIO", 2)
    sH, sX, sWS, sOUT = 8, 12, 40, 44
    pX, pOUT, pWS = 16, 18, 26
    sW, sC, sTG, sM16, sT64, sJ, sT, sT2, sT3, sSO, sFL, sNB, sFT, sTH = 28, 29, 30, 31, 32, 33, 34, 35, 36, 37, 38, 39, 48, 49
    sR1, sR2, sB1, sB2, sTT, sWB, sROT = 50, 51, 52, 53, 54, 55, 56
    vL, vI, vHI, vT0, vT1, vT2, vT3 = 1, 2, 3, 4, 5, 6, 7
    vPW, vPR, vPROG, vC, vDUMP, vTOK = 9, 10, 11, 12, 14, 15
    vWA = [16, 17]; vRA = [18, 19, 20]; vH = [21, 22]; vXO, vSTO, vZ = 23, 24, 25
    v3A = [26, 27]; vL16 = 28; vPK = 29
    ACC = 32
    WF = lambda p, f: 96 + 12*p + 4*f
    BIG = 120
    XR, STv = 248, 252
    lo = lambda: a("s_setprio 0")
    hi = lambda: a(f"s_setprio {PRIO}")
    a(f"""
    s_sub_u32 {s(sC)}, {s(sW)}, 4
    s_lshl_b32 {s(sT)}, {s(sC)}, 8
    v_lshl_add_u32 {v(vPW)}, {v(vL)}, 2, {s(sT)}
    v_mov_b32 {v(vPROG)}, 0
    v_mov_b32 {v(vZ)}, 0
    """)
    if not MERGE: a(f"""
    ds_write_b32 {v(vPW)}, {v(vPROG)} offset:{PROG_B}
    ds_write_b32 {v(vZ)}, {v(vZ)} offset:{CNT_B}
    ds_write_b32 {v(vZ)}, {v(vZ)} offset:{CNT_B+4}
    """)
    a(f"""
    s_and_b32 {s(sT)}, s2, 7
    s_lshl_b32 {s(sTG)}, {s(sT)}, 1
    s_bfe_u32 {s(sT2)}, s2, 0x10003
    s_add_u32 {s(sTG)}, {s(sTG)}, {s(sT2)}
    s_lshr_b32 {s(sM16)}, s2, 4
    s_and_b32 {s(sT)}, {s(sM16)}, 1
    s_lshl_b32 {s(sT64)}, {s(sTG)}, 1
    s_add_u32 {s(sT64)}, {s(sT64)}, {s(sT)}
    s_lshr_b32 {s(sJ)}, {s(sM16)}, 1
    s_and_b32 {s(sFT)}, {s(sC)}, 1
    s_lshr_b32 {s(sTH)}, {s(sC)}, 1
    s_lshl_b32 {s(sTT)}, {s(sT64)}, 1
    s_add_u32 {s(sTT)}, {s(sTT)}, {s(sTH)}
    v_and_b32 {v(vI)}, 31, {v(vL)}
    v_lshrrev_b32 {v(vHI)}, 5, {v(vL)}
    v_lshlrev_b32 {v(vL16)}, 4, {v(vL)}
    s_lshl_b32 {s(sT)}, {s(sJ)}, 1
    s_add_u32 {s(sT)}, {s(sT)}, {s(sFT)}
    s_lshl_b32 {s(sT)}, {s(sT)}, 10
    v_add_u32 {v(vWA[0])}, {s(sT)}, {v(vL16)}
    v_xor_b32 {v(vWA[1])}, 1024, {v(vWA[0])}
    s_add_u32 {s(sT)}, {s(sTH)}, 1
    s_sub_u32 {s(sT2)}, 0, {s(sT)}
    s_cmp_eq_u32 {s(sFT)}, 0
    s_cselect_b32 {s(sT)}, {s(sT2)}, {s(sT)}
    s_lshl_b32 {s(sT3)}, {s(sTT)}, 5
    v_add_u32 {v(vTOK)}, {s(sT3)}, {v(vI)}
    v_mov_b32 {v(vT3)}, 0x40000000
    """)
    for b in (0, 1):
        a(f"""
        v_xor_b32 {v(vT0)}, {32*b}, {v(vTOK)}
        v_add_u32 {v(vT0)}, {s(sT)}, {v(vT0)}
        v_cmp_gt_u32 vcc, 0x800, {v(vT0)}
        v_lshrrev_b32 {v(vT1)}, 5, {v(vT0)}
        v_and_b32 {v(vT0)}, 31, {v(vT0)}
        v_lshlrev_b32 {v(vT0)}, 4, {v(vT0)}
        v_lshl_add_u32 {v(vT0)}, {v(vT1)}, 15, {v(vT0)}
        v_lshl_add_u32 {v(vT0)}, {v(vHI)}, 9, {v(vT0)}
        v_cndmask_b32 {v(vH[b])}, {v(vT3)}, {v(vT0)}, vcc
        """)
    a(f"""
    s_and_b32 {s(sT)}, {s(sT64)}, 3
    s_lshl_b32 {s(sROT)}, {s(sT)}, 1
    s_add_u32 {s(sROT)}, {s(sROT)}, {s(sJ)}
    s_mov_b32 {s(sR1)}, {s(sROT)}
    s_lshl_b32 {s(sB1)}, {s(sC)}, 3
    s_waitcnt lgkmcnt(0)
    """)
    srd(a, sWS, pWS, 0, WS_USED)
    srd(a, sH, pWS, HF, 0x200000)
    if not MERGE: a("s_barrier")
    def rot8(r):
        a(f"""
        s_and_b32 {s(r)}, {s(r)}, 7
        s_add_u32 {s(sT)}, {s(r)}, {s(sB1)}
        s_add_u32 {s(r)}, {s(r)}, 1
        """)
    def wload(dst, base, tag):
        a(f"s_lshl_b32 {s(sSO)}, {s(sT)}, 14")
        a(f"s_add_u32 {s(sSO)}, {s(sSO)}, 0x{base:x}")
        for f in (0, 1): vm.op(f"buffer_load_dwordx4 {v(dst+4*f,4)}, {v(vWA[f])}, {s(sWS,4)}, {s(sSO)} offen {P1F}", tag)
    def load1(st):
        rot8(sR1)
        a(f"s_lshl_b32 {s(sT2)}, {s(sT)}, 10")
        wload(BIG+16*st, W2F, f"a{st}")
        for b in (0, 1): vm.op(f"buffer_load_dwordx4 {v(BIG+16*st+8+4*b,4)}, {v(vH[b])}, {s(sH,4)}, {s(sT2)} offen {P1F}", f"a{st}")
    LA1 = int(os.environ.get('LA1', 4))
    if not MERGE:
        for st in range(LA1): load1(st)
    srd(a, sX, pX, 0, 0x200000)
    srd(a, sOUT, pOUT, 0, 0x200000)
    a(f"""
    v_lshlrev_b32 {v(vXO)}, 10, {v(vTOK)}
    v_lshl_add_u32 {v(vXO)}, {v(vHI)}, 4, {v(vXO)}
    s_lshl_b32 {s(sT)}, {s(sJ)}, 7
    s_lshl_b32 {s(sT2)}, {s(sFT)}, 6
    s_add_u32 {s(sT)}, {s(sT)}, {s(sT2)}
    v_add_u32 {v(vXO)}, {s(sT)}, {v(vXO)}
    v_lshlrev_b32 {v(vSTO)}, 3, {v(vTOK)}
    v_add_u32 {v(v3A[0])}, {BR}, {v(vL16)}
    v_add_u32 {v(v3A[1])}, {BR+49152}, {v(vL16)}
    s_mul_i32 {s(sT)}, {s(sC)}, 12288
    s_add_u32 {s(sT)}, {s(sT)}, {DUMP}
    v_add_u32 {v(vDUMP)}, {s(sT)}, {v(vL16)}
    """)
    for u in (1, 2, 3):
        a(f"""
        s_xor_b32 {s(sT)}, {s(sC)}, {u}
        s_mul_i32 {s(sT)}, {s(sT)}, 12288
        s_add_u32 {s(sT)}, {s(sT)}, {DUMP + (u-1)*4096}
        v_add_u32 {v(vRA[u-1])}, {s(sT)}, {v(vL16)}
        """)
    a(f"""
    v_and_b32 {v(vPR)}, 3, {v(vL)}
    v_lshlrev_b32 {v(vPR)}, 8, {v(vPR)}
    v_lshl_add_u32 {v(vPR)}, {v(vL)}, 2, {v(vPR)}
    s_lshl_b32 {s(sFL)}, {s(sTG)}, {FSH}
    s_add_u32 {s(sFL)}, {s(sFL)}, 0x{FLG:x}
    s_mov_b32 {s(sNB)}, 0
    s_and_b32 {s(sT)}, {s(sTG)}, 1
    s_lshl_b32 {s(sT)}, {s(sT)}, 2
    s_lshl_b32 {s(sR2)}, {s(sM16)}, 1
    s_add_u32 {s(sR2)}, {s(sR2)}, {s(sT)}
    s_mul_i32 {s(sWB)}, {s(sM16)}, 3072
    s_add_u32 {s(sWB)}, {s(sWB)}, 0x{W3F:x}
    """)
    nlab = [0]
    def arrive():
        a(f"""
        v_add_u32 {v(vPROG)}, 1, {v(vPROG)}
        s_add_u32 {s(sNB)}, {s(sNB)}, 1
        s_waitcnt lgkmcnt(0)
        ds_write_b32 {v(vPW)}, {v(vPROG)} offset:{PROG_B}
        """)
    def await_(prog=PROG_B, need=None, sleep=0, addr=None):
        n = nlab[0]; nlab[0] += 1
        a(f"s_mov_b32 {s(sT)}, {SPIN}")
        a.label(f"{pfx}_W{n}")
        if sleep: a(f"s_sleep {sleep}")
        a(f"""
        ds_read_b32 {v(vC)}, {v(vPR if addr is None else addr)} offset:{prog}
        s_sub_u32 {s(sT)}, {s(sT)}, 1
        s_cmp_eq_u32 {s(sT)}, 0
        s_cbranch_scc1 {pfx}_X{n}
        s_waitcnt lgkmcnt(0)
        v_cmp_gt_u32 vcc, {s(sNB) if need is None else need}, {v(vC)}
        s_cbranch_vccnz {pfx}_W{n}
        """)
        a.label(f"{pfx}_X{n}")
        a("s_waitcnt lgkmcnt(0)")
    def signal(k):
        n = nlab[0]; nlab[0] += 1
        a(f"""
        s_mov_b64 exec, 1
        v_mov_b32 {v(vT0)}, 1
        ds_add_rtn_u32 {v(vT1)}, {v(vZ)}, {v(vT0)} offset:{CNT_B+4*k}
        s_add_u32 {s(sT2)}, {s(sFL)}, {(16 << FSH)*k}
        s_waitcnt lgkmcnt(0)
        v_cmp_ne_u32 vcc, 3, {v(vT1)}
        s_cbranch_vccnz {pfx}_S{n}
        buffer_atomic_add {v(vT0)}, {v(vZ)}, {s(sWS,4)}, {s(sT2)} offen sc1
        """)
        a.label(f"{pfx}_S{n}")
        a("s_mov_b64 exec, -1")
    def poll(count, addr=None, lanes=1, everyone=False, depth=1):
        n = nlab[0]; nlab[0] += 1
        ad = v(vZ if addr is None else addr)
        R = [vC, vPK, vT1][:depth]
        rd = lambda r_: f"buffer_atomic_umax {v(r_)}, {ad}, {s(sWS,4)}, {s(sT2)} offen sc0 sc1"
        if not everyone:
            a(f"s_cmp_lg_u32 {s(sC)}, 0")
            a(f"s_cbranch_scc1 {pfx}_Q{n}")
        a(f"s_mov_b32 {s(sT)}, {SPIN}")
        for r_ in R: a(f"v_mov_b32 {v(r_)}, 0")
        a(f"s_mov_b64 exec, {(1 << lanes) - 1}")
        for r_ in R[:-1]:
            a(rd(r_)); a(f"s_sleep {PST}")
        a.label(f"{pfx}_P{n}")
        for i in range(depth):
            a(rd(R[i-1]))
            if i == 0: a(f"""
            s_sub_u32 {s(sT)}, {s(sT)}, 1
            s_cmp_eq_u32 {s(sT)}, 0
            s_cbranch_scc1 {pfx}_Q{n}
            """)
            a(f"""
            s_waitcnt vmcnt({depth-1})
            v_cmp_gt_u32 vcc, {count}, {v(R[i])}
            s_cbranch_vccz {pfx}_Q{n}
            """)
        if depth == 1: a(f"s_sleep {PSL}")
        a(f"s_branch {pfx}_P{n}")
        a.label(f"{pfx}_Q{n}")
        a("s_mov_b64 exec, -1")
        if depth == 1 or not everyone: a("s_waitcnt vmcnt(0)")
        vm.q = []
        if not everyone:
            arrive(); await_()
    def mm4(wreg, breg, first, keep0):
        for u in (1, 2, 3, 0):
            c = "0" if (first and not (keep0 and u == 0)) else v(ACC+16*u, 16)
            a(f"v_mfma_f32_32x32x16_bf16 {v(ACC+16*u,16)}, {v(wreg+4*(u&1),4)}, {v(breg+4*(u>>1),4)}, {c}")
    def reduce4(between=None):
        lo()
        for u in (1, 2, 3):
            for q in range(4): a(f"ds_write_b128 {v(vDUMP)}, {v(ACC+16*u+4*q,4)} offset:{(u-1)*4096+q*1024}")
        hi()
        arrive()
        if between: between()
        await_()
        for u in (1, 2, 3):
            for q in range(4): a(f"ds_read_b128 {v(ACC+16*u+4*q,4)}, {v(vRA[u-1])} offset:{q*1024}")
        for u in (1, 2, 3):
            a(f"s_waitcnt lgkmcnt({4*(3-u)})")
            for j in range(0, 16, 2): a(f"v_pk_add_f32 {v(ACC+j,2)}, {v(ACC+j,2)}, {v(ACC+16*u+j,2)}")
    def w3dma(slot0, per, i):
        a(f"""
        s_mul_i32 {s(sT)}, {s(sC)}, {per}
        s_add_u32 {s(sT)}, {s(sT)}, {slot0+i}
        s_add_u32 {s(sT2)}, {s(sT)}, {s(sR2)}
        s_and_b32 {s(sT2)}, {s(sT2)}, 31
        s_mul_i32 {s(sT)}, {s(sT)}, 3072
        s_add_u32 m0, {s(sT)}, {BR}
        s_mul_i32 {s(sT2)}, {s(sT2)}, {44*1024}
        s_add_u32 {s(sT2)}, {s(sT2)}, {s(sWB)}
        """)
        for f in range(3): vm.op(f"buffer_load_dwordx4 {v(vL16)}, {s(sWS,4)}, {s(sT2)} offen offset:{1024*f} {P1F} lds", "w3")
    if os.environ.get("NOCHAIN"): a("s_endpgm")
    if MERGE:
        a(f"""
        s_lshl_b32 {s(sT)}, {s(sT64)}, 6
        s_add_u32 {s(sT2)}, {s(sT)}, 65
        s_min_u32 {s(sT2)}, {s(sT2)}, 2047
        s_max_u32 {s(sT)}, {s(sT)}, 2
        s_sub_u32 {s(sT)}, {s(sT)}, 2
        s_lshr_b32 {s(sT)}, {s(sT)}, 7
        s_lshr_b32 {s(sT2)}, {s(sT2)}, 7
        s_add_u32 {s(sT)}, {s(sT)}, {C_HR}
        s_add_u32 {s(sT2)}, {s(sT2)}, {C_HR}
        s_add_u32 {s(sT3)}, {s(sJ)}, {C_W2}
        v_mov_b32 {v(vT2)}, {s(sT)}
        v_mov_b32 {v(vT3)}, 8
        v_writelane_b32 {v(vT2)}, {s(sT2)}, 1
        v_writelane_b32 {v(vT3)}, 4, 2
        v_writelane_b32 {v(vT2)}, {s(sT3)}, 2
        s_mov_b32 {s(sT2)}, 0x{FLG:x}
        v_lshlrev_b32 {v(vT2)}, {FSH}, {v(vT2)}
        """)
        poll(v(vT3), vT2, 3)
        if BDELAY and not os.environ.get("NOATT"): await_(GO_A, 1, addr=vZ)
        for st in range(LA1): load1(st)
    stamp(a, 1)
    XA, XB, C3 = WF(0, 0), WF(0, 1), BIG+120
    for st in range(8):
        if st+LA1 < 8: load1(st+LA1)
        if st == 8-LA1:
            a(f"""
            s_mov_b32 {s(sT2)}, 0x{ST1:x}
            """)
            vm.op(f"buffer_load_dwordx4 {v(XA,4)}, {v(vXO)}, {s(sX,4)}, 0 offen", "x")
            vm.op(f"buffer_load_dwordx4 {v(XB,4)}, {v(vXO)}, {s(sX,4)}, 0 offen offset:32", "x")
            vm.op(f"buffer_load_dwordx2 {v(STv,2)}, {v(vSTO)}, {s(sWS,4)}, {s(sT2)} offen {P1F}", "x")
        if st == 7 and MERGE:
            a(f"""
            s_mul_i32 {s(sT)}, {s(sM16)}, 3
            s_add_u32 {s(sT2)}, {s(sT)}, 2
            s_lshr_b32 {s(sT)}, {s(sT)}, 1
            s_lshr_b32 {s(sT2)}, {s(sT2)}, 1
            s_min_u32 {s(sT)}, {s(sT)}, 21
            s_min_u32 {s(sT2)}, {s(sT2)}, 21
            s_add_u32 {s(sT)}, {s(sT)}, {C_W3}
            s_add_u32 {s(sT2)}, {s(sT2)}, {C_W3}
            v_mov_b32 {v(vT2)}, {s(sT)}
            v_mov_b32 {v(vT3)}, 4
            v_writelane_b32 {v(vT2)}, {s(sT2)}, 1
            s_add_u32 {s(sT)}, {s(sJ)}, {C_WO}
            s_add_u32 {s(sT2)}, {s(sJ)}, {C_W4}
            v_writelane_b32 {v(vT3)}, 11, 3
            v_writelane_b32 {v(vT2)}, {s(sT)}, 2
            v_mov_b32 {v(vPK)}, 0
            v_writelane_b32 {v(vT2)}, {s(sT2)}, 3
            s_mov_b32 {s(sT2)}, 0x{FLG:x}
            v_lshlrev_b32 {v(vT2)}, {FSH}, {v(vT2)}
            s_cmp_eq_u32 {s(sC)}, 0
            s_cselect_b32 {s(sT2)}, {s(sT2)}, 0x40000000
            s_mov_b64 exec, 15
            """)
            vm.op(f"buffer_atomic_add {v(vPK)}, {v(vT2)}, {s(sWS,4)}, {s(sT2)} offen sc0 sc1", "x")
            a("s_mov_b64 exec, -1")
        vm.wait(f"a{st}")
        mm4(BIG+16*st, BIG+16*st+8, st == 0, False)
    hi()
    if MERGE:
        a(f"v_mov_b32 {v(vT0)}, 0x{SC_N+8:x}")
        await_(0, 9, addr=vT0)
    stamp(a, 2)
    XF = BIG
    def resid():
        vm.wait("x")
        if MERGE:
            a(f"""
            s_cmp_lg_u32 {s(sC)}, 0
            s_cbranch_scc1 CH_PKOK
            s_mov_b64 exec, 15
            v_cmp_gt_u32 vcc, {v(vT3)}, {v(vPK)}
            s_mov_b64 exec, -1
            s_cbranch_vccz CH_PKOK
            s_mov_b32 {s(sT2)}, 0x{FLG:x}
            """)
            poll(v(vT3), vT2, 4, True)
            a.label("CH_PKOK")
        a(f"""
        v_permlane32_swap_b32 {v(XA)}, {v(XA+2)}
        v_permlane32_swap_b32 {v(XA+1)}, {v(XA+3)}
        v_permlane32_swap_b32 {v(XB)}, {v(XB+2)}
        v_permlane32_swap_b32 {v(XB+1)}, {v(XB+3)}
        v_mul_f32 {v(STv)}, {v(STv)}, {v(STv+1)}
        v_sub_f32 {v(STv+2)}, 0, {v(STv)}
        v_sub_f32 {v(STv+3)}, 0, {v(STv)}
        v_mov_b32 {v(STv)}, {v(STv+1)}
        """)
        for j in range(8):
            a(f"v_lshlrev_b32 {v(XF+2*j)}, 16, {v(XA+j)}")
            a(f"v_and_b32 {v(XF+2*j+1)}, 0xffff0000, {v(XA+j)}")
        for j in range(0, 16, 2): a(f"v_pk_fma_f32 {v(XF+16+j,2)}, {v(XF+j,2)}, {v(STv,2)}, {v(STv+2,2)}")
        for j in range(0, 16, 2): a(f"v_pk_add_f32 {v(ACC+j,2)}, {v(ACC+j,2)}, {v(XF+16+j,2)}")
    reduce4(resid)
    stamp(a, 3)
    arrive()
    for j in range(8): a(f"v_cvt_pk_bf16_f32 {v(XF+16+j)}, {v(ACC+2*j)}, {v(ACC+2*j+1)}")
    a(f"""
    s_lshl_b32 {s(sT3)}, {s(sJ)}, 1
    s_add_u32 {s(sT3)}, {s(sT3)}, {s(sFT)}
    s_lshl_b32 {s(sT)}, {s(sT3)}, 11
    s_lshl_b32 {s(sT2)}, {s(sTT)}, 15
    s_add_u32 {s(sT)}, {s(sT)}, {s(sT2)}
    s_add_u32 {s(sT)}, {s(sT)}, 0x{X1F:x}
    """)
    if CANARY:
        a(f"""
        s_lshl_b32 {s(sT2)}, {s(sJ)}, 2
        s_add_u32 {s(sT2)}, {s(sT2)}, {s(sC)}
        s_lshl_b32 {s(sT2)}, {s(sT2)}, 10
        s_lshl_b32 {s(sSO)}, {s(sT64)}, 16
        s_add_u32 {s(sT2)}, {s(sT2)}, {s(sSO)}
        s_add_u32 {s(sT2)}, {s(sT2)}, 0x{OF:x}
        s_add_u32 {s(sSO)}, {s(sT2)}, 0x8000
        """)
        for j in range(4): a(f"v_mov_b32 {v(XF+32+j)}, -1")
        for r_ in (sT2, sSO): vm.op(f"buffer_store_dwordx4 {v(XF+32,4)}, {v(vL16)}, {s(sWS,4)}, {s(r_)} offen sc1", "st")
    vm.op(f"buffer_store_dwordx4 {v(XF+16,4)}, {v(vL16)}, {s(sWS,4)}, {s(sT)} offen {STF}", "st")
    vm.op(f"buffer_store_dwordx4 {v(XF+20,4)}, {v(vL16)}, {s(sWS,4)}, {s(sT)} offen offset:1024 {STF}", "st")
    a(f"v_pk_add_f32 {v(XR,2)}, {v(ACC,2)}, {v(ACC+2,2)}")
    a(f"v_pk_mul_f32 {v(XR+2,2)}, {v(ACC,2)}, {v(ACC,2)}")
    a(f"v_pk_fma_f32 {v(XR+2,2)}, {v(ACC+2,2)}, {v(ACC+2,2)}, {v(XR+2,2)}")
    for j in range(4, 16, 2):
        a(f"v_pk_add_f32 {v(XR,2)}, {v(XR,2)}, {v(ACC+j,2)}")
        a(f"v_pk_fma_f32 {v(XR+2,2)}, {v(ACC+j,2)}, {v(ACC+j,2)}, {v(XR+2,2)}")
    a(f"v_add_f32 {v(XR)}, {v(XR)}, {v(XR+1)}")
    a(f"v_add_f32 {v(XR+1)}, {v(XR+2)}, {v(XR+3)}")
    halves_sum(a, XR, vT0); halves_sum(a, XR+1, vT1)
    a(f"""
    s_lshl_b32 {s(sT)}, {s(sT3)}, 14
    s_add_u32 {s(sT)}, {s(sT)}, 0x{ST2:x}
    """)
    vm.op(f"buffer_store_dwordx2 {v(XR,2)}, {v(vSTO)}, {s(sWS,4)}, {s(sT)} offen {STF}", "st")
    for j in range(0, 16, 2): a(f"v_pk_add_f32 {v(ACC+j,2)}, {v(ACC+j,2)}, {v(XF+j,2)}")
    await_()
    stamp(a, 4)
    vm.wait("st")
    stamp(a, 5)
    signal(0)
    lo()
    a(f"""
    s_mul_i32 {s(sT)}, {s(sM16)}, 384
    s_add_u32 {s(sT)}, {s(sT)}, 0x{CS3P:x}
    v_lshlrev_b32 {v(vT2)}, 3, {v(vL)}
    """)
    for kp in range(4):
        vm.op(f"buffer_load_dwordx2 {v(C3+2*kp,2)}, {v(vT2)}, {s(sWS,4)}, {s(sT)} offen {P1F}", "c3")
        if kp < 3: a(f"s_add_u32 {s(sT)}, {s(sT)}, 6144")
    for i in range(8): w3dma(0, 8, i)
    a(f"""
    s_lshl_b32 {s(sT)}, {s(sTG)}, 7
    s_lshl_b32 {s(sT2)}, {s(sC)}, 5
    s_add_u32 {s(sT)}, {s(sT)}, {s(sT2)}
    v_add_u32 {v(vT3)}, {s(sT)}, {v(vI)}
    v_lshlrev_b32 {v(vT3)}, 3, {v(vT3)}
    v_lshl_add_u32 {v(vT3)}, {v(vHI)}, 17, {v(vT3)}
    s_lshl_b32 {s(sB2)}, {s(sT)}, 10
    s_add_u32 {s(sB2)}, {s(sB2)}, 0x{X1F:x}
    s_mov_b32 {s(sT2)}, {s(sFL)}
    """)
    stamp(a, 6)
    poll(16, depth=PD1)
    stamp(a, 7)
    A3 = ACC+16; S2 = WF(1, 0) - 4
    def xload(kb):
        a(f"""
        s_and_b32 {s(sR2)}, {s(sR2)}, 31
        s_lshl_b32 {s(sT)}, {s(sR2)}, 10
        s_add_u32 {s(sT)}, {s(sT)}, {s(sB2)}
        s_add_u32 {s(sR2)}, {s(sR2)}, 1
        """)
        vm.op(f"buffer_load_dwordx4 {v(BIG+4*kb,4)}, {v(vL16)}, {s(sWS,4)}, {s(sT)} offen {LDF}", f"x{kb}")
    LA = 8
    a(f"s_mov_b32 {s(sT2)}, 0x{ST2:x}")
    for t in range(8):
        vm.op(f"buffer_load_dwordx2 {v(S2+2*t,2)}, {v(vT3)}, {s(sWS,4)}, {s(sT2)} offen {LDF}", "s2")
        a(f"s_add_u32 {s(sT2)}, {s(sT2)}, 0x4000")
    for kb in range(LA): xload(kb)
    hi()
    a(f"""
    v_pk_add_f32 {v(C3,2)}, {v(C3,2)}, {v(C3+2,2)}
    v_pk_add_f32 {v(C3+4,2)}, {v(C3+4,2)}, {v(C3+6,2)}
    v_pk_add_f32 {v(C3,2)}, {v(C3,2)}, {v(C3+4,2)}
    ds_write_b64 {v(vT2)}, {v(C3,2)} offset:{CS3L}
    """)
    vm.wait("s2")
    for t in range(1, 8): a(f"v_pk_add_f32 {v(S2,2)}, {v(S2,2)}, {v(S2+2*t,2)}")
    a(f"v_mov_b32 {v(XR)}, {v(S2)}")
    a(f"v_mov_b32 {v(XR+2)}, {v(S2+1)}")
    def t3(kb):
        for f in range(3): a(f"ds_read_b128 {v(WF(kb&1,f),4)}, {v(v3A[kb>>4])} offset:{(kb&15)*3072+1024*f}")
    t3(0)
    halves_sum(a, XR, vT0); halves_sum(a, XR+2, vT1)
    a(f"""
    v_mul_f32 {v(XR)}, {fl(-1/512)}, {v(XR)}
    v_mul_f32 {v(vT0)}, {v(XR)}, {v(XR)}
    v_mov_b32 {v(vT1)}, {fl(1/512)}
    v_fma_f32 {v(vT0)}, {v(XR+2)}, {v(vT1)}, -{v(vT0)}
    v_max_f32 {v(vT0)}, 0, {v(vT0)}
    v_add_f32 {v(vT0)}, {fl(EPS)}, {v(vT0)}
    v_rsq_f32 {v(XR+2)}, {v(vT0)}
    v_mov_b32 {v(XR+1)}, {v(XR)}
    """)
    gelu_consts(a, XR+2, STv, STv+2, 30)
    lo()
    for kb in range(32):
        if kb < 31: t3(kb+1)
        if kb+LA < 32: xload(kb+LA)
        vm.wait(f"x{kb}")
        a(f"s_waitcnt lgkmcnt({3 if kb < 31 else 0})")
        for f in range(3):
            a(f"v_mfma_f32_32x32x16_bf16 {v(A3+16*f,16)}, {v(WF(kb&1,f),4)}, {v(BIG+4*kb,4)}, {'0' if kb == 0 else v(A3+16*f,16)}")
    hi()
    stamp(a, 8)
    NW, NG = 10, 5
    WR = lambda st: 96 + 8*(st % NW)
    GR = lambda st: 176 + 8*(st % NG)
    CSV = 176; PK = 216; TMP = 240; vC1, vC2, vONE = STv, STv+2, 8
    a(f"""
    s_and_b32 {s(sT)}, {s(sT64)}, 3
    s_mul_i32 {s(sT)}, {s(sT)}, 5
    s_mul_i32 {s(sR1)}, {s(sJ)}, 3
    s_add_u32 {s(sR1)}, {s(sR1)}, {s(sT)}
    s_sub_u32 {s(sT)}, {s(sR1)}, 22
    s_cmp_ge_u32 {s(sR1)}, 22
    s_cselect_b32 {s(sR1)}, {s(sT)}, {s(sR1)}
    s_mov_b32 {s(sR2)}, {s(sR1)}
    s_mul_i32 {s(sB2)}, {s(sC)}, 22
    v_lshlrev_b32 {v(vT0)}, 4, {v(vHI)}
    s_lshl_b32 {s(sT)}, {s(sTG)}, 2
    s_add_u32 {s(sT)}, {s(sT)}, {s(sC)}
    s_mul_i32 {s(sT3)}, {s(sT)}, {96*1024}
    s_mul_i32 {s(sT)}, {s(sM16)}, 6144
    s_add_u32 {s(sT3)}, {s(sT3)}, {s(sT)}
    s_add_u32 {s(sT3)}, {s(sT3)}, 0x{GF:x}
    s_add_u32 {s(sWB)}, {s(sT3)}, 4096
    """)
    vONE = 30
    def rot22(r):
        a(f"""
        s_add_u32 {s(sT)}, {s(r)}, {s(sB2)}
        s_add_u32 {s(r)}, {s(r)}, 1
        s_cmp_eq_u32 {s(r)}, 22
        s_cselect_b32 {s(r)}, 0, {s(r)}
        """)
    def w4load(st): rot22(sR1); wload(WR(st), W4F, f"w{st}")
    def gload(st):
        rot22(sR2)
        a(f"s_lshl_b32 {s(sT2)}, {s(sT)}, 10")
        for b in (0, 1): vm.op(f"buffer_load_dwordx4 {v(GR(st)+4*b,4)}, {v(vH[b])}, {s(sWS,4)}, {s(sT2)} offen {LDF}", f"g{st}")
    def csread(g):
        for q in (0, 1): a(f"ds_read_b128 {v(CSV+8*(g&1)+4*q,4)}, {v(vT0)} offset:{CS3L+64*g+32*q}")
    csread(0)
    for g in range(6):
        xs = [A3+8*g+j for j in range(8)]
        if g < 5: csread(g+1)
        a(f"s_waitcnt lgkmcnt({2 if g < 5 else 0})")
        for j in range(0, 8, 2): a(f"v_pk_fma_f32 {v(xs[j],2)}, {v(CSV+8*(g&1)+j,2)}, {v(XR,2)}, {v(xs[j],2)}")
        gelu_scaled(a, xs, [TMP+j for j in range(8)], vC1, vC2, vONE)
        for j in range(4): a(f"v_cvt_pk_bf16_f32 {v(PK+4*g+j)}, {v(xs[2*j])}, {v(xs[2*j+1])}")
        vm.op(f"buffer_store_dwordx4 {v(PK+4*g,4)}, {v(vL16)}, {s(sWS,4)}, {s(sT3 if g < 4 else sWB)} offen offset:{1024*(g&3)} {STF}", "st")
        if g < 4: w4load(g)
    stamp(a, 9)
    a(f"""
    s_mul_i32 {s(sT)}, {s(sTT)}, {96*1024}
    s_add_u32 {s(sT)}, {s(sT)}, 0x{GF:x}
    s_xor_b32 {s(sT2)}, {s(sTT)}, 1
    s_mul_i32 {s(sT2)}, {s(sT2)}, {96*1024}
    s_add_u32 {s(sT2)}, {s(sT2)}, 0x{GF:x}
    v_add_u32 {v(vH[0])}, {s(sT)}, {v(vL16)}
    v_add_u32 {v(vH[1])}, {s(sT2)}, {v(vL16)}
    """)
    vm.wait("st")
    stamp(a, 10)
    signal(1)
    lo()
    for st in range(4, NW): w4load(st)
    a(f"s_add_u32 {s(sT2)}, {s(sFL)}, {16 << FSH}")
    poll(16, depth=PD1)
    stamp(a, 11)
    for st in range(NG-1): gload(st)
    for st in range(22):
        if st+NG-1 < 22: gload(st+NG-1)
        vm.wait(f"w{st}", f"g{st}")
        mm4(WR(st), GR(st), st == 0, True)
        if st+NW < 22: w4load(st+NW)
        if st == 11:
            a(f"""
            s_mov_b32 {s(sR1)}, {s(sROT)}
            s_lshl_b32 {s(sWB)}, {s(sT64)}, 2
            s_add_u32 {s(sWB)}, {s(sWB)}, {s(sC)}
            s_lshl_b32 {s(sWB)}, {s(sWB)}, {FSH}
            s_add_u32 {s(sWB)}, {s(sWB)}, 0x{cnt(C_S3):x}
            v_mov_b32 {v(vPK)}, 0
            """)
        if 12 <= st < 20: rot8(sR1); wload(WR(st), WOF, "wo")
        if st == 19:
            a("s_mov_b64 exec, 1")
            vm.op(f"buffer_atomic_umax {v(vPK)}, {v(vZ)}, {s(sWS,4)}, {s(sWB)} offen sc0 sc1", "wo")
            a("s_mov_b64 exec, -1")
    stamp(a, 12)
    WO = lambda st: WR(12+st)
    OO = lambda st: 176 + 8*st
    a(f"""
    s_lshl_b32 {s(sT)}, {s(sTT)}, 15
    s_add_u32 {s(sT)}, {s(sT)}, 0x{OF:x}
    v_add_u32 {v(vH[0])}, {s(sT)}, {v(vL16)}
    v_xor_b32 {v(vH[1])}, 0x8000, {v(vH[0])}
    """)
    vm.wait("wo")
    if not os.environ.get("NOATT"):
        a(f"""
        v_readfirstlane_b32 {s(sT)}, {v(vPK)}
        s_mov_b32 {s(sT2)}, {s(sWB)}
        s_cmp_ge_u32 {s(sT)}, 8
        s_cbranch_scc1 CH_OGO
        """)
        await_(PROG_A, 17, 8)
        poll(8, everyone=True, depth=PD3)
        a.label("CH_OGO")
    stamp(a, 13)
    hi()
    def oloads(first):
        a(f"s_add_u32 {s(sR1)}, {s(sROT)}, {first}")
        for st in range(first, 8):
            rot8(sR1)
            a(f"s_lshl_b32 {s(sT2)}, {s(sT)}, 10")
            for b in (0, 1): vm.op(f"buffer_load_dwordx4 {v(OO(st)+4*b,4)}, {v(vH[b])}, {s(sWS,4)}, {s(sT2)} offen {LDF}", f"o{st}")
    a(f"s_mov_b32 {s(sT3)}, {SPIN}")
    oloads(0)
    for st in range(8):
        a.label(f"CH_O{st}")
        vm.wait(f"o{st}", "wo")
        if CANARY:
            o = OO(st)
            a(f"""
            v_max3_u32 {v(vT0)}, {v(o)}, {v(o+1)}, {v(o+2)}
            v_max3_u32 {v(vT1)}, {v(o+3)}, {v(o+4)}, {v(o+5)}
            v_max3_u32 {v(vT0)}, {v(vT0)}, {v(o+6)}, {v(o+7)}
            v_max_u32 {v(vT0)}, {v(vT0)}, {v(vT1)}
            v_cmp_eq_u32 vcc, -1, {v(vT0)}
            s_cbranch_vccnz CH_R{st}
            """)
            a.label(f"CH_G{st}")
        mm4(WO(st), OO(st), False, True)
    reduce4()
    Y = BIG
    for j in range(8): a(f"v_cvt_pk_bf16_f32 {v(Y+j)}, {v(ACC+2*j)}, {v(ACC+2*j+1)}")
    for b in (0, 1):
        a(f"v_permlane32_swap_b32 {v(Y+4*b)}, {v(Y+4*b+2)}")
        a(f"v_permlane32_swap_b32 {v(Y+4*b+1)}, {v(Y+4*b+3)}")
    for b in (0, 1): a(f"buffer_store_dwordx4 {v(Y+4*b,4)}, {v(vXO)}, {s(sOUT,4)}, 0 offen offset:{32*b} {OUTF}")
    if PROF:
        a("s_waitcnt vmcnt(0)")
        stamp(a, 1)
    stamp_flush(a, 1, sW, pWS, "B")
    a("s_endpgm")
    if CANARY:
        for st in range(8):
            a.label(f"CH_R{st}")
            a(f"""
            s_cmp_eq_u32 {s(sT3)}, 0
            s_cbranch_scc1 CH_G{st}
            s_sub_u32 {s(sT3)}, {s(sT3)}, 1
            """)
            oloads(st)
            a(f"s_branch CH_O{st}")

def gen_k2(a=None):
    own = a is None
    if own:
        a = Asm()
        a("s_cmp_ge_u32 s2, 256")
        a("s_cbranch_scc1 K2_END")
    stamp_init(a); stamp(a, 0)
    a(f"""
    s_load_dwordx2 s[26:27], s[0:1], {P_WS}
    s_load_dwordx2 s[16:17], s[0:1], {A_X}
    s_load_dwordx2 s[18:19], s[0:1], {P_OUT}
    v_lshrrev_b32 v2, 6, v0
    v_and_b32 v1, 63, v0
    v_readfirstlane_b32 s28, v2
    v_mov_b32 {v(vBIG)}, {fl(2.0**126)}
    s_cmp_ge_u32 s28, 4
    s_cbranch_scc1 K2_CHAIN
    """)
    attention(a)
    a(".p2align 6")
    a.label("K2_CHAIN")
    chain(a)
    a.label("K2_END" if own else "K1_END")
    a("s_endpgm")
    lines, added = a.done()
    return kernel_text("k2_mix_kernel" if own else NAME, lines, 256, 102)

NAME = "parallel_sum__mha_block__mixer_s_mlp__prompt_kernel"
def gen_merged():
    import k1
    a = Asm()
    k1.gen_k1(a)
    return gen_k2(a)
```

```python
import struct
from asmlib import *

QF, KVF, HF, X1F, OF, GF = 0x000000, 0x200000, 0x600000, 0x800000, 0xA00000, 0xC00000
GF_SIZE = 64*96*1024
YB, ST1, ST2, FLG = 0x1200000, 0x1600000, 0x1610000, 0x1B00000
import os
FSH = int(os.environ.get('FSH', 8))
MERGE = int(os.environ.get('MERGE', 1))
C_S1, C_S2, C_HB, C_HR, C_W3, C_W2, C_WO, C_W4, C_S3 = 0, 16, 32, 56, 72, 96, 104, 112, 128
C_ST = 256
SC_N = 0x27f00
def cnt(i): return FLG + (i << FSH)
CS3P = 0x1668000
W2F, WOF, W3F, W4F = 0x1700000, 0x1780000, 0x1800000, 0x1980000
WS_USED = 0x1C00000
A_X, A_WQKV, A_WO, B_W1, B_W2, B_W3, B_W4, P_OUT, P_DBG, P_WS = 0, 8, 16, 32, 40, 48, 56, 64, 72, 80

def f2u(x): return struct.unpack("<I", struct.pack("<f", x))[0]
def fl(x): return f"0x{f2u(x):08x}"
LOG2E = 1.4426950408889634
GC1 = 2*0.7978845608028654*LOG2E
GC2 = GC1*0.044715
EPS = 1e-5
ONES = 0x3f803f80

def srd(a, d, base, off, size):
    if off:
        a(f"s_add_u32 {s(d)}, {s(base)}, 0x{off:x}")
        a(f"s_addc_u32 {s(d+1)}, {s(base+1)}, 0")
    else:
        a(f"s_mov_b32 {s(d)}, {s(base)}")
        a(f"s_mov_b32 {s(d+1)}, {s(base+1)}")
    a(f"s_mov_b32 {s(d+2)}, 0x{size:x}")
    a(f"s_mov_b32 {s(d+3)}, 0x20000")

def gelu(a, xs, tmp, vnc1):
    for x, t in zip(xs, tmp): a(f"v_mul_f32 {v(t)}, {v(x)}, {v(x)}")
    for x, t in zip(xs, tmp): a(f"v_fmamk_f32 {v(t)}, {v(t)}, {fl(-GC2)}, {v(vnc1)}")
    for x, t in zip(xs, tmp): a(f"v_mul_f32 {v(t)}, {v(t)}, {v(x)}")
    for x, t in zip(xs, tmp): a(f"v_exp_f32 {v(t)}, {v(t)}")
    for x, t in zip(xs, tmp): a(f"v_add_f32 {v(t)}, 1.0, {v(t)}")
    for x, t in zip(xs, tmp): a(f"v_rcp_f32 {v(t)}, {v(t)}")
    for x, t in zip(xs, tmp): a(f"v_mul_f32 {v(x)}, {v(x)}, {v(t)}")

def gelu_pk(a, xs, tmp, vC1, vC2, vONE):
    P = range(0, len(xs), 2)
    for j in P: a(f"v_pk_mul_f32 {v(tmp[j],2)}, {v(xs[j],2)}, {v(xs[j],2)}")
    for j in P: a(f"v_pk_fma_f32 {v(tmp[j],2)}, {v(tmp[j],2)}, {v(vC2,2)}, {v(vC1,2)}")
    for j in P: a(f"v_pk_mul_f32 {v(tmp[j],2)}, {v(tmp[j],2)}, {v(xs[j],2)}")
    for t in tmp: a(f"v_exp_f32 {v(t)}, {v(t)}")
    for j in P: a(f"v_pk_add_f32 {v(tmp[j],2)}, {v(tmp[j],2)}, {v(vONE,2)}")
    for t in tmp: a(f"v_rcp_f32 {v(t)}, {v(t)}")
    for j in P: a(f"v_pk_mul_f32 {v(xs[j],2)}, {v(xs[j],2)}, {v(tmp[j],2)}")

def gelu_scaled(a, xs, tmp, vA, vB, vI):
    P = range(0, len(xs), 2)
    for j in P: a(f"v_pk_mul_f32 {v(tmp[j],2)}, {v(xs[j],2)}, {v(xs[j],2)}")
    for j in P: a(f"v_pk_fma_f32 {v(tmp[j],2)}, {v(tmp[j],2)}, {v(vB,2)}, {v(vA,2)}")
    for j in P: a(f"v_pk_mul_f32 {v(tmp[j],2)}, {v(tmp[j],2)}, {v(xs[j],2)}")
    for t in tmp: a(f"v_exp_f32 {v(t)}, {v(t)}")
    for j in P: a(f"v_pk_fma_f32 {v(tmp[j],2)}, {v(tmp[j],2)}, {v(vI,2)}, {v(vI,2)}")
    for t in tmp: a(f"v_rcp_f32 {v(t)}, {v(t)}")
    for j in P: a(f"v_pk_mul_f32 {v(xs[j],2)}, {v(xs[j],2)}, {v(tmp[j],2)}")

def gelu_consts(a, vR, vA, vB, vI):
    a(f"""
    v_rcp_f32 {v(vI)}, {v(vR)}
    v_mul_f32 {v(vA)}, {fl(-GC1)}, {v(vR)}
    v_mul_f32 {v(vB)}, {v(vR)}, {v(vR)}
    v_mul_f32 {v(vB)}, {v(vB)}, {v(vR)}
    v_mul_f32 {v(vB)}, {fl(-GC2)}, {v(vB)}
    v_mov_b32 {v(vI+1)}, {v(vI)}
    v_mov_b32 {v(vA+1)}, {v(vA)}
    v_mov_b32 {v(vB+1)}, {v(vB)}
    """)

def halves_sum(a, x, t):
    a(f"v_mov_b32 {v(t)}, {v(x)}")
    a(f"v_permlane32_swap_b32 {v(x)}, {v(t)}")
    a(f"v_add_f32 {v(x)}, {v(x)}, {v(t)}")

def kernel_text(name, lines, vgpr, sgpr=100):
    head = [f".globl {name}", ".p2align 8", f".type {name},@function", f"{name}:"]
    desc = [".p2align 6", f".amdhsa_kernel {name}", f"  .amdhsa_next_free_vgpr {vgpr}", f"  .amdhsa_next_free_sgpr {sgpr}",
            f"  .amdhsa_accum_offset {(vgpr+3)//4*4}", "  .amdhsa_group_segment_fixed_size 0", "  .amdhsa_kernarg_size 88",
            "  .amdhsa_user_sgpr_count 2", "  .amdhsa_user_sgpr_kernarg_segment_ptr 1", "  .amdhsa_system_sgpr_workgroup_id_x 1",
            "  .amdhsa_float_denorm_mode_32 3", ".end_amdhsa_kernel"]
    return head + lines, desc


class VM:
    def __init__(self, a): self.a = a; self.q = []
    def op(self, text, tag=None):
        self.a(text); self.q.append(tag)
    def wait(self, *tags):
        last = max((i for i, t in enumerate(self.q) if t in tags), default=-1)
        if last < 0: return
        n = len(self.q) - 1 - last
        assert n <= 63
        self.a(f"s_waitcnt vmcnt({n})")
        self.q = self.q[last+1:]


import os
PROF = int(os.environ.get("PROF", "0"))
TSB = 0x2000000
def stamp(a, i):
    if PROF: a(f"{'s_memtime' if PROF == 2 else 's_memrealtime'} {s(64+2*i,2)}")
def stamp_init(a):
    if PROF:
        for i in range(64, 96, 2): a(f"s_mov_b64 {s(i,2)}, 0")
        a("s_getreg_b32 s94, hwreg(HW_REG_HW_ID)")
        a("s_memtime s[96:97]")
def stamp_flush(a, kidx, sWave, pWS, role=''):
    if not PROF: return
    if PROF == 3:
        sel = {0: [(0, 1), (3, 2), (11, 3), (12, 4), (13, 5)], "A": [(9, 6), (2, 7), (3, 8)], "B": [(2, 9), (7, 10), (8, 11), (11, 12), (12, 13), (13, 14), (1, 15)]}[role if kidx else 0]
        lab = f"PF3_{kidx}_{role}"
        a(f"""
        s_mul_i32 s97, s2, 13
        s_and_b32 s97, s97, 0xf0
        s_cmp_lg_u32 s97, 0x50
        s_cbranch_scc1 {lab}
        s_load_dwordx2 s[96:97], s[0:1], {P_DBG}
        s_waitcnt lgkmcnt(0)
        s_mov_b64 exec, -1
        v_mov_b32 v251, 0
        s_not_b32 s64, s64
        """)
        for st_, w_ in sel: a(f"v_writelane_b32 v251, {s(64+2*st_)}, {w_}")
        a(f"""
        s_mov_b32 s92, s96
        s_mov_b32 s93, s97
        s_mov_b32 s94, 256
        s_mov_b32 s95, 0x20000
        v_and_b32 v250, 63, v0
        v_lshlrev_b32 v250, 2, v250
        s_mov_b64 exec, 0xfffe
        buffer_atomic_umax v251, v250, s[92:95], 0 offen sc1
        s_mov_b64 exec, -1
        """)
        a.label(lab)
        return
    a("s_memtime s[92:93]")
    a("s_waitcnt lgkmcnt(0)")
    a("s_sub_u32 s92, s92, s96")
    a("s_mov_b64 exec, -1")
    a("v_mov_b32 v251, 0")
    for i in range(16): a(f"v_writelane_b32 v251, {s(64+2*i)}, {i}")
    a(f"""
    s_add_u32 s64, {s(pWS)}, 0x{TSB + kidx*0x40000:x}
    s_addc_u32 s65, {s(pWS+1)}, 0
    s_mov_b32 s66, 0x40000
    s_mov_b32 s67, 0x20000
    s_lshl_b32 s68, s2, 3
    s_add_u32 s68, s68, {s(sWave)}
    s_lshl_b32 s68, s68, 6
    v_and_b32 v250, 63, v0
    v_lshlrev_b32 v250, 2, v250
    s_mov_b64 exec, 0xffff
    buffer_store_dword v251, v250, s[64:67], s68 offen
    s_mov_b64 exec, -1
    """)
```

```python
from common import *

SC_3, SC_S, SC_C, SC_3P = 0x20000, 0x24000, 0x24800, 0x24c00

K1F = os.environ.get('K1F', 'sc1')

PFC = int(os.environ.get('PFC', 0))
PFT = int(os.environ.get('PFT', 0))
PFN = int(os.environ.get('PFN', 1))
PFE = int(os.environ.get('PFE', 1))
NAME = 'parallel_sum__mha_block__mixer_s_mlp__prompt_kernel' if MERGE else 'k1_proj_kernel'
NCHK = int(os.environ.get('NCHK', 16))
NSIG = int(os.environ.get('NSIG', 9))
STATS = os.environ.get('STATS', 'shared')

def gen_k1(a=None):
    own = a is None
    if own: a = Asm()
    sX, sW, sWS = 8, 12, 16
    pX, pQKV, pW1, pWS = 20, 22, 24, 26
    sW_, sTQ, sFH, sRB, sCB, sHB, sTY, sSTR, sCOL = 28, 29, 30, 31, 32, 33, 34, 35, 36
    sXO, sWO, sM0, sT, sT2, sCH, sSC, sBS, sBO, s8S, s64S = 37, 38, 39, 40, 41, 42, 43, 44, 45, 46, 47
    sP, pA, sKP, sCI, sXB, sPS, sPD, sPR, sNAT = 48, 52, 60, 61, 62, 63, 3, 4, 5
    pWO, pDBG, sRDY, sU, sDB, sJC, sRW = 6, 98, 100, 101, 92, 54, 55
    vL, vT0, vT1, vT2, vT3 = 1, 2, 3, 4, 5
    vX0, vX1, vWD = 6, 7, 8
    vI, vHI, vPA, vPT = 9, 10, 11, 12
    XA = lambda st, k: 16 + st*4 + k
    WA = lambda st, ft: 24 + st*3 + ft
    SEL = 32
    XF = lambda p: 36 + 16*p
    WF = lambda p, ft: 40 + 16*p + 4*ft
    ACC = lambda ft: 84 + 16*ft
    GR = 116
    CSV = 124; PK = 156; TMP = 172
    vMEAN, vR, vR1, vOFF, vTA, vTB, vSUM, vSQ = 180, 182, 184, 185, 186, 187, 188, 189
    vC1, vC2, vONE, W3V, vPF = 190, 192, 194, 196, 204
    a(f"""
    s_cmp_ge_u32 s2, 256
    s_cbranch_scc1 K1_END
    """)
    stamp_init(a); stamp(a, 0)
    if PFE: a(f"""
    s_getpc_b64 {s(sDB,2)}
    s_and_b32 {s(sT)}, s2, 0xf8
    v_lshrrev_b32 {v(vT0)}, 6, v0
    v_add_u32 {v(vT0)}, {s(sT)}, {v(vT0)}
    v_lshlrev_b32 {v(vT0)}, 7, {v(vT0)}
    v_min_u32 {v(vT0)}, K1_END-{NAME}-256, {v(vT0)}
    s_mov_b64 exec, 1
    global_load_dword {v(vPF)}, {v(vT0)}, {s(sDB,2)}
    s_mov_b64 exec, -1
    """)
    a(f"""
    s_load_dwordx4 {s(pX,4)}, s[0:1], {A_X}
    s_load_dwordx2 {s(pW1,2)}, s[0:1], {B_W1}
    s_load_dwordx2 {s(pWS,2)}, s[0:1], {P_WS}
    s_load_dwordx2 {s(pWO,2)}, s[0:1], {A_WO}
    s_load_dwordx2 {s(pA,2)}, s[0:1], {B_W2}
    s_load_dwordx4 {s(pA+4,4)}, s[0:1], {B_W3}
    s_load_dwordx2 {s(pDBG,2)}, s[0:1], {P_DBG}
    v_lshrrev_b32 {v(vT0)}, 6, v0
    v_and_b32 {v(vL)}, 63, v0
    v_readfirstlane_b32 {s(sW_)}, {v(vT0)}
    s_and_b32 {s(sT)}, s2, 3
    s_lshl_b32 {s(sRB)}, {s(sT)}, 2
    s_bfe_u32 {s(sT)}, s2, 0x20003
    s_add_u32 {s(sRB)}, {s(sRB)}, {s(sT)}
    s_lshl_b32 {s(sCH)}, {s(sT)}, 1
    s_bfe_u32 {s(sT)}, s2, 0x10002
    s_lshl_b32 {s(sCB)}, {s(sT)}, 3
    s_lshr_b32 {s(sT2)}, s2, 5
    s_add_u32 {s(sCB)}, {s(sCB)}, {s(sT2)}
    s_add_u32 {s(sCH)}, {s(sCH)}, {s(sT2)}
    s_and_b32 {s(sCH)}, {s(sCH)}, 7
    s_and_b32 {s(sTQ)}, {s(sW_)}, 3
    s_lshr_b32 {s(sFH)}, {s(sW_)}, 2
    s_mul_i32 {s(sT)}, {s(sFH)}, 24
    s_add_u32 {s(sHB)}, {s(sT)}, {s(sCB)}
    s_lshl_b32 {s(sT)}, {s(sCB)}, 1
    s_add_u32 {s(sT)}, {s(sT)}, {s(sFH)}
    s_sub_u32 {s(sT)}, {s(sT)}, 8
    s_cmp_lt_u32 {s(sCB)}, 8
    s_cselect_b32 {s(sHB)}, {s(sHB)}, {s(sT)}
    s_lshr_b32 {s(sTY)}, {s(sHB)}, 3
    s_lshl_b32 {s(sCOL)}, {s(sHB)}, 7
    s_sub_u32 {s(sT)}, {s(sCOL)}, 3072
    s_cmp_eq_u32 {s(sTY)}, 3
    s_cselect_b32 {s(sCOL)}, {s(sT)}, {s(sCOL)}
    s_mov_b32 {s(sSTR)}, 3072
    s_cmov_b32 {s(sSTR)}, 1024
    s_lshl_b32 {s(s8S)}, {s(sSTR)}, 3
    s_lshl_b32 {s(s64S)}, {s(sSTR)}, 6
    v_lshrrev_b32 {v(vT0)}, 3, {v(vL)}
    v_lshrrev_b32 {v(vT1)}, 4, {v(vL)}
    v_and_b32 {v(vT2)}, 7, {v(vL)}
    v_xor_b32 {v(vT3)}, {v(vT2)}, {v(vT1)}
    v_lshlrev_b32 {v(vT3)}, 4, {v(vT3)}
    s_lshl_b32 {s(sT)}, {s(sW_)}, 4
    v_add_u32 {v(vX0)}, {s(sT)}, {v(vT0)}
    v_lshl_add_u32 {v(vX0)}, {v(vX0)}, 10, {v(vT3)}
    v_xor_b32 {v(vX1)}, 64, {v(vX0)}
    v_add_u32 {v(vX1)}, 0x2000, {v(vX1)}
    v_and_b32 {v(vT1)}, 1, {v(vT1)}
    v_lshlrev_b32 {v(vT1)}, 2, {v(vT1)}
    v_xor_b32 {v(vT1)}, {v(vT1)}, {v(vT2)}
    v_lshlrev_b32 {v(vT1)}, 4, {v(vT1)}
    s_lshl_b32 {s(sT)}, {s(sTQ)}, 4
    v_add_u32 {v(vT3)}, {s(sT)}, {v(vT0)}
    v_mul_lo_u32 {v(vWD)}, {v(vT3)}, {s(sSTR)}
    v_add3_u32 {v(vWD)}, {v(vWD)}, {v(vT1)}, {s(sCOL)}
    s_lshl_b32 {s(sXB)}, {s(sRB)}, 17
    s_lshl_b32 {s(sM0)}, {s(sW_)}, 11
    s_waitcnt lgkmcnt(0)
    """)
    srd(a, sX, pX, 0, 0x200000)
    a(f"""
    s_cmp_eq_u32 {s(sTY)}, 3
    s_cselect_b32 {s(sW)}, {s(pW1)}, {s(pQKV)}
    s_cselect_b32 {s(sW+1)}, {s(pW1+1)}, {s(pQKV+1)}
    s_lshl_b32 {s(sW+2)}, {s(sSTR)}, 9
    s_mov_b32 {s(sW+3)}, 0x20000
    """)
    def dma(vm, c, i):
        sl = (c % 4)*32768
        if i == 0:
            a(f"""
            s_lshl_b32 {s(sXO)}, {s(sCH)}, 7
            s_add_u32 m0, {s(sM0)}, {sl}
            s_add_u32 {s(sXO)}, {s(sXO)}, {s(sXB)}
            """)
            vm.op(f"buffer_load_dwordx4 {v(vX0)}, {s(sX,4)}, {s(sXO)} offen lds", c)
        elif i == 1:
            a(f"s_add_u32 m0, {s(sM0)}, {sl+16384}")
            a(f"s_mul_i32 {s(sWO)}, {s(sCH)}, {s(s64S)}")
            vm.op(f"buffer_load_dwordx4 {v(vWD)}, {s(sW,4)}, {s(sWO)} offen lds", c)
        elif i == 2:
            a(f"s_add_u32 m0, {s(sM0)}, {sl+1024}")
            a(f"s_add_u32 {s(sCH)}, {s(sCH)}, 1")
            vm.op(f"buffer_load_dwordx4 {v(vX1)}, {s(sX,4)}, {s(sXO)} offen lds", c)
        else:
            a(f"s_add_u32 m0, {s(sM0)}, {sl+17408}")
            a(f"s_add_u32 {s(sWO)}, {s(sWO)}, {s(s8S)}")
            vm.op(f"buffer_load_dwordx4 {v(vWD)}, {s(sW,4)}, {s(sWO)} offen lds", c)
            a(f"s_and_b32 {s(sCH)}, {s(sCH)}, 7")
    vm0 = VM(a)
    stamp(a, 1)
    SH = STATS == "shared"
    srd(a, sWS, pWS, 0, WS_USED)
    if MERGE:
        a(f"""
        s_cmp_lg_u32 s2, 0
        s_cbranch_scc1 K1_NOINIT
        s_cmp_lg_u32 {s(sW_)}, 7
        s_cbranch_scc1 K1_NOINIT
        v_mov_b32 {v(TMP)}, 0
        v_lshlrev_b32 {v(vTA)}, {FSH}, {v(vL)}
        s_mov_b32 {s(sT)}, 0x{cnt(0):x}
        s_mov_b32 {s(sT2)}, 0x{cnt(64):x}
        buffer_store_dword {v(TMP)}, {v(vTA)}, {s(sWS,4)}, {s(sT)} offen sc1
        buffer_store_dword {v(TMP)}, {v(vTA)}, {s(sWS,4)}, {s(sT2)} offen sc1
        s_mov_b32 {s(sT)}, 0x{cnt(128):x}
        s_mov_b32 {s(sT2)}, 0x{cnt(192):x}
        buffer_store_dword {v(TMP)}, {v(vTA)}, {s(sWS,4)}, {s(sT)} offen sc1
        buffer_store_dword {v(TMP)}, {v(vTA)}, {s(sWS,4)}, {s(sT2)} offen sc1
        s_mov_b32 {s(sT)}, 0x{cnt(256):x}
        buffer_store_dword {v(TMP)}, {v(vTA)}, {s(sWS,4)}, {s(sT)} offen sc1
        """)
        a.label("K1_NOINIT")
    if SH:
        a(f"""
        s_lshl_b32 {s(sRW)}, {s(sRB)}, 4
        s_add_u32 {s(sRW)}, {s(sRW)}, {s(sCB)}
        s_lshl_b32 {s(sRW)}, {s(sRW)}, 3
        s_add_u32 {s(sRW)}, {s(sRW)}, {s(sW_)}
        s_lshl_b32 {s(sT)}, {s(sRW)}, 10
        v_lshlrev_b32 {v(vTA)}, 4, {v(vL)}
        """)
        vm0.op(f"buffer_load_dwordx4 {v(W3V,4)}, {v(vTA)}, {s(sX,4)}, {s(sT)} offen", "row")
    for i in range(4): dma(vm0, 0, i)
    srd(a, sDB, pDBG, 0, 256)
    a(f"""
    s_lshr_b32 {s(sT)}, s2, 3
    s_lshl_b32 {s(sT)}, {s(sT)}, 2
    s_and_b32 {s(sT2)}, s2, 3
    s_add_u32 {s(sT)}, {s(sT)}, {s(sT2)}
    s_add_u32 {s(sU)}, {s(sT)}, 128
    s_cmp_lt_u32 {s(sT)}, 88
    s_cselect_b32 {s(sU)}, {s(sT)}, {s(sU)}
    s_add_u32 {s(sT)}, {s(sT)}, 88
    s_cmp_ge_u32 {s(sCB)}, 8
    s_cselect_b32 {s(sU)}, {s(sT)}, {s(sU)}
    s_mul_i32 {s(sKP)}, {s(sU)}, 2979
    s_lshr_b32 {s(sKP)}, {s(sKP)}, 16
    s_mul_i32 {s(sT)}, {s(sKP)}, 22
    s_sub_u32 {s(sCI)}, {s(sU)}, {s(sT)}
    s_mov_b64 {s(sP,2)}, {s(pA+4,2)}
    s_mov_b32 {s(sP+2)}, {512*2752}
    s_mov_b32 {s(sP+3)}, 0x20000
    s_mov_b32 {s(sPR)}, 2752
    s_mov_b32 {s(sPD)}, 0x{W3F:x}
    s_mov_b32 {s(sJC)}, {C_W3}
    s_mov_b32 {s(sT2)}, 44
    s_mov_b32 {s(sNAT)}, 0
    s_cmp_lt_u32 {s(sU)}, 88
    s_cbranch_scc1 K1_JOB
    s_and_b32 {s(sCI)}, {s(sU)}, 7
    s_mov_b32 {s(sPR)}, 1024
    s_mov_b32 {s(sT2)}, 16
    s_mov_b32 {s(sP+2)}, 0x80000
    s_sub_u32 {s(sKP)}, {s(sU)}, 88
    s_mov_b64 {s(sP,2)}, {s(pA,2)}
    s_mov_b32 {s(sPD)}, 0x{W2F:x}
    s_mov_b32 {s(sJC)}, {C_W2}
    s_cmp_lt_u32 {s(sU)}, 120
    s_cbranch_scc1 K1_JOBS
    s_sub_u32 {s(sKP)}, {s(sU)}, 120
    s_mov_b64 {s(sP,2)}, {s(pWO,2)}
    s_mov_b32 {s(sPD)}, 0x{WOF:x}
    s_mov_b32 {s(sJC)}, {C_WO}
    s_mov_b32 {s(sNAT)}, 1
    s_cmp_lt_u32 {s(sU)}, 152
    s_cbranch_scc1 K1_JOBS
    s_sub_u32 {s(sKP)}, {s(sU)}, 152
    s_mov_b64 {s(sP,2)}, {s(pA+6,2)}
    s_mov_b32 {s(sP+2)}, {1376*1024}
    s_mov_b32 {s(sPD)}, 0x{W4F:x}
    s_mov_b32 {s(sJC)}, {C_W4}
    s_mov_b32 {s(sNAT)}, 0
    s_cmp_lt_u32 {s(sU)}, 240
    s_cbranch_scc1 K1_JOBS
    s_mov_b32 {s(sPD)}, 0x40000000
    """)
    a.label("K1_JOBS")
    a(f"s_lshr_b32 {s(sKP)}, {s(sKP)}, 3")
    a.label("K1_JOB")
    a(f"""
    s_lshl_b32 {s(sT)}, {s(sKP)}, 3
    s_add_u32 {s(sT)}, {s(sT)}, {s(sW_)}
    s_mul_i32 {s(sT2)}, {s(sT2)}, {s(sT)}
    s_lshl_b32 {s(sPS)}, {s(sCI)}, 1
    s_add_u32 {s(sT2)}, {s(sT2)}, {s(sPS)}
    s_lshl_b32 {s(sT2)}, {s(sT2)}, 10
    s_add_u32 {s(sPD)}, {s(sPD)}, {s(sT2)}
    s_mul_i32 {s(sT)}, {s(sT)}, {s(sPR)}
    s_lshl_b32 {s(sT)}, {s(sT)}, 4
    s_lshl_b32 {s(sPS)}, {s(sCI)}, 7
    s_add_u32 {s(sPS)}, {s(sPS)}, {s(sT)}
    v_mul_lo_u32 {v(vPA)}, {v(vT0)}, {s(sPR)}
    v_add_u32 {v(vPA)}, {v(vPA)}, {v(vT1)}
    s_lshl_b32 {s(sPR)}, {s(sPR)}, 3
    s_add_u32 {s(sPR)}, {s(sPR)}, {s(sPS)}
    """)
    a(f"""
    v_mov_b32 {v(TMP)}, 0
    v_mov_b32 {v(TMP+1)}, 0
    v_mov_b32 {v(vTA)}, 0x{SC_N:x}
    ds_write_b64 {v(vTA)}, {v(TMP,2)}
    ds_write_b32 {v(vTA)}, {v(TMP)} offset:8
    """)
    a("s_waitcnt lgkmcnt(0)")
    a("s_barrier")
    for i in range(4): dma(vm0, 1, i)
    a(f"""
    v_and_b32 {v(vI)}, 31, {v(vL)}
    v_lshrrev_b32 {v(vHI)}, 5, {v(vL)}
    s_lshl_b32 {s(sT)}, {s(sTQ)}, 5
    v_add_u32 {v(vT0)}, {s(sT)}, {v(vI)}
    v_lshlrev_b32 {v(vT0)}, 7, {v(vT0)}
    v_bfe_u32 {v(vT1)}, {v(vI)}, 1, 3
    v_xor_b32 {v(vT1)}, {v(vT1)}, {v(vHI)}
    v_bfe_u32 {v(vT2)}, {v(vL)}, 2, 2
    v_lshlrev_b32 {v(vT3)}, 7, {v(vT2)}
    v_lshrrev_b32 {v(vT2)}, 1, {v(vT2)}
    v_lshl_add_u32 {v(vT3)}, {v(vT2)}, 6, {v(vT3)}
    v_bfe_u32 {v(vT2)}, {v(vL)}, 4, 1
    v_lshl_add_u32 {v(vT3)}, {v(vT2)}, 5, {v(vT3)}
    v_and_b32 {v(vTB)}, 15, {v(vL)}
    v_cmp_eq_u32 vcc, {v(vTB)}, {v(vT2)}
    v_and_b32 {v(vT2)}, 3, {v(vL)}
    v_lshl_add_u32 {v(vT3)}, {v(vT2)}, 3, {v(vT3)}
    v_lshl_add_u32 {v(vTB)}, {v(vHI)}, 10, {v(vT3)}
    v_mov_b32 {v(vT2)}, 0x{ONES:x}
    v_cndmask_b32 {v(SEL)}, 0, {v(vT2)}, vcc
    s_add_u32 {s(sT)}, {s(sNAT)}, 9
    v_lshlrev_b32 {v(vPT)}, {s(sT)}, {v(vHI)}
    s_lshl_b32 {s(sT)}, {s(sW_)}, 11
    s_add_u32 {s(sT)}, {s(sT)}, 0x{SC_3:x}
    v_add3_u32 {v(vPT)}, {v(vPT)}, {v(vT3)}, {s(sT)}
    s_lshl_b32 {s(sT)}, {s(sFH)}, 13
    s_add_u32 {s(sT)}, {s(sT)}, 16384
    v_add_u32 {v(WA(0,0))}, {s(sT)}, {v(vTB)}
    v_xor_b32 {v(WA(0,1))}, 64, {v(WA(0,0))}
    s_and_b32 {s(sT)}, {s(sTQ)}, 1
    s_lshl_b32 {s(sT)}, {s(sT)}, 13
    s_add_u32 {s(sT)}, {s(sT)}, 16384
    s_lshr_b32 {s(sT2)}, {s(sTQ)}, 1
    s_lshl_b32 {s(sT2)}, {s(sT2)}, 6
    v_xor_b32 {v(WA(0,2))}, {s(sT2)}, {v(vTB)}
    v_add_u32 {v(WA(0,2))}, {s(sT)}, {v(WA(0,2))}
    v_mov_b32 {v(SEL+1)}, {v(SEL)}
    v_mov_b32 {v(SEL+2)}, {v(SEL)}
    v_mov_b32 {v(SEL+3)}, {v(SEL)}
    v_mov_b32 {v(GR)}, 0
    v_mov_b32 {v(GR+1)}, 0
    v_mov_b32 {v(GR+2)}, 0
    v_mov_b32 {v(GR+3)}, 0
    v_mov_b32 {v(vONE)}, 0x{ONES:x}
    """)
    for k in range(4):
        a(f"v_xor_b32 {v(vT2)}, {2*k}, {v(vT1)}")
        a(f"v_lshl_add_u32 {v(XA(0,k))}, {v(vT2)}, 4, {v(vT0)}")
    for k in range(4): a(f"v_add_u32 {v(XA(1,k))}, 65536, {v(XA(0,k))}")
    for ft in range(3): a(f"v_add_u32 {v(WA(1,ft))}, 65536, {v(WA(0,ft))}")
    def ready_flag():
        a(f"""
        s_xor_b32 {s(sT)}, {s(sW_)}, 7
        s_or_b32 {s(sT)}, {s(sT)}, s2
        s_cbranch_scc1 K1_NOFLAG
        """)
        a(f"""
        v_mov_b32 {v(TMP+1)}, 1
        s_mov_b64 exec, 1
        buffer_store_dword {v(TMP+1)}, {v(TMP)}, {s(sDB,4)}, 0 offen sc1
        s_mov_b64 exec, -1
        """)
        a.label("K1_NOFLAG")
    if SH:
        vm0.wait("row")
        ready_flag()
        for j in range(4):
            a(f"v_dot2_f32_bf16 {v(GR)}, {v(W3V+j)}, {v(vONE)}, {v(GR)}")
            a(f"v_dot2_f32_bf16 {v(GR+1)}, {v(W3V+j)}, {v(W3V+j)}, {v(GR+1)}")
        for m_ in ("row_shr:1", "row_shr:2", "row_shr:4", "row_shr:8"):
            for r_ in (GR, GR+1): a(f"v_add_f32_dpp {v(r_)}, {v(r_)}, {v(r_)} {m_} row_mask:0xf bank_mask:0xf bound_ctrl:0")
        for m_ in ("row_bcast:15 row_mask:0xa", "row_bcast:31 row_mask:0xc"):
            for r_ in (GR, GR+1): a(f"v_add_f32_dpp {v(r_)}, {v(r_)}, {v(r_)} {m_} bank_mask:0xf")
        a(f"""
        v_mul_f32 {v(GR)}, {fl(1/512)}, {v(GR)}
        v_mul_f32 {v(GR+1)}, {fl(1/512)}, {v(GR+1)}
        v_fma_f32 {v(GR+1)}, -{v(GR)}, {v(GR)}, {v(GR+1)}
        v_max_f32 {v(GR+1)}, 0, {v(GR+1)}
        v_add_f32 {v(GR+1)}, {fl(EPS)}, {v(GR+1)}
        v_rsq_f32 {v(GR+1)}, {v(GR+1)}
        s_lshl_b32 {s(sT)}, {s(sRW)}, 3
        s_add_u32 {s(sT)}, {s(sT)}, 0x{ST1:x}
        s_mov_b32 exec_lo, 0
        s_mov_b32 exec_hi, 0x80000000
        """)
        vm0.op(f"buffer_store_dwordx2 {v(GR,2)}, {v(TMP)}, {s(sWS,4)}, {s(sT)} offen sc1", "st")
        a("s_mov_b64 exec, -1")
    stamp(a, 2)
    def spin(lab, srd_, off, need, dst):
        a(f"s_mov_b32 {s(sT2)}, 400000")
        a.label(lab + "L")
        a(f"""
        {'buffer_load_dword' if srd_ == sDB else 'buffer_atomic_umax'} {v(dst)}, {v(TMP)}, {s(srd_,4)}, {off} offen {'' if srd_ == sDB else 'sc0'} sc1
        s_sub_u32 {s(sT2)}, {s(sT2)}, 1
        s_cmp_eq_u32 {s(sT2)}, 0
        s_cbranch_scc1 {lab}
        s_waitcnt vmcnt(0)
        v_cmp_gt_u32 vcc, {need}, {v(dst)}
        s_cbranch_vccz {lab}
        s_sleep 4
        s_branch {lab}L
        """)
        a.label(lab)
    def warm(vm):
        a(f"""
        s_lshr_b32 {s(sT)}, s2, 3
        s_cmp_lg_u32 {s(sW_)}, 4
        s_cbranch_scc1 K1_WARM1
        """)
        if PFC: a(f"""
        s_getpc_b64 {s(sDB,2)}
        s_and_b32 {s(sDB)}, {s(sDB)}, 0xffffff80
        s_lshl_b32 {s(sT)}, {s(sT)}, 10
        v_lshl_add_u32 {v(vT0)}, {v(vL)}, 4, {s(sT)}
        v_min_u32 {v(vT0)}, K1_END-K1_B1-1024, {v(vT0)}
        global_load_dword {v(vPF)}, {v(vT0)}, {s(sDB,2)}
        """)
        a("s_branch K1_WARM2")
        a.label("K1_WARM1")
        if PFT:
            a(f"""
            s_cmp_lg_u32 {s(sW_)}, 5
            s_cbranch_scc1 K1_WARM2
            """)
            if PFT == 1: a(f"""
            v_lshl_add_u32 {v(vT0)}, {v(vL)}, 5, {s(sT)}
            v_lshlrev_b32 {v(vT0)}, 16, {v(vT0)}
            s_mov_b64 exec, 0x3fff
            """)
            else: a(f"""
            v_lshlrev_b32 {v(vT0)}, 21, {v(vL)}
            s_mov_b64 exec, 0x3fff
            """)
            a(f"""
            buffer_load_dword {v(vPF)}, {v(vT0)}, {s(sWS,4)}, 0 offen
            s_mov_b64 exec, -1
            """)
        a.label("K1_WARM2")
    def body(fh):
        vm = VM(a); vm.q = list(vm0.q)
        nr = 5 + 2*fh
        def reads(n):
            c, k = divmod(n, 4); sl = c % 4; st = sl >> 1; o = (sl & 1)*32768; p = n % 3
            a(f"ds_read_b128 {v(XF(p),4)}, {v(XA(st,k))} offset:{o}")
            for ft in range(2+fh):
                a(f"ds_read_b64_tr_b16 {v(WF(p,ft),2)}, {v(WA(st,ft))} offset:{o+k*2048}")
                a(f"ds_read_b64_tr_b16 {v(WF(p,ft)+2,2)}, {v(WA(st,ft))} offset:{o+k*2048+512}")
        def compute(n):
            p = n % 3
            z = lambda r, w: "0" if n == 0 else v(r, w)
            mine = {"valu": fh == 0, "valu2": (n & 1) == fh, "valu31": (n % 4 == 3) == (fh == 1)}.get(STATS, False)
            if STATS == "dots" and fh == 0:
                for j in range(4):
                    a(f"v_dot2_f32_bf16 {v(GR+2)}, {v(XF(p)+j)}, {v(XF(p)+j)}, {v(GR+2)}")
                    a(f"v_dot2_f32_bf16 {v(GR)}, {v(XF(p)+j)}, {v(vONE)}, {v(GR)}")
            for ft in (0, 1):
                a(f"v_mfma_f32_32x32x16_bf16 {v(ACC(ft),16)}, {v(WF(p,ft),4)}, {v(XF(p),4)}, {z(ACC(ft),16)}")
                if mine:
                    for j in (2*ft, 2*ft+1):
                        a(f"v_lshlrev_b32 {v(TMP+2*j)}, 16, {v(XF(p)+j)}")
                        a(f"v_and_b32 {v(TMP+2*j+1)}, 0xffff0000, {v(XF(p)+j)}")
                    for j in range(4*ft, 4*ft+4):
                        a(f"v_add_f32 {v(GR+(j&1))}, {v(GR+(j&1))}, {v(TMP+j)}")
                        a(f"v_fmac_f32 {v(GR+2+(j&1))}, {v(TMP+j)}, {v(TMP+j)}")
            if fh == 1 and STATS != "none":
                a(f"v_mfma_f32_16x16x32_bf16 {v(GR+4,4)}, {v(SEL,4)}, {v(WF(p,2),4)}, {z(GR+4,4)}")
        sched = {0: [(2, 0), (2, 1)], 1: [(2, 2), (2, 3)]}
        for c in range(5):
            for i in range(4): sched[4*c+2+i] = [(c+3, i)]
        vm.wait(0)
        a("s_barrier")
        if not SH and fh == 1: ready_flag()
        stamp(a, 3)
        reads(0); reads(1)
        extra = 0
        for n in range(32):
            c, k = divmod(n, 4)
            if k == 2 and c < 7:
                vm.wait(c+1)
                if SH and n == 22 and fh == 1:
                    a(f"""
                    s_cmp_lg_u32 {s(sW_)}, 7
                    s_cbranch_scc1 K1_STX
                    s_mov_b64 exec, 1
                    s_waitcnt vmcnt({min(4, 21-NCHK)})
                    v_cmp_gt_u32 vcc, 16, {v(GR+2)}
                    s_cbranch_vccz K1_STW
                    """)
                    spin("K1_STW", sWS, s(sT), 16, GR+2)
                    a("s_mov_b64 exec, -1")
                    a.label("K1_STX")
                a("s_barrier")
                if SH and n == 22:
                    a(f"""
                    s_lshl_b32 {s(sT)}, {s(sRB)}, 2
                    s_add_u32 {s(sT)}, {s(sT)}, {s(sTQ)}
                    s_lshl_b32 {s(sT)}, {s(sT)}, 8
                    s_add_u32 {s(sT)}, {s(sT)}, 0x{ST1:x}
                    v_lshlrev_b32 {v(vT0)}, 3, {v(vI)}
                    """)
                    vm.op(f"buffer_load_dwordx2 {v(vMEAN,2)}, {v(vT0)}, {s(sWS,4)}, {s(sT)} offen sc1", "s")
                stamp(a, 4+c)
            if n < 30: reads(n+2)
            a(f"s_waitcnt lgkmcnt({min(15, nr*min(2, 31-n))})")
            compute(n)
            for cc, i in sched.get(n, []): dma(vm, cc, i)
            if n == PFN and fh == 1 and (PFC or PFT): warm(vm)
            if SH and n == NSIG-3 and fh == 0:
                a(f"""
                s_cmp_lg_u32 {s(sW_)}, 3
                s_cbranch_scc1 K1_STP
                """)
                a(f"""
                s_mov_b64 exec, 1
                buffer_load_dword {v(GR+2)}, {v(TMP)}, {s(sDB,4)}, 0 offen sc1
                s_mov_b64 exec, -1
                """)
                a.label("K1_STP")
            if SH and n == NSIG and fh == 0:
                a(f"""
                s_cmp_lg_u32 {s(sW_)}, 3
                s_cbranch_scc1 K1_STS
                s_mov_b64 exec, 1
                s_waitcnt vmcnt(3)
                v_cmp_eq_u32 vcc, 0, {v(GR+2)}
                s_cbranch_vccz K1_STR
                """)
                spin("K1_STR", sDB, 0, 1, GR+2)
                a(f"""
                s_lshl_b32 {s(sT)}, {s(sRB)}, {FSH}
                s_add_u32 {s(sT)}, {s(sT)}, 0x{cnt(C_ST):x}
                v_mov_b32 {v(GR+2)}, 1
                buffer_atomic_add {v(GR+2)}, {v(TMP)}, {s(sWS,4)}, {s(sT)} offen sc1
                s_mov_b64 exec, -1
                """)
                a.label("K1_STS")
            if SH and n == NCHK and fh == 1:
                a(f"""
                s_cmp_lg_u32 {s(sW_)}, 7
                s_cbranch_scc1 K1_STQ
                s_lshl_b32 {s(sT)}, {s(sRB)}, {FSH}
                s_add_u32 {s(sT)}, {s(sT)}, 0x{cnt(C_ST):x}
                s_mov_b64 exec, 1
                buffer_atomic_umax {v(GR+2)}, {v(TMP)}, {s(sWS,4)}, {s(sT)} offen sc0 sc1
                s_mov_b64 exec, -1
                """)
                a.label("K1_STQ")
            if n == 24 and MERGE: a(f"s_load_dword {s(sRDY)}, {s(pDBG,2)}, 0")
            if n == 27 and MERGE:
                a(f"""
                v_lshlrev_b32 {v(vT0)}, 2, v0
                v_mov_b32 {v(vT1)}, 0
                ds_write_b32 {v(vT0)}, {v(vT1)} offset:{16*2080}
                ds_write_b32 {v(vT0)}, {v(vT1)} offset:{16*2080+256}
                """)
            if n == 26:
                vm.op(f"buffer_load_dwordx4 {v(W3V,4)}, {v(vPA)}, {s(sP,4)}, {s(sPS)} offen", "p")
                vm.op(f"buffer_load_dwordx4 {v(W3V+4,4)}, {v(vPA)}, {s(sP,4)}, {s(sPR)} offen", "p")
        stamp(a, 11)
        if SH: vm.wait("s")
        else:
            a(f"v_add_f32 {v(GR)}, {v(GR)}, {v(GR+1)}")
            a(f"v_add_f32 {v(GR+1)}, {v(GR+2)}, {v(GR+3)}")
            halves_sum(a, GR, vT1); halves_sum(a, GR+1, vT2)
            a(f"""
        s_lshl_b32 {s(sT)}, {s(sTQ)}, 9
        s_add_u32 {s(sT)}, {s(sT)}, 0x{SC_S+8*fh:x}
        v_lshl_add_u32 {v(vT0)}, {v(vI)}, 4, {s(sT)}
        ds_write_b64 {v(vT0)}, {v(GR,2)}
        """)
        if fh == 0: pass
        else:
            a(f"""
            s_and_b32 {s(sT)}, {s(sTQ)}, 1
            s_lshl_b32 {s(sT)}, {s(sT)}, 8
            s_lshr_b32 {s(sT2)}, {s(sTQ)}, 1
            s_lshl_b32 {s(sT2)}, {s(sT2)}, 7
            s_add_u32 {s(sT)}, {s(sT)}, {s(sT2)}
            s_add_u32 {s(sT)}, {s(sT)}, 0x{SC_C:x}
            v_lshl_add_u32 {v(vT1)}, {v(vL)}, 2, {s(sT)}
            s_mov_b64 exec, 0xffff
            ds_write_b32 {v(vT1)}, {v(GR+4)}
            ds_write_b32 {v(vT1)}, {v(GR+5)} offset:64
            s_mov_b64 exec, -1
            """)
    a(f"""
    s_cmp_eq_u32 {s(sFH)}, 1
    s_cbranch_scc1 K1_B1
    """)
    body(0)
    a("s_branch K1_JOIN")
    a.label("K1_B1")
    body(1)
    a.label("K1_JOIN")
    a(f"""
    s_lshl_b32 {s(sT)}, {s(sTQ)}, 9
    s_add_u32 {s(sT)}, {s(sT)}, 0x{SC_S:x}
    v_lshl_add_u32 {v(vT1)}, {v(vI)}, 4, {s(sT)}
    s_lshl_b32 {s(sT)}, {s(sFH)}, 8
    s_add_u32 {s(sT)}, {s(sT)}, 0x{SC_C:x}
    v_lshl_add_u32 {v(vT2)}, {v(vHI)}, 4, {s(sT)}
    """)
    if SH: a(f"""
    s_cmp_eq_u32 {s(sTY)}, 0
    s_cselect_b32 {s(sSC)}, {fl(0.25*LOG2E)}, 1.0
    s_lshl_b32 {s(sT2)}, {s(sRB)}, 2
    s_add_u32 {s(sT2)}, {s(sT2)}, {s(sTQ)}
    v_mul_f32 {v(vR)}, {s(sSC)}, {v(vMEAN+1)}
    """)
    a("s_waitcnt lgkmcnt(0)")
    a("s_barrier")
    if not SH: a(f"ds_read_b128 {v(TMP,4)}, {v(vT1)}")
    for ft in (0, 1):
        for q in range(4): a(f"ds_read_b128 {v(CSV+16*ft+4*q,4)}, {v(vT2)} offset:{128*ft+32*q}")
    if SH:
        a(f"""
        s_cmp_lg_u32 {s(sTY)}, 3
        s_cbranch_scc1 K1_NOST
        v_mul_f32 {v(vTB)}, {v(vR)}, {v(vR)}
        v_mov_b32 {v(vTA)}, {fl(1+EPS)}
        v_fmamk_f32 {v(vTB)}, {v(vTB)}, {fl(-EPS)}, {v(vTA)}
        v_rsq_f32 {v(vTB)}, {v(vTB)}
        s_nop 0
        v_mul_f32 {v(vR)}, {v(vR)}, {v(vTB)}
        """)
        gelu_consts(a, vR, vC1, vC2, vONE)
    else:
        a(f"""
        s_cmp_eq_u32 {s(sTY)}, 0
        s_cselect_b32 {s(sSC)}, {fl(0.25*LOG2E)}, 1.0
        s_lshl_b32 {s(sT2)}, {s(sRB)}, 2
        s_add_u32 {s(sT2)}, {s(sT2)}, {s(sTQ)}
        v_mov_b32 {v(vTB)}, {fl(1/512)}
        s_waitcnt lgkmcnt(8)
        v_add_f32 {v(vSUM)}, {v(TMP)}, {v(TMP+2)}
        v_add_f32 {v(vSQ)}, {v(TMP+1)}, {v(TMP+3)}
        v_mul_f32 {v(vMEAN)}, {v(vTB)}, {v(vSUM)}
        v_mul_f32 {v(vTA)}, {v(vMEAN)}, {v(vMEAN)}
        v_fma_f32 {v(vTA)}, {v(vSQ)}, {v(vTB)}, -{v(vTA)}
        v_max_f32 {v(vTA)}, 0, {v(vTA)}
        v_add_f32 {v(vTB)}, {fl(EPS)}, {v(vTA)}
        v_rsq_f32 {v(vR1)}, {v(vTB)}
        s_cmp_lg_u32 {s(sTY)}, 3
        v_mul_f32 {v(vR)}, {s(sSC)}, {v(vR1)}
        s_cbranch_scc1 K1_NOR2
        v_mul_f32 {v(vTB)}, {v(vR1)}, {v(vR1)}
        v_fmaak_f32 {v(vTB)}, {v(vTB)}, {v(vTA)}, {fl(EPS)}
        v_rsq_f32 {v(vTB)}, {v(vTB)}
        s_nop 0
        v_mul_f32 {v(vR)}, {v(vR1)}, {v(vTB)}
        """)
        gelu_consts(a, vR, vC1, vC2, vONE)
        a.label("K1_NOR2")
        a(f"""
        s_cmp_lg_u32 {s(sHB)}, 24
        s_cbranch_scc1 K1_NOST
        s_lshl_b32 {s(sT)}, {s(sT2)}, 8
        s_add_u32 {s(sT)}, {s(sT)}, 0x{ST1:x}
        v_lshlrev_b32 {v(vTA)}, 3, {v(vI)}
        v_mov_b32 {v(PK)}, {v(vMEAN)}
        v_mov_b32 {v(PK+1)}, {v(vR1)}
        buffer_store_dwordx2 {v(PK,2)}, {v(vTA)}, {s(sWS,4)}, {s(sT)} offen {K1F}
        """)
    a.label("K1_NOST")
    a(f"""
    v_sub_f32 {v(vMEAN)}, 0, {v(vMEAN)}
    v_mov_b32 {v(vR+1)}, {v(vR)}
    v_mov_b32 {v(vMEAN+1)}, {v(vMEAN)}
    s_waitcnt lgkmcnt(0)
    """)
    for j in range(0, 32, 2): a(f"v_pk_fma_f32 {v(ACC(0)+j,2)}, {v(CSV+j,2)}, {v(vMEAN,2)}, {v(ACC(0)+j,2)}")
    a(f"""
    v_lshlrev_b32 {v(vT3)}, 4, {v(vL)}
    s_and_b32 {s(sT)}, {s(sHB)}, 7
    s_cmp_eq_u32 {s(sTY)}, 3
    s_cbranch_scc1 K1_H
    """)
    for j in range(0, 32, 2): a(f"v_pk_mul_f32 {v(ACC(0)+j,2)}, {v(ACC(0)+j,2)}, {v(vR,2)}")
    for j in range(16): a(f"v_cvt_pk_bf16_f32 {v(PK+j)}, {v(ACC(0)+2*j)}, {v(ACC(0)+2*j+1)}")
    a(f"""
    s_cmp_eq_u32 {s(sTY)}, 0
    s_cbranch_scc1 K1_Q
    s_mov_b32 {s(sBS)}, 0x20000
    s_lshl_b32 {s(sBO)}, {s(sT)}, 19
    s_lshl_b32 {s(sT)}, {s(sT2)}, 11
    s_add_u32 {s(sBO)}, {s(sBO)}, {s(sT)}
    s_add_u32 {s(sBO)}, {s(sBO)}, 0x{KVF:x}
    s_cmp_eq_u32 {s(sTY)}, 2
    s_cbranch_scc1 K1_V
    v_and_b32 {v(vOFF)}, 0x33, {v(vL)}
    v_bfe_u32 {v(vTA)}, {v(vL)}, 2, 1
    v_lshl_add_u32 {v(vOFF)}, {v(vTA)}, 3, {v(vOFF)}
    v_bfe_u32 {v(vTA)}, {v(vL)}, 3, 1
    v_lshl_add_u32 {v(vOFF)}, {v(vTA)}, 2, {v(vOFF)}
    v_lshlrev_b32 {v(vOFF)}, 4, {v(vOFF)}
    s_branch K1_STORE
    """)
    a.label("K1_V")
    a(f"""
    s_add_u32 {s(sBO)}, {s(sBO)}, 1024
    s_lshl_b32 {s(sT)}, {s(sW_)}, 12
    s_add_u32 {s(sT)}, {s(sT)}, 0x10000
    v_lshlrev_b32 {v(vTA)}, 5, {v(vI)}
    v_lshl_add_u32 {v(vTA)}, {v(vHI)}, 4, {v(vTA)}
    v_add_u32 {v(vTA)}, {s(sT)}, {v(vTA)}
    """)
    for b in range(4): a(f"ds_write_b128 {v(vTA)}, {v(PK+4*b,4)} offset:{1024*b}")
    a(f"""
    v_bfe_u32 {v(vTB)}, {v(vL)}, 4, 1
    v_lshlrev_b32 {v(vOFF)}, 9, {v(vTB)}
    v_lshl_add_u32 {v(vTA)}, {v(vHI)}, 7, {v(vOFF)}
    v_and_b32 {v(vTB)}, 15, {v(vL)}
    v_lshl_add_u32 {v(vTA)}, {v(vTB)}, 3, {v(vTA)}
    v_add_u32 {v(vTA)}, {s(sT)}, {v(vTA)}
    v_lshl_add_u32 {v(vOFF)}, {v(vHI)}, 8, {v(vOFF)}
    v_lshl_add_u32 {v(vOFF)}, {v(vTB)}, 4, {v(vOFF)}
    s_waitcnt lgkmcnt(0)
    """)
    for b in range(4):
        a(f"ds_read_b64_tr_b16 {v(PK+4*b,2)}, {v(vTA)} offset:{1024*b}")
        a(f"ds_read_b64_tr_b16 {v(PK+4*b+2,2)}, {v(vTA)} offset:{1024*b+256}")
    a("s_waitcnt lgkmcnt(0)")
    a("s_branch K1_STORE")
    a.label("K1_Q")
    a(f"""
    s_mov_b32 {s(sBS)}, 0x10000
    s_lshl_b32 {s(sBO)}, {s(sT)}, 18
    s_lshl_b32 {s(sT)}, {s(sT2)}, 10
    s_add_u32 {s(sBO)}, {s(sBO)}, {s(sT)}
    v_mov_b32 {v(vOFF)}, {v(vT3)}
    """)
    a.label("K1_STORE")
    for b in range(4):
        a(f"buffer_store_dwordx4 {v(PK+4*b,4)}, {v(vOFF)}, {s(sWS,4)}, {s(sBO)} offen {K1F}")
        if b < 3: a(f"s_add_u32 {s(sBO)}, {s(sBO)}, {s(sBS)}")
    a("s_branch K1_PACK")
    a.label("K1_H")
    a(f"""
    s_lshl_b32 {s(sBO)}, {s(sT)}, 12
    s_lshl_b32 {s(sT)}, {s(sT2)}, 15
    s_add_u32 {s(sBO)}, {s(sBO)}, {s(sT)}
    s_add_u32 {s(sBO)}, {s(sBO)}, 0x{HF:x}
    """)
    for g in range(4):
        gelu_scaled(a, [ACC(0)+8*g+j for j in range(8)], [TMP+j for j in range(8)], vC1, vC2, vONE)
        for j in range(4): a(f"v_cvt_pk_bf16_f32 {v(PK+4*g+j)}, {v(ACC(0)+8*g+2*j)}, {v(ACC(0)+8*g+2*j+1)}")
        a(f"buffer_store_dwordx4 {v(PK+4*g,4)}, {v(vT3)}, {s(sWS,4)}, {s(sBO)} offen offset:{1024*g} {K1F}")
    a.label("K1_PACK")
    stamp(a, 12)
    a(f"""
    s_lshl_b32 {s(sT)}, {s(sW_)}, 11
    s_add_u32 {s(sT)}, {s(sT)}, 0x{SC_3:x}
    v_add_u32 {v(vT0)}, {s(sT)}, {v(vT3)}
    s_waitcnt vmcnt(4)
    ds_write_b128 {v(vT0)}, {v(W3V,4)}
    ds_write_b128 {v(vT0)}, {v(W3V+4,4)} offset:1024
    s_lshr_b32 {s(sT)}, 1024, {s(sNAT)}
    v_add_u32 {v(vT0)}, {s(sT)}, {v(vPT)}
    v_xor_b32 {v(vT1)}, 64, {v(vPT)}
    v_xor_b32 {v(vT2)}, 64, {v(vT0)}
    s_waitcnt lgkmcnt(0)
    ds_read_b64_tr_b16 {v(W3V,2)}, {v(vPT)}
    ds_read_b64_tr_b16 {v(W3V+2,2)}, {v(vT0)}
    ds_read_b64_tr_b16 {v(W3V+4,2)}, {v(vT1)}
    ds_read_b64_tr_b16 {v(W3V+6,2)}, {v(vT2)}
    s_waitcnt lgkmcnt(0)
    buffer_store_dwordx4 {v(W3V,4)}, {v(vT3)}, {s(sWS,4)}, {s(sPD)} offen {K1F}
    buffer_store_dwordx4 {v(W3V+4,4)}, {v(vT3)}, {s(sWS,4)}, {s(sPD)} offen offset:1024 {K1F}
    """)
    if MERGE:
        a(f"""
        s_cmp_lg_u32 {s(sRDY)}, 0
        s_cbranch_scc1 K1_RDY
        """)
        a(f"s_mov_b32 {s(sT)}, 400000")
        a("s_mov_b64 exec, 1")
        a.label("K1_RDYL")
        a(f"""
        v_mov_b32 {v(TMP)}, 0
        v_mov_b32 {v(TMP+1)}, 0
        buffer_load_dword {v(TMP)}, {v(TMP+1)}, {s(sDB,4)}, 0 offen sc1
        s_sub_u32 {s(sT)}, {s(sT)}, 1
        s_cmp_eq_u32 {s(sT)}, 0
        s_cbranch_scc1 K1_RDY
        s_waitcnt vmcnt(0)
        v_cmp_eq_u32 vcc, 0, {v(TMP)}
        s_cbranch_vccz K1_RDY
        s_sleep 8
        s_branch K1_RDYL
        """)
        a.label("K1_RDY")
        a(f"""
        s_mov_b64 exec, 1
        s_add_u32 {s(sT)}, {s(sHB)}, {C_HB}
        s_add_u32 {s(sT2)}, {s(sRB)}, {C_HR}
        s_cmp_eq_u32 {s(sTY)}, 3
        s_cselect_b32 {s(sT)}, {s(sT2)}, {s(sT)}
        s_lshl_b32 {s(sT)}, {s(sT)}, {FSH}
        s_add_u32 {s(sT)}, {s(sT)}, 0x{FLG:x}
        s_lshl_b32 {s(sT2)}, {s(sFH)}, 2
        s_add_u32 {s(sT2)}, {s(sT2)}, 0x{SC_N:x}
        v_mov_b32 {v(vT0)}, {s(sT2)}
        v_mov_b32 {v(vT1)}, 1
        v_mov_b32 {v(vTA)}, 0
        s_waitcnt vmcnt(2)
        ds_add_rtn_u32 {v(vT2)}, {v(vT0)}, {v(vT1)}
        s_waitcnt lgkmcnt(0)
        v_cmp_ne_u32 vcc, 3, {v(vT2)}
        s_cbranch_vccnz K1_NOSIG
        buffer_atomic_add {v(vT1)}, {v(vTA)}, {s(sWS,4)}, {s(sT)} offen sc1
        """)
        a.label("K1_NOSIG")
        a("s_mov_b64 exec, -1")
    a(f"""
    s_cmp_ge_u32 {s(sU)}, 88
    s_cbranch_scc1 K1_NOCS3
    v_mfma_f32_16x16x32_bf16 {v(TMP,4)}, {v(SEL,4)}, {v(W3V,4)}, 0
    v_mfma_f32_16x16x32_bf16 {v(TMP+4,4)}, {v(SEL,4)}, {v(W3V+4,4)}, 0
    s_lshl_b32 {s(sT)}, {s(sW_)}, 8
    s_add_u32 {s(sT)}, {s(sT)}, 0x{SC_3P:x}
    v_lshl_add_u32 {v(vT0)}, {v(vL)}, 2, {s(sT)}
    s_mov_b64 exec, 0xffff
    ds_write_b32 {v(vT0)}, {v(TMP)}
    ds_write_b32 {v(vT0)}, {v(TMP+1)} offset:64
    ds_write_b32 {v(vT0)}, {v(TMP+4)} offset:128
    ds_write_b32 {v(vT0)}, {v(TMP+5)} offset:192
    s_mov_b64 exec, -1
    """)
    a.label("K1_NOCS3")
    a(f"""
    v_mov_b32 {v(vT0)}, 0x{SC_N+8:x}
    v_mov_b32 {v(vT1)}, 1
    s_mov_b64 exec, 1
    s_waitcnt vmcnt(0) lgkmcnt(0)
    ds_add_rtn_u32 {v(vT2)}, {v(vT0)}, {v(vT1)}
    s_waitcnt lgkmcnt(0)
    v_cmp_ne_u32 vcc, 7, {v(vT2)}
    s_mov_b64 exec, -1
    s_cbranch_vccnz K1_FIN
    s_cmp_ge_u32 {s(sU)}, 88
    s_cbranch_scc1 K1_JSIG
    v_lshlrev_b32 {v(vT0)}, 2, {v(vL)}
    v_add_u32 {v(vT2)}, 0x{SC_3P:x}, {v(vT0)}
    """)
    for w in range(8): a(f"ds_read_b32 {v(TMP+w)}, {v(vT2)} offset:{256*w}")
    a(f"""
    s_mul_i32 {s(sT)}, {s(sKP)}, 6144
    s_lshl_b32 {s(sT2)}, {s(sCI)}, 8
    s_add_u32 {s(sT)}, {s(sT)}, {s(sT2)}
    s_add_u32 {s(sT)}, {s(sT)}, 0x{CS3P:x}
    s_waitcnt lgkmcnt(0)
    """)
    for w in range(1, 8): a(f"v_add_f32 {v(TMP)}, {v(TMP)}, {v(TMP+w)}")
    a(f"buffer_store_dword {v(TMP)}, {v(vT0)}, {s(sWS,4)}, {s(sT)} offen {K1F}")
    a("s_waitcnt vmcnt(0)")
    a.label("K1_JSIG")
    if MERGE:
        a(f"""
        v_mov_b32 {v(vT0)}, 0x{SC_N+8:x}
        v_mov_b32 {v(vT2)}, 9
        ds_write_b32 {v(vT0)}, {v(vT2)}
        s_cmp_ge_u32 {s(sU)}, 240
        s_cbranch_scc1 K1_FIN
        s_add_u32 {s(sT)}, {s(sJC)}, {s(sCI)}
        s_lshl_b32 {s(sT)}, {s(sT)}, {FSH}
        s_add_u32 {s(sT)}, {s(sT)}, 0x{FLG:x}
        v_mov_b32 {v(vT0)}, 0
        s_mov_b64 exec, 1
        buffer_atomic_add {v(vT1)}, {v(vT0)}, {s(sWS,4)}, {s(sT)} offen sc1
        s_mov_b64 exec, -1
        """)
    else:
        a(f"""
        s_cmp_lg_u32 s2, 0
        s_cbranch_scc1 K1_FIN
        v_mov_b32 {v(TMP)}, 0
        v_lshlrev_b32 {v(vT0)}, {FSH}, {v(vL)}
        s_mov_b32 {s(sT)}, 0x{FLG:x}
        buffer_store_dword {v(TMP)}, {v(vT0)}, {s(sWS,4)}, {s(sT)} offen
        """)
    a.label("K1_FIN")
    if PROF and not MERGE: a("s_waitcnt vmcnt(0)")
    stamp(a, 13)
    stamp_flush(a, 0, sW_, pWS)
    if not own: return
    a.label("K1_END")
    a("s_endpgm")
    lines, added = a.done()
    return kernel_text("k1_proj_kernel", lines, 256 if PROF else 204, 102)
```

```python
from common import *

TB = 2080
PROG_A = 16*TB
PROG_B = PROG_A + 1024
CNT_B = PROG_B + 1024
GO_A = CNT_B + 8
CS3L = CNT_B + 64
BR = 36*1024
DUMP = BR + 72*1024
K2_LDS = BR + 120*1024
SPIN = 400000
H2 = int(os.environ.get('H2', 4))
HOLD = int(os.environ.get('HOLD', 0))
HTH = int(os.environ.get('HTH', 18))
PD3 = int(os.environ.get('PD3', 3))
PD1 = int(os.environ.get('PD1', 1))
PST = int(os.environ.get('PST', 5))
CANARY = int(os.environ.get('CANARY', 1))
BDELAY = int(os.environ.get('BDELAY', 1))
P1F = 'sc1' if MERGE else ''
POLL = os.environ.get('POLL', 'atomic')
EARLY = eval(os.environ.get('EARLY', '{7: (0,), 8: (1, 2, 3), 9: (4, 5)}'))
GW = int(os.environ.get('GW', 4))
POS = eval(os.environ.get('POS', '(2,7,13)'))
LDF = os.environ.get('LDF', 'sc1')
STF = os.environ.get('STF', 'sc1')
PSL = int(os.environ.get('PSL', 4))
ONEPOLL = int(os.environ.get('ONEPOLL', 1))
OUTF = os.environ.get('OUTF', '')

def attention(a):
    sKV, sQO = 8, 12
    sW, sHD, sQB, sT, sT2, sKO, sM, sNEED, sIT, sEX = 28, 29, 30, 31, 32, 33, 34, 35, 36, 38
    vL, vIDX, vKA, vV0, vV1, vPW, vPR, vPROG, vC, vT0, vT1, vOO = 1, 2, 3, 4, 5, 6, 7, 8, 9, 10, 11, 12
    Sa, Sb, Oa, Ob, Ma, Mb, Qa, Qb = 16, 32, 48, 64, 80, 96, 112, 116
    K = [120, 124]; V = [128, 136]
    pWS = 26
    sS1, sS3 = 52, 53
    vS1, vZA, vONEA = 12, 14, 15
    a(f"""
    s_and_b32 {s(sT)}, s2, 7
    s_xor_b32 {s(sT)}, {s(sT)}, {os.environ.get('HSW', 1)}
    s_lshl_b32 {s(sHD)}, {s(sT)}, 2
    s_bfe_u32 {s(sT)}, s2, 0x20003
    s_add_u32 {s(sHD)}, {s(sHD)}, {s(sT)}
    s_lshr_b32 {s(sQB)}, s2, 5
    v_lshlrev_b32 {v(vKA)}, 4, {v(vL)}
    s_lshl_b32 {s(sT)}, {s(sHD)}, 17
    s_add_u32 {s(sT)}, {s(sT)}, 0x{KVF:x}
    s_lshl_b32 {s(sKO)}, {s(sW)}, 11
    s_lshl_b32 {s(sT2)}, {s(sQB)}, 14
    s_add_u32 {s(sKO)}, {s(sKO)}, {s(sT2)}
    s_mul_i32 {s(sM)}, {s(sW)}, {TB}
    s_waitcnt lgkmcnt(0)
    s_add_u32 {s(sKV)}, {s(pWS)}, {s(sT)}
    s_addc_u32 {s(sKV+1)}, {s(pWS+1)}, 0
    s_mov_b32 {s(sKV+2)}, 0x20000
    s_mov_b32 {s(sKV+3)}, 0x20000
    """)
    def dma(slot):
        return [f"s_add_u32 m0, {s(sM)}, {slot*4*TB}",
                f"s_nop 0",
                f"buffer_load_dwordx4 {v(vKA)}, {s(sKV,4)}, {s(sKO)} offen {P1F} lds",
                f"buffer_load_dwordx4 {v(vKA)}, {s(sKV,4)}, {s(sKO)} offen offset:1024 {P1F} lds",
                f"s_add_u32 {s(sKO)}, {s(sKO)}, 8192",
                f"s_and_b32 {s(sKO)}, {s(sKO)}, 0x1ffff"]
    def first_loads():
        for l in dma(0): a(l)
        a(f"""
        s_lshl_b32 {s(sT)}, {s(sHD)}, 16
        s_lshl_b32 {s(sT2)}, {s(sQB)}, 13
        s_add_u32 {s(sT)}, {s(sT)}, {s(sT2)}
        s_lshl_b32 {s(sT2)}, {s(sW)}, 11
        s_add_u32 {s(sT)}, {s(sT)}, {s(sT2)}
        buffer_load_dwordx4 {v(Qa,4)}, {v(vKA)}, {s(sQO,4)}, {s(sT)} offen {P1F}
        buffer_load_dwordx4 {v(Qb,4)}, {v(vKA)}, {s(sQO,4)}, {s(sT)} offen offset:1024 {P1F}
        """)
        for l in dma(1) + dma(2): a(l)
    srd(a, sQO, pWS, 0, WS_USED)
    if not MERGE: first_loads()
    a(f"""
    v_mov_b32 {v(vIDX)}, 0xdddddddd
    v_and_b32 {v(vT0)}, 15, {v(vL)}
    v_lshrrev_b32 {v(vT1)}, 5, {v(vL)}
    v_lshlrev_b32 {v(vV0)}, 4, {v(vT0)}
    v_lshl_add_u32 {v(vV0)}, {v(vT1)}, 8, {v(vV0)}
    v_add_u32 {v(vV0)}, 1024, {v(vV0)}
    v_add_u32 {v(vV1)}, 512, {v(vV0)}
    v_and_b32 {v(vPR)}, 11, {v(vL)}
    v_cmp_eq_u32 vcc, 0, {v(vPR)}
    v_mov_b32 {v(vPW)}, 2048
    v_mov_b32 {v(vC)}, {2048 if os.environ.get("ALLONES") else 2064}
    v_cndmask_b32 {v(vC)}, {v(vC)}, {v(vPW)}, vcc
    v_and_b32 {v(vPR)}, 16, {v(vL)}
    v_cmp_ne_u32 vcc, 0, {v(vPR)}
    v_mov_b32 {v(V[1]+4)}, 0
    v_mov_b32 {v(V[1]+5)}, 0
    v_cndmask_b32 {v(vV0)}, {v(vV0)}, {v(vC)}, vcc
    v_cndmask_b32 {v(vV1)}, {v(vV1)}, {v(vC)}, vcc
    v_mov_b32 {v(V[1]+6)}, 0
    v_mov_b32 {v(V[1]+7)}, 0
    v_mul_u32_u24 {v(vT0)}, {TB}, {v(vT0)}
    v_mov_b32 {v(V[0])}, 0x{ONES:x}
    v_mov_b32 {v(V[0]+1)}, 0x{ONES:x}
    v_mov_b32 {v(V[0]+2)}, 0x{ONES:x}
    v_mov_b32 {v(V[0]+3)}, 0x{ONES:x}
    ds_write_b128 {v(vT0)}, {v(V[0],4)} offset:2048
    ds_write_b128 {v(vT0)}, {v(V[1]+4,4)} offset:2064
    s_lshl_b32 {s(sT)}, {s(sW)}, 8
    v_lshl_add_u32 {v(vPW)}, {v(vL)}, 2, {s(sT)}
    v_and_b32 {v(vPR)}, 3, {v(vL)}
    v_lshlrev_b32 {v(vPR)}, 8, {v(vPR)}
    v_lshl_add_u32 {v(vPR)}, {v(vL)}, 2, {v(vPR)}
    """)
    if not MERGE: a(f"""
    v_mov_b32 {v(vPROG)}, 0
    ds_write_b32 {v(vPW)}, {v(vPROG)} offset:{PROG_A}
    s_waitcnt lgkmcnt(0)
    s_barrier
    """)
    a(f"v_mov_b32 {v(vPROG)}, 1")
    for j in range(9):
        a(f"v_mov_b32 {v(Oa+j)}, 0"); a(f"v_mov_b32 {v(Ob+j)}, 0")
    if MERGE:
        a(f"""
        s_lshr_b32 {s(sT)}, {s(sHD)}, 2
        s_add_u32 {s(sT)}, {s(sT)}, {C_HB}
        v_lshl_add_u32 {v(vT0)}, {v(vL)}, 3, {s(sT)}
        v_lshlrev_b32 {v(vT0)}, {FSH}, {v(vT0)}
        s_mov_b32 {s(sT2)}, 0x{FLG:x}
        s_mov_b32 {s(sT)}, {SPIN}
        s_cmp_lg_u32 {s(sW)}, 0
        s_cbranch_scc1 AT_GOW
        s_mov_b64 exec, 7
        """)
        a.label("AT_P")
        a(f"""
        v_mov_b32 {v(vC)}, 0
        buffer_atomic_add {v(vC)}, {v(vT0)}, {s(sQO,4)}, {s(sT2)} offen sc0 sc1
        s_sub_u32 {s(sT)}, {s(sT)}, 1
        s_cmp_eq_u32 {s(sT)}, 0
        s_cbranch_scc1 AT_PX
        s_waitcnt vmcnt(0)
        v_cmp_gt_u32 vcc, 16, {v(vC)}
        s_cbranch_vccz AT_PX
        s_sleep {PSL}
        s_branch AT_P
        """)
        a.label("AT_PX")
        a(f"""
        s_mov_b64 exec, -1
        s_waitcnt vmcnt(0)
        v_mov_b32 {v(vT1)}, 0
        ds_write_b32 {v(vT1)}, {v(vPROG)} offset:{GO_A}
        s_branch AT_GO
        """)
        a.label("AT_GOW")
        a(f"""
        v_mov_b32 {v(vT1)}, 0
        ds_read_b32 {v(vC)}, {v(vT1)} offset:{GO_A}
        s_sub_u32 {s(sT)}, {s(sT)}, 1
        s_cmp_eq_u32 {s(sT)}, 0
        s_cbranch_scc1 AT_GO
        s_waitcnt lgkmcnt(0)
        v_cmp_eq_u32 vcc, 0, {v(vC)}
        s_cbranch_vccnz AT_GOW
        """)
        a.label("AT_GO")
        stamp(a, 9)
        first_loads()
    a(f"""
    s_lshl_b32 {s(sS3)}, {s(sQB)}, 2
    s_add_u32 {s(sS3)}, {s(sS3)}, {s(sW)}
    s_lshr_b32 {s(sS1)}, {s(sS3)}, 1
    s_lshl_b32 {s(sS1)}, {s(sS1)}, {FSH}
    s_add_u32 {s(sS1)}, {s(sS1)}, 0x{cnt(C_S1):x}
    s_lshl_b32 {s(sS3)}, {s(sS3)}, 2
    s_lshr_b32 {s(sT)}, {s(sHD)}, 3
    s_add_u32 {s(sS3)}, {s(sS3)}, {s(sT)}
    s_lshl_b32 {s(sS3)}, {s(sS3)}, {FSH}
    s_add_u32 {s(sS3)}, {s(sS3)}, 0x{cnt(C_S3):x}
    v_mov_b32 {v(vS1)}, 0
    v_mov_b32 {v(vZA)}, 0
    v_mov_b32 {v(vONEA)}, 1
    s_mov_b32 {s(sNEED)}, 2
    s_mov_b32 {s(sIT)}, 4
    s_mov_b32 {s(sT)}, {SPIN}
    s_waitcnt vmcnt(4)
    ds_write_b32 {v(vPW)}, {v(vPROG)} offset:{PROG_A}
    """)
    a.label("AT_W0")
    a(f"""
    ds_read_b32 {v(vC)}, {v(vPR)} offset:{PROG_A}
    s_sub_u32 {s(sT)}, {s(sT)}, 1
    s_cmp_eq_u32 {s(sT)}, 0
    s_cbranch_scc1 AT_X0
    s_waitcnt lgkmcnt(0)
    v_cmp_gt_u32 vcc, 1, {v(vC)}
    s_cbranch_vccnz AT_W0
    """)
    a.label("AT_X0")
    stamp(a, 1)
    if os.environ.get("NOATT"): a("s_endpgm")
    a(f"""
    ds_read_b128 {v(K[0],4)}, {v(vKA)}
    ds_read_b128 {v(V[0],4)}, {v(vV0)}
    ds_read_b128 {v(V[0]+4,4)}, {v(vV1)}
    s_waitcnt lgkmcnt(2)
    v_mfma_f32_32x32x16_bf16 {v(Sa,16)}, {v(K[0],4)}, {v(Qa,4)}, 0
    v_mfma_f32_32x32x16_bf16 {v(Sb,16)}, {v(K[0],4)}, {v(Qb,4)}, 0
    """)
    def rowmax(S, dst, first=True):
        if first: a(f"v_max3_f32 {v(dst)}, {v(S)}, {v(S+1)}, {v(S+2)}")
        else: a(f"v_max3_f32 {v(dst)}, {v(dst)}, {v(S)}, {v(S+1)}"); a(f"v_max_f32 {v(dst)}, {v(dst)}, {v(S+2)}")
        for j in range(3, 15, 2): a(f"v_max3_f32 {v(dst)}, {v(dst)}, {v(S+j)}, {v(S+j+1)}")
        a(f"v_max_f32 {v(dst)}, {v(dst)}, {v(S+15)}")
    def spread(M, t):
        a(f"v_mov_b32 {v(t)}, {v(M)}")
        a(f"v_permlane32_swap_b32 {v(M)}, {v(t)}")
        a(f"v_max_f32 {v(t)}, {v(M)}, {v(t)}")
        for j in range(16): a(f"v_sub_f32 {v(M+j)}, 0, {v(t)}")
    rowmax(Sa, Ma); spread(Ma, vT0)
    a(f"v_mfma_f32_32x32x16_bf16 {v(Sa,16)}, {v(K[0],4)}, {v(Qa,4)}, {v(Ma,16)}")
    rowmax(Sb, Mb); spread(Mb, vT1)
    for j in range(8): a(f"v_mov_b32 {v(Sb+8+j)}, 0")
    pv = lambda O, Vr, S: "s_nop 0" if os.environ.get("NOPV") else f"v_smfmac_f32_32x32x32_bf16 {v(O,16)}, {v(Vr,4)}, {v(S,8)}, {v(vIDX)}"
    qk = lambda S, Kr, Q, M: f"v_mfma_f32_32x32x16_bf16 {v(S,16)}, {v(Kr,4)}, {v(Q,4)}, {'0' if os.environ.get('CZERO') else v(M,16)}"
    stamp(a, 2)
    if os.environ.get("DIAG"):
        for r_ in range(40, 52): a(f"s_mov_b32 s{r_}, 0")
    a(".p2align 6")
    a.label("AT_LOOP")
    for t in range(16):
        p = t & 1; q = p ^ 1; j = t & 3; nx = ((t+1) % 16)*TB
        A = {2: [pv(Ob, V[q]+4, Sb+8), "s_waitcnt lgkmcnt(0)"], 6: [qk(Sb, K[p], Qb, Mb), f"ds_read_b128 {v(V[q],4)}, {v(vV0)} offset:{nx}"],
             11: [pv(Oa, V[p], Sa), f"ds_read_b128 {v(V[q]+4,4)}, {v(vV1)} offset:{nx}"]}
        B = {2: [pv(Oa, V[p]+4, Sa+8), "s_waitcnt lgkmcnt(2)"], 6: [qk(Sa, K[q], Qa, Ma)], 11: [pv(Ob, V[p], Sb)]}
        if POS[0] < 2:
            A[2] = A[2][::-1]; B[2] = B[2][::-1]
        if j == 3:
            A[2] += [f"v_cmp_gt_u32 vcc, {s(sNEED)}, {v(vC)}", f"s_cbranch_vccnz AT_SPIN{t}", f"AT_BACK{t}:"]
            d = dma(((t >> 2) + 3) & 3)
            B[6] += [d[0], f"s_add_u32 {s(sNEED)}, {s(sNEED)}, 1", d[2]]
            B[11] += [d[3], d[4], d[5]]
        A[2] += [f"ds_read_b128 {v(K[q],4)}, {v(vKA)} offset:{nx}"]
        if j == 0:
            B[6] += [f"v_add_u32 {v(vPROG)}, 1, {v(vPROG)}"]
            B[11] += ["s_waitcnt vmcnt(2)", f"ds_write_b32 {v(vPW)}, {v(vPROG)} offset:{PROG_A}"]
        if t == 5:
            B[6] += [f"s_cmp_eq_u32 {s(sIT)}, 1", f"s_cselect_b32 {s(sKV+2)}, 0, {s(sKV+2)}"]
        if t == 9 and CANARY:
            B[6] += ["s_mov_b64 exec, 1", f"buffer_atomic_umax {v(vS1)}, {v(vZA)}, {s(sQO,4)}, {s(sS1)} offen sc0 sc1", "s_mov_b64 exec, -1"]
        if j == 2:
            B[11] += [f"ds_read_b32 {v(vC)}, {v(vPR)} offset:{PROG_A}"]
        if os.environ.get("DIAG"):
            if j == 3:
                B[6] = [B[6][0], "s_memtime s[40:41]"] + B[6][1:] + ["s_memtime s[42:43]"]
                B[11] = [B[11][0], "s_memtime s[44:45]"] + B[11][1:] + ["s_memtime s[46:47]"]
            if j == 0:
                A[2] = A[2][:2] + ["s_sub_u32 s42, s42, s40", "s_add_u32 s74, s74, s42", "s_sub_u32 s46, s46, s44", "s_add_u32 s76, s76, s46"] + A[2][2:]
                B[11] = [B[11][0], "s_memtime s[48:49]", B[11][1], "s_memtime s[50:51]"] + B[11][2:]
            if j == 1:
                A[2] = A[2][:2] + ["s_sub_u32 s50, s50, s48", "s_add_u32 s78, s78, s50"] + A[2][2:]
        if t == 15:
            B[14] = [f"s_sub_u32 {s(sIT)}, {s(sIT)}, 1", f"s_cmp_lg_u32 {s(sIT)}, 0"]
        for S, ins in ((Sa, A), (Sb, B)):
            ins = {{2: POS[0], 6: POS[1], 11: POS[2]}.get(k_, k_): v_ for k_, v_ in ins.items()}
            for i in range(16):
                for l in ins.get(i, []): a(l)
                a(f"{os.environ.get('EXPOP', 'v_exp_f32')} {v(S+i)}, {v(S+i)}")
    a("s_cbranch_scc1 AT_LOOP")
    a("s_nop 0")
    a(pv(Ob, V[1]+4, Sb+8))
    if HOLD:
        a(f"v_add_u32 {v(vPROG)}, 1, {v(vPROG)}")
        a(f"ds_write_b32 {v(vPW)}, {v(vPROG)} offset:{PROG_A}")
    stamp(a, 3)
    a.label("AT_FIN")
    a("s_nop 7")
    for O, t in ((Oa, vT0), (Ob, vT1)):
        a(f"v_max3_f32 {v(t)}, abs({v(O)}), abs({v(O+1)}), {v(O+8)}")
        for j in range(2, 8, 2): a(f"v_max3_f32 {v(t)}, abs({v(O+j)}), abs({v(O+j+1)}), {v(t)}")
    a(f"""
    v_max_f32 {v(vT0)}, {v(vT0)}, {v(vT1)}
    v_cmp_nlt_f32 vcc, {v(vT0)}, {v(vBIG)}
    s_cmp_eq_u32 {s(sIT)}, 0
    s_cselect_b64 vcc, vcc, 0
    s_cbranch_vccnz AT_SLOW
    """)
    if CANARY:
        a(f"""
        s_mov_b64 exec, 1
        v_cmp_gt_u32 vcc, 16, {v(vS1)}
        s_cbranch_vccnz AT_S1W
        """)
        a.label("AT_S1X")
        a(f"buffer_atomic_add {v(vONEA)}, {v(vZA)}, {s(sQO,4)}, {s(sS3)} offen sc1")
        a("s_mov_b64 exec, -1")
    a(f"""
    v_rcp_f32 {v(vT0)}, {v(Oa+8)}
    v_rcp_f32 {v(vT1)}, {v(Ob+8)}
    s_lshl_b32 {s(sT)}, {s(sHD)}, 10
    s_lshl_b32 {s(sT2)}, {s(sQB)}, 18
    s_add_u32 {s(sT)}, {s(sT)}, {s(sT2)}
    s_lshl_b32 {s(sT2)}, {s(sW)}, 16
    s_add_u32 {s(sT)}, {s(sT)}, {s(sT2)}
    s_add_u32 {s(sT)}, {s(sT)}, 0x{OF:x}
    s_add_u32 {s(sT2)}, {s(sT)}, 0x8000
    """)
    for O, t, o in ((Oa, vT0, sT), (Ob, vT1, sT2)):
        for j in range(8): a(f"v_mul_f32 {v(O+j)}, {v(O+j)}, {v(t)}")
        for j in range(4): a(f"v_cvt_pk_bf16_f32 {v(O+j)}, {v(O+2*j)}, {v(O+2*j+1)}")
        a(f"buffer_store_dwordx4 {v(O,4)}, {v(vKA)}, {s(sQO,4)}, {s(o)} offen sc1")
    if not CANARY: a(f"""
    s_mov_b64 exec, 1
    s_waitcnt vmcnt(0)
    buffer_atomic_add {v(vONEA)}, {v(vZA)}, {s(sQO,4)}, {s(sS3)} offen sc1
    """)
    stamp(a, 4)
    stamp_flush(a, 1, sW, pWS, "A")
    a("s_endpgm")
    for t in (3, 7, 11, 15):
        a.label(f"AT_SPIN{t}")
        a(f"s_mov_b32 {s(sT)}, {SPIN}")
        a.label(f"AT_SPINL{t}")
        if os.environ.get("DIAG"): a("s_add_u32 s80, s80, 1")
        a(f"""
        ds_read_b32 {v(vC)}, {v(vPR)} offset:{PROG_A}
        s_sub_u32 {s(sT)}, {s(sT)}, 1
        s_cmp_eq_u32 {s(sT)}, 0
        s_cbranch_scc1 AT_BACK{t}
        s_waitcnt lgkmcnt(0)
        v_cmp_gt_u32 vcc, {s(sNEED)}, {v(vC)}
        s_cbranch_vccnz AT_SPINL{t}
        s_branch AT_BACK{t}
        """)
    if CANARY:
        a.label("AT_S1W")
        a(f"s_mov_b32 {s(sT)}, {SPIN}")
        a.label("AT_S1L")
        a(f"""
        buffer_atomic_umax {v(vS1)}, {v(vZA)}, {s(sQO,4)}, {s(sS1)} offen sc0 sc1
        s_sub_u32 {s(sT)}, {s(sT)}, 1
        s_cmp_eq_u32 {s(sT)}, 0
        s_cbranch_scc1 AT_S1X
        s_waitcnt vmcnt(0)
        v_cmp_gt_u32 vcc, 16, {v(vS1)}
        s_cbranch_vccz AT_S1X
        s_sleep 8
        s_branch AT_S1L
        """)
    a.label("AT_SLOW")
    a(f"""
    s_mov_b32 {s(sIT)}, 1
    s_mov_b32 {s(sKV+2)}, 0x20000
    s_mov_b32 {s(sKO)}, 0
    v_mov_b32 {v(Ma)}, 0xff800000
    v_mov_b32 {v(Mb)}, 0xff800000
    s_waitcnt vmcnt(0) lgkmcnt(0)
    """)
    a.label("AT_SLOW1")
    a(f"""
    buffer_load_dwordx4 {v(K[0],4)}, {v(vKA)}, {s(sKV,4)}, {s(sKO)} offen {P1F}
    s_add_u32 {s(sKO)}, {s(sKO)}, 2048
    s_waitcnt vmcnt(0)
    v_mfma_f32_32x32x16_bf16 {v(Sa,16)}, {v(K[0],4)}, {v(Qa,4)}, 0
    v_mfma_f32_32x32x16_bf16 {v(Sb,16)}, {v(K[0],4)}, {v(Qb,4)}, 0
    """)
    rowmax(Sa, Ma, False); rowmax(Sb, Mb, False)
    a(f"""
    s_cmp_lt_u32 {s(sKO)}, 0x20000
    s_cbranch_scc1 AT_SLOW1
    """)
    spread(Ma, vT0); spread(Mb, vT1)
    for j in range(9):
        a(f"v_mov_b32 {v(Oa+j)}, 0"); a(f"v_mov_b32 {v(Ob+j)}, 0")
    for j in range(8): a(f"v_mov_b32 {v(V[0]+j)}, 0x{ONES:x}")
    a(f"""
    s_mov_b32 {s(sKO)}, 0
    s_mov_b32 {s(sEX)}, 0xffff
    s_mov_b32 {s(sEX+1)}, 0xffff
    """)
    a.label("AT_SLOW2")
    a(f"""
    buffer_load_dwordx4 {v(K[0],4)}, {v(vKA)}, {s(sKV,4)}, {s(sKO)} offen {P1F}
    s_mov_b64 exec, {s(sEX,2)}
    buffer_load_dwordx4 {v(V[0],4)}, {v(vV0)}, {s(sKV,4)}, {s(sKO)} offen {P1F}
    buffer_load_dwordx4 {v(V[0]+4,4)}, {v(vV1)}, {s(sKV,4)}, {s(sKO)} offen {P1F}
    s_mov_b64 exec, -1
    s_add_u32 {s(sKO)}, {s(sKO)}, 2048
    s_waitcnt vmcnt(0)
    """)
    a(qk(Sa, K[0], Qa, Ma)); a(qk(Sb, K[0], Qb, Mb))
    for S in (Sa, Sb):
        for i in range(16): a(f"v_exp_f32 {v(S+i)}, {v(S+i)}")
    a(pv(Oa, V[0], Sa)); a(pv(Oa, V[0]+4, Sa+8)); a(pv(Ob, V[0], Sb)); a(pv(Ob, V[0]+4, Sb+8))
    a(f"""
    s_cmp_lt_u32 {s(sKO)}, 0x20000
    s_cbranch_scc1 AT_SLOW2
    s_nop 3
    s_branch AT_FIN
    """)
vBIG = 13

def chain(a, pfx="CH"):
    vm = VM(a)
    PRIO = os.environ.get("PRIO", 2)
    sH, sX, sWS, sOUT = 8, 12, 40, 44
    pX, pOUT, pWS = 16, 18, 26
    sW, sC, sTG, sM16, sT64, sJ, sT, sT2, sT3, sSO, sFL, sNB, sFT, sTH = 28, 29, 30, 31, 32, 33, 34, 35, 36, 37, 38, 39, 48, 49
    sR1, sR2, sB1, sB2, sTT, sWB, sROT = 50, 51, 52, 53, 54, 55, 56
    vL, vI, vHI, vT0, vT1, vT2, vT3 = 1, 2, 3, 4, 5, 6, 7
    vPW, vPR, vPROG, vC, vDUMP, vTOK = 9, 10, 11, 12, 14, 15
    vWA = [16, 17]; vRA = [18, 19, 20]; vH = [21, 22]; vXO, vSTO, vZ = 23, 24, 25
    v3A = [26, 27]; vL16 = 28; vPK = 29
    ACC = 32
    WF = lambda p, f: 96 + 12*p + 4*f
    BIG = 120
    XR, STv = 248, 252
    lo = lambda: a("s_setprio 0")
    hi = lambda: a(f"s_setprio {PRIO}")
    a(f"""
    s_sub_u32 {s(sC)}, {s(sW)}, 4
    s_lshl_b32 {s(sT)}, {s(sC)}, 8
    v_lshl_add_u32 {v(vPW)}, {v(vL)}, 2, {s(sT)}
    v_mov_b32 {v(vPROG)}, 0
    v_mov_b32 {v(vZ)}, 0
    """)
    if not MERGE: a(f"""
    ds_write_b32 {v(vPW)}, {v(vPROG)} offset:{PROG_B}
    ds_write_b32 {v(vZ)}, {v(vZ)} offset:{CNT_B}
    ds_write_b32 {v(vZ)}, {v(vZ)} offset:{CNT_B+4}
    """)
    a(f"""
    s_and_b32 {s(sT)}, s2, 7
    s_lshl_b32 {s(sTG)}, {s(sT)}, 1
    s_bfe_u32 {s(sT2)}, s2, 0x10003
    s_add_u32 {s(sTG)}, {s(sTG)}, {s(sT2)}
    s_lshr_b32 {s(sM16)}, s2, 4
    s_and_b32 {s(sT)}, {s(sM16)}, 1
    s_lshl_b32 {s(sT64)}, {s(sTG)}, 1
    s_add_u32 {s(sT64)}, {s(sT64)}, {s(sT)}
    s_lshr_b32 {s(sJ)}, {s(sM16)}, 1
    s_and_b32 {s(sFT)}, {s(sC)}, 1
    s_lshr_b32 {s(sTH)}, {s(sC)}, 1
    s_lshl_b32 {s(sTT)}, {s(sT64)}, 1
    s_add_u32 {s(sTT)}, {s(sTT)}, {s(sTH)}
    v_and_b32 {v(vI)}, 31, {v(vL)}
    v_lshrrev_b32 {v(vHI)}, 5, {v(vL)}
    v_lshlrev_b32 {v(vL16)}, 4, {v(vL)}
    s_lshl_b32 {s(sT)}, {s(sJ)}, 1
    s_add_u32 {s(sT)}, {s(sT)}, {s(sFT)}
    s_lshl_b32 {s(sT)}, {s(sT)}, 10
    v_add_u32 {v(vWA[0])}, {s(sT)}, {v(vL16)}
    v_xor_b32 {v(vWA[1])}, 1024, {v(vWA[0])}
    s_add_u32 {s(sT)}, {s(sTH)}, 1
    s_sub_u32 {s(sT2)}, 0, {s(sT)}
    s_cmp_eq_u32 {s(sFT)}, 0
    s_cselect_b32 {s(sT)}, {s(sT2)}, {s(sT)}
    s_lshl_b32 {s(sT3)}, {s(sTT)}, 5
    v_add_u32 {v(vTOK)}, {s(sT3)}, {v(vI)}
    v_mov_b32 {v(vT3)}, 0x40000000
    """)
    for b in (0, 1):
        a(f"""
        v_xor_b32 {v(vT0)}, {32*b}, {v(vTOK)}
        v_add_u32 {v(vT0)}, {s(sT)}, {v(vT0)}
        v_cmp_gt_u32 vcc, 0x800, {v(vT0)}
        v_lshrrev_b32 {v(vT1)}, 5, {v(vT0)}
        v_and_b32 {v(vT0)}, 31, {v(vT0)}
        v_lshlrev_b32 {v(vT0)}, 4, {v(vT0)}
        v_lshl_add_u32 {v(vT0)}, {v(vT1)}, 15, {v(vT0)}
        v_lshl_add_u32 {v(vT0)}, {v(vHI)}, 9, {v(vT0)}
        v_cndmask_b32 {v(vH[b])}, {v(vT3)}, {v(vT0)}, vcc
        """)
    a(f"""
    s_and_b32 {s(sT)}, {s(sT64)}, 3
    s_lshl_b32 {s(sROT)}, {s(sT)}, 1
    s_add_u32 {s(sROT)}, {s(sROT)}, {s(sJ)}
    s_mov_b32 {s(sR1)}, {s(sROT)}
    s_lshl_b32 {s(sB1)}, {s(sC)}, 3
    s_waitcnt lgkmcnt(0)
    """)
    srd(a, sWS, pWS, 0, WS_USED)
    srd(a, sH, pWS, HF, 0x200000)
    if not MERGE: a("s_barrier")
    def rot8(r):
        a(f"""
        s_and_b32 {s(r)}, {s(r)}, 7
        s_add_u32 {s(sT)}, {s(r)}, {s(sB1)}
        s_add_u32 {s(r)}, {s(r)}, 1
        """)
    def wload(dst, base, tag):
        a(f"s_lshl_b32 {s(sSO)}, {s(sT)}, 14")
        a(f"s_add_u32 {s(sSO)}, {s(sSO)}, 0x{base:x}")
        for f in (0, 1): vm.op(f"buffer_load_dwordx4 {v(dst+4*f,4)}, {v(vWA[f])}, {s(sWS,4)}, {s(sSO)} offen {P1F}", tag)
    def load1(st):
        rot8(sR1)
        a(f"s_lshl_b32 {s(sT2)}, {s(sT)}, 10")
        wload(BIG+16*st, W2F, f"a{st}")
        for b in (0, 1): vm.op(f"buffer_load_dwordx4 {v(BIG+16*st+8+4*b,4)}, {v(vH[b])}, {s(sH,4)}, {s(sT2)} offen {P1F}", f"a{st}")
    LA1 = int(os.environ.get('LA1', 4))
    if not MERGE:
        for st in range(LA1): load1(st)
    srd(a, sX, pX, 0, 0x200000)
    srd(a, sOUT, pOUT, 0, 0x200000)
    a(f"""
    v_lshlrev_b32 {v(vXO)}, 10, {v(vTOK)}
    v_lshl_add_u32 {v(vXO)}, {v(vHI)}, 4, {v(vXO)}
    s_lshl_b32 {s(sT)}, {s(sJ)}, 7
    s_lshl_b32 {s(sT2)}, {s(sFT)}, 6
    s_add_u32 {s(sT)}, {s(sT)}, {s(sT2)}
    v_add_u32 {v(vXO)}, {s(sT)}, {v(vXO)}
    v_lshlrev_b32 {v(vSTO)}, 3, {v(vTOK)}
    v_add_u32 {v(v3A[0])}, {BR}, {v(vL16)}
    v_add_u32 {v(v3A[1])}, {BR+49152}, {v(vL16)}
    s_mul_i32 {s(sT)}, {s(sC)}, 12288
    s_add_u32 {s(sT)}, {s(sT)}, {DUMP}
    v_add_u32 {v(vDUMP)}, {s(sT)}, {v(vL16)}
    """)
    for u in (1, 2, 3):
        a(f"""
        s_xor_b32 {s(sT)}, {s(sC)}, {u}
        s_mul_i32 {s(sT)}, {s(sT)}, 12288
        s_add_u32 {s(sT)}, {s(sT)}, {DUMP + (u-1)*4096}
        v_add_u32 {v(vRA[u-1])}, {s(sT)}, {v(vL16)}
        """)
    a(f"""
    v_and_b32 {v(vPR)}, 3, {v(vL)}
    v_lshlrev_b32 {v(vPR)}, 8, {v(vPR)}
    v_lshl_add_u32 {v(vPR)}, {v(vL)}, 2, {v(vPR)}
    s_lshl_b32 {s(sFL)}, {s(sTG)}, {FSH}
    s_add_u32 {s(sFL)}, {s(sFL)}, 0x{FLG:x}
    s_mov_b32 {s(sNB)}, 0
    s_and_b32 {s(sT)}, {s(sTG)}, 1
    s_lshl_b32 {s(sT)}, {s(sT)}, 2
    s_lshl_b32 {s(sR2)}, {s(sM16)}, 1
    s_add_u32 {s(sR2)}, {s(sR2)}, {s(sT)}
    s_mul_i32 {s(sWB)}, {s(sM16)}, 3072
    s_add_u32 {s(sWB)}, {s(sWB)}, 0x{W3F:x}
    """)
    nlab = [0]
    def arrive():
        a(f"""
        v_add_u32 {v(vPROG)}, 1, {v(vPROG)}
        s_add_u32 {s(sNB)}, {s(sNB)}, 1
        s_waitcnt lgkmcnt(0)
        ds_write_b32 {v(vPW)}, {v(vPROG)} offset:{PROG_B}
        """)
    def await_(prog=PROG_B, need=None, sleep=0, addr=None):
        n = nlab[0]; nlab[0] += 1
        a(f"s_mov_b32 {s(sT)}, {SPIN}")
        a.label(f"{pfx}_W{n}")
        if sleep: a(f"s_sleep {sleep}")
        a(f"""
        ds_read_b32 {v(vC)}, {v(vPR if addr is None else addr)} offset:{prog}
        s_sub_u32 {s(sT)}, {s(sT)}, 1
        s_cmp_eq_u32 {s(sT)}, 0
        s_cbranch_scc1 {pfx}_X{n}
        s_waitcnt lgkmcnt(0)
        v_cmp_gt_u32 vcc, {s(sNB) if need is None else need}, {v(vC)}
        s_cbranch_vccnz {pfx}_W{n}
        """)
        a.label(f"{pfx}_X{n}")
        a("s_waitcnt lgkmcnt(0)")
    def signal(k):
        n = nlab[0]; nlab[0] += 1
        a(f"""
        s_mov_b64 exec, 1
        v_mov_b32 {v(vT0)}, 1
        ds_add_rtn_u32 {v(vT1)}, {v(vZ)}, {v(vT0)} offset:{CNT_B+4*k}
        s_add_u32 {s(sT2)}, {s(sFL)}, {(16 << FSH)*k}
        s_waitcnt lgkmcnt(0)
        v_cmp_ne_u32 vcc, 3, {v(vT1)}
        s_cbranch_vccnz {pfx}_S{n}
        buffer_atomic_add {v(vT0)}, {v(vZ)}, {s(sWS,4)}, {s(sT2)} offen sc1
        """)
        a.label(f"{pfx}_S{n}")
        a("s_mov_b64 exec, -1")
    def poll(count, addr=None, lanes=1, everyone=False, depth=1):
        n = nlab[0]; nlab[0] += 1
        ad = v(vZ if addr is None else addr)
        R = [vC, vPK, vT1][:depth]
        rd = lambda r_: f"buffer_atomic_umax {v(r_)}, {ad}, {s(sWS,4)}, {s(sT2)} offen sc0 sc1"
        if not everyone:
            a(f"s_cmp_lg_u32 {s(sC)}, 0")
            a(f"s_cbranch_scc1 {pfx}_Q{n}")
        a(f"s_mov_b32 {s(sT)}, {SPIN}")
        for r_ in R: a(f"v_mov_b32 {v(r_)}, 0")
        a(f"s_mov_b64 exec, {(1 << lanes) - 1}")
        for r_ in R[:-1]:
            a(rd(r_)); a(f"s_sleep {PST}")
        a.label(f"{pfx}_P{n}")
        for i in range(depth):
            a(rd(R[i-1]))
            if i == 0: a(f"""
            s_sub_u32 {s(sT)}, {s(sT)}, 1
            s_cmp_eq_u32 {s(sT)}, 0
            s_cbranch_scc1 {pfx}_Q{n}
            """)
            a(f"""
            s_waitcnt vmcnt({depth-1})
            v_cmp_gt_u32 vcc, {count}, {v(R[i])}
            s_cbranch_vccz {pfx}_Q{n}
            """)
        if depth == 1: a(f"s_sleep {PSL}")
        a(f"s_branch {pfx}_P{n}")
        a.label(f"{pfx}_Q{n}")
        a("s_mov_b64 exec, -1")
        if depth == 1 or not everyone: a("s_waitcnt vmcnt(0)")
        vm.q = []
        if not everyone:
            arrive(); await_()
    def mm4(wreg, breg, first, keep0):
        for u in (1, 2, 3, 0):
            c = "0" if (first and not (keep0 and u == 0)) else v(ACC+16*u, 16)
            a(f"v_mfma_f32_32x32x16_bf16 {v(ACC+16*u,16)}, {v(wreg+4*(u&1),4)}, {v(breg+4*(u>>1),4)}, {c}")
    def reduce4(between=None):
        lo()
        for u in (1, 2, 3):
            for q in range(4): a(f"ds_write_b128 {v(vDUMP)}, {v(ACC+16*u+4*q,4)} offset:{(u-1)*4096+q*1024}")
        hi()
        arrive()
        if between: between()
        await_()
        for u in (1, 2, 3):
            for q in range(4): a(f"ds_read_b128 {v(ACC+16*u+4*q,4)}, {v(vRA[u-1])} offset:{q*1024}")
        for u in (1, 2, 3):
            a(f"s_waitcnt lgkmcnt({4*(3-u)})")
            for j in range(0, 16, 2): a(f"v_pk_add_f32 {v(ACC+j,2)}, {v(ACC+j,2)}, {v(ACC+16*u+j,2)}")
    def w3dma(slot0, per, i):
        a(f"""
        s_mul_i32 {s(sT)}, {s(sC)}, {per}
        s_add_u32 {s(sT)}, {s(sT)}, {slot0+i}
        s_add_u32 {s(sT2)}, {s(sT)}, {s(sR2)}
        s_and_b32 {s(sT2)}, {s(sT2)}, 31
        s_mul_i32 {s(sT)}, {s(sT)}, 3072
        s_add_u32 m0, {s(sT)}, {BR}
        s_mul_i32 {s(sT2)}, {s(sT2)}, {44*1024}
        s_add_u32 {s(sT2)}, {s(sT2)}, {s(sWB)}
        """)
        for f in range(3): vm.op(f"buffer_load_dwordx4 {v(vL16)}, {s(sWS,4)}, {s(sT2)} offen offset:{1024*f} {P1F} lds", "w3")
    if os.environ.get("NOCHAIN"): a("s_endpgm")
    if MERGE:
        a(f"""
        s_lshl_b32 {s(sT)}, {s(sT64)}, 6
        s_add_u32 {s(sT2)}, {s(sT)}, 65
        s_min_u32 {s(sT2)}, {s(sT2)}, 2047
        s_max_u32 {s(sT)}, {s(sT)}, 2
        s_sub_u32 {s(sT)}, {s(sT)}, 2
        s_lshr_b32 {s(sT)}, {s(sT)}, 7
        s_lshr_b32 {s(sT2)}, {s(sT2)}, 7
        s_add_u32 {s(sT)}, {s(sT)}, {C_HR}
        s_add_u32 {s(sT2)}, {s(sT2)}, {C_HR}
        s_add_u32 {s(sT3)}, {s(sJ)}, {C_W2}
        v_mov_b32 {v(vT2)}, {s(sT)}
        v_mov_b32 {v(vT3)}, 4
        v_writelane_b32 {v(vT2)}, {s(sT2)}, 1
        v_writelane_b32 {v(vT3)}, 8, 0
        v_writelane_b32 {v(vT2)}, {s(sT3)}, 2
        s_mul_i32 {s(sT)}, {s(sM16)}, 3
        s_add_u32 {s(sT2)}, {s(sT)}, 2
        s_lshr_b32 {s(sT)}, {s(sT)}, 1
        s_lshr_b32 {s(sT2)}, {s(sT2)}, 1
        s_min_u32 {s(sT)}, {s(sT)}, 21
        s_min_u32 {s(sT2)}, {s(sT2)}, 21
        s_add_u32 {s(sT)}, {s(sT)}, {C_W3}
        s_add_u32 {s(sT2)}, {s(sT2)}, {C_W3}
        v_writelane_b32 {v(vT3)}, 8, 1
        v_writelane_b32 {v(vT2)}, {s(sT)}, 3
        s_add_u32 {s(sT)}, {s(sJ)}, {C_WO}
        v_writelane_b32 {v(vT2)}, {s(sT2)}, 4
        s_add_u32 {s(sT2)}, {s(sJ)}, {C_W4}
        v_writelane_b32 {v(vT3)}, 11, 6
        v_writelane_b32 {v(vT2)}, {s(sT)}, 5
        s_nop 0
        v_writelane_b32 {v(vT2)}, {s(sT2)}, 6
        s_mov_b32 {s(sT2)}, 0x{FLG:x}
        v_lshlrev_b32 {v(vT2)}, {FSH}, {v(vT2)}
        """)
        poll(v(vT3), vT2, 7)
        if BDELAY and not os.environ.get("NOATT"): await_(GO_A, 1, addr=vZ)
        for st in range(LA1): load1(st)
    stamp(a, 1)
    XA, XB, C3 = WF(0, 0), WF(0, 1), WF(0, 2)
    for st in range(8):
        if st+LA1 < 8: load1(st+LA1)
        if st == 8-LA1:
            a(f"""
            s_mov_b32 {s(sT2)}, 0x{ST1:x}
            """)
            vm.op(f"buffer_load_dwordx4 {v(XA,4)}, {v(vXO)}, {s(sX,4)}, 0 offen", "x")
            vm.op(f"buffer_load_dwordx4 {v(XB,4)}, {v(vXO)}, {s(sX,4)}, 0 offen offset:32", "x")
            vm.op(f"buffer_load_dwordx2 {v(STv,2)}, {v(vSTO)}, {s(sWS,4)}, {s(sT2)} offen {P1F}", "x")
        if st == 8-LA1:
            a(f"""
            s_mul_i32 {s(sT)}, {s(sM16)}, 384
            s_add_u32 {s(sT)}, {s(sT)}, 0x{CS3P:x}
            v_lshlrev_b32 {v(vT2)}, 3, {v(vL)}
            """)
            for kp in range(4):
                vm.op(f"buffer_load_dwordx2 {v(C3+2*kp,2)}, {v(vT2)}, {s(sWS,4)}, {s(sT)} offen {P1F}", "x")
                if kp < 3: a(f"s_add_u32 {s(sT)}, {s(sT)}, 6144")
        for i in EARLY.get(st, ()): w3dma(0, 6, i)
        vm.wait(f"a{st}")
        mm4(BIG+16*st, BIG+16*st+8, st == 0, False)
    hi()
    if MERGE:
        a(f"v_mov_b32 {v(vT0)}, 0x{SC_N+8:x}")
        await_(0, 9, addr=vT0)
    stamp(a, 2)
    for i in EARLY.get(8, ()): w3dma(0, 6, i)
    XF = BIG
    def resid():
        vm.wait("x")
        a(f"""
        v_pk_add_f32 {v(C3,2)}, {v(C3,2)}, {v(C3+2,2)}
        v_pk_add_f32 {v(C3+4,2)}, {v(C3+4,2)}, {v(C3+6,2)}
        v_pk_add_f32 {v(C3,2)}, {v(C3,2)}, {v(C3+4,2)}
        ds_write_b64 {v(vT2)}, {v(C3,2)} offset:{CS3L}
        """)
        a(f"""
        v_permlane32_swap_b32 {v(XA)}, {v(XA+2)}
        v_permlane32_swap_b32 {v(XA+1)}, {v(XA+3)}
        v_permlane32_swap_b32 {v(XB)}, {v(XB+2)}
        v_permlane32_swap_b32 {v(XB+1)}, {v(XB+3)}
        v_mul_f32 {v(STv)}, {v(STv)}, {v(STv+1)}
        v_sub_f32 {v(STv+2)}, 0, {v(STv)}
        v_sub_f32 {v(STv+3)}, 0, {v(STv)}
        v_mov_b32 {v(STv)}, {v(STv+1)}
        """)
        for j in range(8):
            a(f"v_lshlrev_b32 {v(XF+2*j)}, 16, {v(XA+j)}")
            a(f"v_and_b32 {v(XF+2*j+1)}, 0xffff0000, {v(XA+j)}")
        for j in range(0, 16, 2): a(f"v_pk_fma_f32 {v(XF+16+j,2)}, {v(XF+j,2)}, {v(STv,2)}, {v(STv+2,2)}")
        for j in range(0, 16, 2): a(f"v_pk_add_f32 {v(ACC+j,2)}, {v(ACC+j,2)}, {v(XF+16+j,2)}")
    reduce4(resid)
    stamp(a, 3)
    arrive()
    for j in range(8): a(f"v_cvt_pk_bf16_f32 {v(XF+16+j)}, {v(ACC+2*j)}, {v(ACC+2*j+1)}")
    a(f"""
    s_lshl_b32 {s(sT3)}, {s(sJ)}, 1
    s_add_u32 {s(sT3)}, {s(sT3)}, {s(sFT)}
    s_lshl_b32 {s(sT)}, {s(sT3)}, 11
    s_lshl_b32 {s(sT2)}, {s(sTT)}, 15
    s_add_u32 {s(sT)}, {s(sT)}, {s(sT2)}
    s_add_u32 {s(sT)}, {s(sT)}, 0x{X1F:x}
    """)
    if CANARY:
        a(f"""
        s_lshl_b32 {s(sT2)}, {s(sJ)}, 2
        s_add_u32 {s(sT2)}, {s(sT2)}, {s(sC)}
        s_lshl_b32 {s(sT2)}, {s(sT2)}, 10
        s_lshl_b32 {s(sSO)}, {s(sT64)}, 16
        s_add_u32 {s(sT2)}, {s(sT2)}, {s(sSO)}
        s_add_u32 {s(sT2)}, {s(sT2)}, 0x{OF:x}
        s_add_u32 {s(sSO)}, {s(sT2)}, 0x8000
        """)
        for j in range(4): a(f"v_mov_b32 {v(XF+32+j)}, -1")
        for r_ in (sT2, sSO): vm.op(f"buffer_store_dwordx4 {v(XF+32,4)}, {v(vL16)}, {s(sWS,4)}, {s(r_)} offen sc1", "st")
    vm.op(f"buffer_store_dwordx4 {v(XF+16,4)}, {v(vL16)}, {s(sWS,4)}, {s(sT)} offen {STF}", "st")
    vm.op(f"buffer_store_dwordx4 {v(XF+20,4)}, {v(vL16)}, {s(sWS,4)}, {s(sT)} offen offset:1024 {STF}", "st")
    a(f"v_pk_add_f32 {v(XR,2)}, {v(ACC,2)}, {v(ACC+2,2)}")
    a(f"v_pk_mul_f32 {v(XR+2,2)}, {v(ACC,2)}, {v(ACC,2)}")
    a(f"v_pk_fma_f32 {v(XR+2,2)}, {v(ACC+2,2)}, {v(ACC+2,2)}, {v(XR+2,2)}")
    for j in range(4, 16, 2):
        a(f"v_pk_add_f32 {v(XR,2)}, {v(XR,2)}, {v(ACC+j,2)}")
        a(f"v_pk_fma_f32 {v(XR+2,2)}, {v(ACC+j,2)}, {v(ACC+j,2)}, {v(XR+2,2)}")
    a(f"v_add_f32 {v(XR)}, {v(XR)}, {v(XR+1)}")
    a(f"v_add_f32 {v(XR+1)}, {v(XR+2)}, {v(XR+3)}")
    halves_sum(a, XR, vT0); halves_sum(a, XR+1, vT1)
    a(f"""
    s_lshl_b32 {s(sT)}, {s(sT3)}, 14
    s_add_u32 {s(sT)}, {s(sT)}, 0x{ST2:x}
    """)
    vm.op(f"buffer_store_dwordx2 {v(XR,2)}, {v(vSTO)}, {s(sWS,4)}, {s(sT)} offen {STF}", "st")
    for j in range(0, 16, 2): a(f"v_pk_add_f32 {v(ACC+j,2)}, {v(ACC+j,2)}, {v(XF+j,2)}")
    await_()
    stamp(a, 4)
    vm.wait("st")
    stamp(a, 5)
    signal(0)
    lo()
    for i in EARLY.get(9, ()): w3dma(0, 6, i)
    for i in range(2): w3dma(24, 2, i)
    a(f"""
    s_lshl_b32 {s(sT)}, {s(sTG)}, 7
    s_lshl_b32 {s(sT2)}, {s(sC)}, 5
    s_add_u32 {s(sT)}, {s(sT)}, {s(sT2)}
    v_add_u32 {v(vT3)}, {s(sT)}, {v(vI)}
    v_lshlrev_b32 {v(vT3)}, 3, {v(vT3)}
    v_lshl_add_u32 {v(vT3)}, {v(vHI)}, 17, {v(vT3)}
    s_lshl_b32 {s(sB2)}, {s(sT)}, 10
    s_add_u32 {s(sB2)}, {s(sB2)}, 0x{X1F:x}
    s_mov_b32 {s(sT2)}, {s(sFL)}
    """)
    stamp(a, 6)
    poll(16, depth=PD1)
    stamp(a, 7)
    A3 = ACC+16; S2 = WF(1, 0) - 4
    def xload(kb):
        a(f"""
        s_and_b32 {s(sR2)}, {s(sR2)}, 31
        s_lshl_b32 {s(sT)}, {s(sR2)}, 10
        s_add_u32 {s(sT)}, {s(sT)}, {s(sB2)}
        s_add_u32 {s(sR2)}, {s(sR2)}, 1
        """)
        vm.op(f"buffer_load_dwordx4 {v(BIG+4*kb,4)}, {v(vL16)}, {s(sWS,4)}, {s(sT)} offen {LDF}", f"x{kb}")
    LA = 8
    a(f"s_mov_b32 {s(sT2)}, 0x{ST2:x}")
    for t in range(8):
        vm.op(f"buffer_load_dwordx2 {v(S2+2*t,2)}, {v(vT3)}, {s(sWS,4)}, {s(sT2)} offen {LDF}", "s2")
        a(f"s_add_u32 {s(sT2)}, {s(sT2)}, 0x4000")
    for kb in range(LA): xload(kb)
    hi()
    vm.wait("s2")
    for t in range(1, 8): a(f"v_pk_add_f32 {v(S2,2)}, {v(S2,2)}, {v(S2+2*t,2)}")
    a(f"v_mov_b32 {v(XR)}, {v(S2)}")
    a(f"v_mov_b32 {v(XR+2)}, {v(S2+1)}")
    def t3(kb):
        for f in range(3): a(f"ds_read_b128 {v(WF(kb&1,f),4)}, {v(v3A[kb>>4])} offset:{(kb&15)*3072+1024*f}")
    t3(0)
    halves_sum(a, XR, vT0); halves_sum(a, XR+2, vT1)
    a(f"""
    v_mul_f32 {v(XR)}, {fl(-1/512)}, {v(XR)}
    v_mul_f32 {v(vT0)}, {v(XR)}, {v(XR)}
    v_mov_b32 {v(vT1)}, {fl(1/512)}
    v_fma_f32 {v(vT0)}, {v(XR+2)}, {v(vT1)}, -{v(vT0)}
    v_max_f32 {v(vT0)}, 0, {v(vT0)}
    v_add_f32 {v(vT0)}, {fl(EPS)}, {v(vT0)}
    v_rsq_f32 {v(XR+2)}, {v(vT0)}
    v_mov_b32 {v(XR+1)}, {v(XR)}
    """)
    gelu_consts(a, XR+2, STv, STv+2, 30)
    lo()
    for kb in range(32):
        if kb < 31: t3(kb+1)
        if kb+LA < 32: xload(kb+LA)
        vm.wait(f"x{kb}")
        a(f"s_waitcnt lgkmcnt({3 if kb < 31 else 0})")
        if H2 and kb % H2 == H2-1: hi()
        for f in range(3):
            a(f"v_mfma_f32_32x32x16_bf16 {v(A3+16*f,16)}, {v(WF(kb&1,f),4)}, {v(BIG+4*kb,4)}, {'0' if kb == 0 else v(A3+16*f,16)}")
        if H2 and kb % H2 == H2-1: lo()
    hi()
    stamp(a, 8)
    NW, NG = 10, 5
    WR = lambda st: 96 + 8*(st % NW)
    GR = lambda st: 176 + 8*(st % NG)
    CSV = 176; PK = 216; TMP = 240; vC1, vC2, vONE = STv, STv+2, 8
    a(f"""
    s_and_b32 {s(sT)}, {s(sT64)}, 3
    s_mul_i32 {s(sT)}, {s(sT)}, 5
    s_mul_i32 {s(sR1)}, {s(sJ)}, 3
    s_add_u32 {s(sR1)}, {s(sR1)}, {s(sT)}
    s_sub_u32 {s(sT)}, {s(sR1)}, 22
    s_cmp_ge_u32 {s(sR1)}, 22
    s_cselect_b32 {s(sR1)}, {s(sT)}, {s(sR1)}
    s_mov_b32 {s(sR2)}, {s(sR1)}
    s_mul_i32 {s(sB2)}, {s(sC)}, 22
    v_lshlrev_b32 {v(vT0)}, 4, {v(vHI)}
    s_lshl_b32 {s(sT)}, {s(sTG)}, 2
    s_add_u32 {s(sT)}, {s(sT)}, {s(sC)}
    s_mul_i32 {s(sT3)}, {s(sT)}, {96*1024}
    s_mul_i32 {s(sT)}, {s(sM16)}, 6144
    s_add_u32 {s(sT3)}, {s(sT3)}, {s(sT)}
    s_add_u32 {s(sT3)}, {s(sT3)}, 0x{GF:x}
    s_add_u32 {s(sWB)}, {s(sT3)}, 4096
    """)
    vONE = 30
    def rot22(r):
        a(f"""
        s_add_u32 {s(sT)}, {s(r)}, {s(sB2)}
        s_add_u32 {s(r)}, {s(r)}, 1
        s_cmp_eq_u32 {s(r)}, 22
        s_cselect_b32 {s(r)}, 0, {s(r)}
        """)
    def w4load(st): rot22(sR1); wload(WR(st), W4F, f"w{st}")
    def gload(st):
        rot22(sR2)
        a(f"s_lshl_b32 {s(sT2)}, {s(sT)}, 10")
        for b in (0, 1): vm.op(f"buffer_load_dwordx4 {v(GR(st)+4*b,4)}, {v(vH[b])}, {s(sWS,4)}, {s(sT2)} offen {LDF}", f"g{st}")
    def csread(g):
        for q in (0, 1): a(f"ds_read_b128 {v(CSV+8*(g&1)+4*q,4)}, {v(vT0)} offset:{CS3L+64*g+32*q}")
    csread(0)
    for g in range(6):
        xs = [A3+8*g+j for j in range(8)]
        if g < 5: csread(g+1)
        a(f"s_waitcnt lgkmcnt({2 if g < 5 else 0})")
        for j in range(0, 8, 2): a(f"v_pk_fma_f32 {v(xs[j],2)}, {v(CSV+8*(g&1)+j,2)}, {v(XR,2)}, {v(xs[j],2)}")
        gelu_scaled(a, xs, [TMP+j for j in range(8)], vC1, vC2, vONE)
        for j in range(4): a(f"v_cvt_pk_bf16_f32 {v(PK+4*g+j)}, {v(xs[2*j])}, {v(xs[2*j+1])}")
        vm.op(f"buffer_store_dwordx4 {v(PK+4*g,4)}, {v(vL16)}, {s(sWS,4)}, {s(sT3 if g < 4 else sWB)} offen offset:{1024*(g&3)} {STF}", "st")
        for st in range(g*GW//6, (g+1)*GW//6): w4load(st)
    stamp(a, 9)
    a(f"""
    s_mul_i32 {s(sT)}, {s(sTT)}, {96*1024}
    s_add_u32 {s(sT)}, {s(sT)}, 0x{GF:x}
    s_xor_b32 {s(sT2)}, {s(sTT)}, 1
    s_mul_i32 {s(sT2)}, {s(sT2)}, {96*1024}
    s_add_u32 {s(sT2)}, {s(sT2)}, 0x{GF:x}
    v_add_u32 {v(vH[0])}, {s(sT)}, {v(vL16)}
    v_add_u32 {v(vH[1])}, {s(sT2)}, {v(vL16)}
    """)
    vm.wait("st")
    stamp(a, 10)
    signal(1)
    lo()
    for st in range(GW, NW): w4load(st)
    a(f"s_add_u32 {s(sT2)}, {s(sFL)}, {16 << FSH}")
    poll(16, depth=PD1)
    stamp(a, 11)
    for st in range(NG-1): gload(st)
    for st in range(22):
        if st+NG-1 < 22: gload(st+NG-1)
        if HOLD and st == 22-HOLD and not os.environ.get("NOATT"): await_(PROG_A, HTH, 2, addr=vPW)
        vm.wait(f"w{st}", f"g{st}")
        mm4(WR(st), GR(st), st == 0, True)
        if st+NW < 22: w4load(st+NW)
        if st == 11:
            a(f"""
            s_mov_b32 {s(sR1)}, {s(sROT)}
            s_lshl_b32 {s(sWB)}, {s(sT64)}, 2
            s_add_u32 {s(sWB)}, {s(sWB)}, {s(sC)}
            s_lshl_b32 {s(sWB)}, {s(sWB)}, {FSH}
            s_add_u32 {s(sWB)}, {s(sWB)}, 0x{cnt(C_S3):x}
            v_mov_b32 {v(vPK)}, 0
            """)
        if 12 <= st < 20: rot8(sR1); wload(WR(st), WOF, "wo")
        if st == 19:
            a("s_mov_b64 exec, 1")
            vm.op(f"buffer_atomic_umax {v(vPK)}, {v(vZ)}, {s(sWS,4)}, {s(sWB)} offen sc0 sc1", "wo")
            a("s_mov_b64 exec, -1")
    stamp(a, 12)
    WO = lambda st: WR(12+st)
    OO = lambda st: 176 + 8*st
    a(f"""
    s_lshl_b32 {s(sT)}, {s(sTT)}, 15
    s_add_u32 {s(sT)}, {s(sT)}, 0x{OF:x}
    v_add_u32 {v(vH[0])}, {s(sT)}, {v(vL16)}
    v_xor_b32 {v(vH[1])}, 0x8000, {v(vH[0])}
    """)
    vm.wait("wo")
    if not os.environ.get("NOATT"):
        a(f"""
        v_readfirstlane_b32 {s(sT)}, {v(vPK)}
        s_mov_b32 {s(sT2)}, {s(sWB)}
        s_cmp_ge_u32 {s(sT)}, 8
        s_cbranch_scc1 CH_OGO
        """)
        await_(PROG_A, 17, 8)
        poll(8, everyone=True, depth=PD3)
        a.label("CH_OGO")
    stamp(a, 13)
    hi()
    def oloads(first):
        a(f"s_add_u32 {s(sR1)}, {s(sROT)}, {first}")
        for st in range(first, 8):
            rot8(sR1)
            a(f"s_lshl_b32 {s(sT2)}, {s(sT)}, 10")
            for b in (0, 1): vm.op(f"buffer_load_dwordx4 {v(OO(st)+4*b,4)}, {v(vH[b])}, {s(sWS,4)}, {s(sT2)} offen {LDF}", f"o{st}")
    a(f"s_mov_b32 {s(sT3)}, {SPIN}")
    oloads(0)
    for st in range(8):
        a.label(f"CH_O{st}")
        vm.wait(f"o{st}", "wo")
        if CANARY:
            o = OO(st)
            a(f"""
            v_max3_u32 {v(vT0)}, {v(o)}, {v(o+1)}, {v(o+2)}
            v_max3_u32 {v(vT1)}, {v(o+3)}, {v(o+4)}, {v(o+5)}
            v_max3_u32 {v(vT0)}, {v(vT0)}, {v(o+6)}, {v(o+7)}
            v_max_u32 {v(vT0)}, {v(vT0)}, {v(vT1)}
            v_cmp_eq_u32 vcc, -1, {v(vT0)}
            s_cbranch_vccnz CH_R{st}
            """)
            a.label(f"CH_G{st}")
        mm4(WO(st), OO(st), False, True)
    reduce4()
    Y = BIG
    for j in range(8): a(f"v_cvt_pk_bf16_f32 {v(Y+j)}, {v(ACC+2*j)}, {v(ACC+2*j+1)}")
    for b in (0, 1):
        a(f"v_permlane32_swap_b32 {v(Y+4*b)}, {v(Y+4*b+2)}")
        a(f"v_permlane32_swap_b32 {v(Y+4*b+1)}, {v(Y+4*b+3)}")
    for b in (0, 1): a(f"buffer_store_dwordx4 {v(Y+4*b,4)}, {v(vXO)}, {s(sOUT,4)}, 0 offen offset:{32*b} {OUTF}")
    if PROF:
        a("s_waitcnt vmcnt(0)")
        stamp(a, 1)
    stamp_flush(a, 1, sW, pWS, "B")
    a("s_endpgm")
    if CANARY:
        for st in range(8):
            a.label(f"CH_R{st}")
            a(f"""
            s_cmp_eq_u32 {s(sT3)}, 0
            s_cbranch_scc1 CH_G{st}
            s_sub_u32 {s(sT3)}, {s(sT3)}, 1
            """)
            oloads(st)
            a(f"s_branch CH_O{st}")

def gen_k2(a=None):
    own = a is None
    if own:
        a = Asm()
        a("s_cmp_ge_u32 s2, 256")
        a("s_cbranch_scc1 K2_END")
    stamp_init(a); stamp(a, 0)
    a(f"""
    s_load_dwordx2 s[26:27], s[0:1], {P_WS}
    s_load_dwordx2 s[16:17], s[0:1], {A_X}
    s_load_dwordx2 s[18:19], s[0:1], {P_OUT}
    v_lshrrev_b32 v2, 6, v0
    v_and_b32 v1, 63, v0
    v_readfirstlane_b32 s28, v2
    v_mov_b32 {v(vBIG)}, {fl(2.0**126)}
    s_cmp_ge_u32 s28, 4
    s_cbranch_scc1 K2_CHAIN
    """)
    attention(a)
    a(".p2align 6")
    a.label("K2_CHAIN")
    chain(a)
    a.label("K2_END" if own else "K1_END")
    a("s_endpgm")
    lines, added = a.done()
    return kernel_text("k2_mix_kernel" if own else NAME, lines, 256, 102)

NAME = "parallel_sum__mha_block__mixer_s_mlp__prompt_kernel"
def gen_merged():
    import k1
    a = Asm()
    k1.gen_k1(a)
    return gen_k2(a)
```
